```python
import torch

def _softmax(x, axis=-1):
    return torch.softmax(x, dim=axis)
def _gelu(x):
    return torch.nn.functional.gelu(x, approximate="tanh")
def _silu(x):
    return torch.nn.functional.silu(x)
def _sigmoid(x):
    return torch.sigmoid(x)
def _layernorm(x, axis=-1, eps=1e-5):
    m = x.mean(dim=axis, keepdim=True)
    v = x.var(dim=axis, keepdim=True, unbiased=False)
    return (x - m) / torch.sqrt(v + eps)
def _scatter_add(tgt, idx, src, axis=0):
    return tgt.clone().index_add_(axis, idx, src)
def _segment_sum(src, seg, n):
    out = torch.zeros((n,) + src.shape[1:], dtype=src.dtype)
    return out.index_add_(0, seg, src)
def _pad(x, pw):
    flat = tuple(v for pair in reversed(pw) for v in pair)
    return torch.nn.functional.pad(x, flat)

kernel_name = 'parallel_sum__sliding_block__glu_gated_reglu__prompt'

def setup_inputs():

    _w = (lambda a: (lambda t: t.to(torch.bfloat16) if t.is_floating_point() else t)(torch.as_tensor(a)))
    def _A_setup():
        B, S, D = 1, 2048, 640
        return {
            "x": _w((lambda *s: torch.randn(*s, dtype=torch.bfloat16) * 0.05)(B, S, D)),
            "wqkv": _w((lambda *s: torch.randn(*s, dtype=torch.bfloat16) * 0.05)(D, 3 * D)),
            "wo": _w((lambda *s: torch.randn(*s, dtype=torch.bfloat16) * 0.05)(D, D)),
        }
    _A_in = _A_setup()

    def _B_setup():
        B, S, D, F = 1, 2048, 640, 1728
        return {
            "x": _w((lambda *s: torch.randn(*s, dtype=torch.bfloat16) * 0.05)(B, S, D)),
            "W_gate": _w((lambda *s: torch.randn(*s, dtype=torch.bfloat16) * 0.8)(D, F) * (2.0 / D) ** 0.5),
            "W_up": _w((lambda *s: torch.randn(*s, dtype=torch.bfloat16) * 0.8)(D, F) * (2.0 / D) ** 0.5),
            "W_down": _w((lambda *s: torch.randn(*s, dtype=torch.bfloat16) * 0.8)(F, D) * (1.0 / F) ** 0.5),
        }
    _B_in = _B_setup()

    return {
        "A_x": _A_in["x"],
        "A_wqkv": _A_in["wqkv"],
        "A_wo": _A_in["wo"],
        "B_x": _B_in["x"],
        "B_W_gate": _B_in["W_gate"],
        "B_W_up": _B_in["W_up"],
        "B_W_down": _B_in["W_down"],
    }

def reference(A_x, A_wqkv, A_wo, B_x, B_W_gate, B_W_up, B_W_down):
    def _A_ref(x, wqkv, wo):
        B, S, D = x.shape
        H = 32; Dh = D // H; W = 256
        qkv = (lambda x, *d: x.permute(*d))((x @ wqkv).reshape(B, S, 3, H, Dh), 2, 0, 3, 1, 4)
        q, k, v = qkv[0], qkv[1], qkv[2]
        scores = torch.einsum("bhqd,bhkd->bhqk", q, k) * (Dh ** -0.5)
        idx = torch.arange(S)
        mask = (idx[:, None] - idx[None, :] >= 0) & (idx[:, None] - idx[None, :] < W)
        scores = torch.where(mask[None, None], scores, -1e9)
        p = _softmax(scores, axis=-1)
        o = torch.einsum("bhqk,bhkd->bhqd", p, v)
        return (lambda x, *d: x.permute(*d))(o, 0, 2, 1, 3).reshape(B, S, D) @ wo

    def _B_ref(x, W_gate, W_up, W_down):
        gate = torch.einsum("bsd,df->bsf", x, W_gate)
        up = torch.einsum("bsd,df->bsf", x, W_up)
        gate = gate * (lambda x, dt: x.to(dt))(gate > 0, gate.dtype)
        h = gate * up
        return torch.einsum("bsf,fd->bsd", h, W_down)

    x = A_x
    xn = _layernorm(x, axis=-1)
    return x + _A_ref(xn, A_wqkv, A_wo) + _B_ref(xn, B_W_gate, B_W_up, B_W_down)
```

```python
KNAME = "parallel_sum__sliding_block__glu_gated_reglu__prompt"

ACT_OFF = 0x0000000
ACT_ROW = 74 * 1024
ACT_SZ = 128 * ACT_ROW
QB_OFF = 0x0A00000
KB_OFF = 0x0D00000
QK_SZ = 16 * 64 * 2560
VB_OFF = 0x1000000
VB_SZ = 32 * 64 * 1280
W3_OFF = 0x1300000
W3_CB = 74 * 5120
W3_SZ = 8 * W3_CB

X_SZ = 2048 * 1280
WQKV_SZ = 640 * 3840
WG_SZ = 640 * 3456
WD_SZ = 1728 * 1280
WO_SZ = 640 * 1280


class E:
    def __init__(self):
        self.l = []
        self.nlab = 0

    def __call__(self, s=""):
        for x in s.split("\n"):
            self.l.append("    " + x.strip() if x.strip() and not x.strip().endswith(":") else x.strip())

    def lab(self, name):
        self.l.append(name + ":")

    def newlab(self, p="L"):
        self.nlab += 1
        return f"{p}_{self.nlab}"

    def c(self, s):
        self.l.append("    ; " + s)

    def text(self):
        return "\n".join(self.l) + "\n"


class Regs:
    def __init__(self, start, limit, pfx):
        self.n = start
        self.limit = limit
        self.pfx = pfx
        self.hi = start

    def a(self, cnt=1, align=1):
        if cnt >= 2 and align == 1:
            align = 2
        self.n = (self.n + align - 1) // align * align
        r = self.n
        self.n += cnt
        assert self.n <= self.limit, f"out of {self.pfx} regs ({self.n})"
        self.hi = max(self.hi, self.n)
        return r

    def mark(self):
        return self.n

    def reset(self, m):
        self.n = m


def v(i, n=1):
    return f"v{i}" if n == 1 else f"v[{i}:{i+n-1}]"


def s(i, n=1):
    return f"s{i}" if n == 1 else f"s[{i}:{i+n-1}]"


def srd(e, d, base_lo, off, size):
    if off == 0:
        e(f"s_mov_b32 s{d}, s{base_lo}")
        e(f"s_mov_b32 s{d+1}, s{base_lo+1}")
    else:
        o = off if isinstance(off, str) else hex(off)
        e(f"s_add_u32 s{d}, s{base_lo}, {o}")
        e(f"s_addc_u32 s{d+1}, s{base_lo+1}, 0")
    e(f"s_mov_b32 s{d+2}, {size if isinstance(size, str) else hex(size)}")
    e(f"s_mov_b32 s{d+3}, 0x00020000")


def interleave(e, mfmas, fillers):
    for i, m in enumerate(mfmas):
        e(m)
        if i < len(fillers):
            for f in fillers[i]:
                e(f)
    for fl in fillers[len(mfmas):]:
        for f in fl:
            e(f)


def spread(items, nslots, start=0):
    out = [[] for _ in range(nslots)]
    n = len(items)
    k = nslots - start
    for j, it in enumerate(items):
        out[start + min(k - 1, j * k // max(n, 1))].append(it)
    return out


def merge(*lists):
    n = max(len(x) for x in lists)
    out = [[] for _ in range(n)]
    for x in lists:
        for i, y in enumerate(x):
            out[i] += y
    return out


def kernel_header(name):
    return f""".globl {name}
.p2align 8
.type {name},@function
{name}:
"""


def kernel_desc(name, vgpr=256, sgpr=102):
    acc = min(256, (vgpr + 3) // 4 * 4)
    return f""".amdhsa_kernel {name}
  .amdhsa_next_free_vgpr {vgpr}
  .amdhsa_next_free_sgpr {sgpr}
  .amdhsa_accum_offset {acc}
  .amdhsa_group_segment_fixed_size 0
  .amdhsa_kernarg_size 80
  .amdhsa_user_sgpr_count 2
  .amdhsa_user_sgpr_kernarg_segment_ptr 1
  .amdhsa_system_sgpr_workgroup_id_x 1
.end_amdhsa_kernel
"""


PROF = False
PROF_OFF = 0x3000000
PROF_S0 = 64
def stamp(e, idx, real=False):
    if not PROF:
        return
    e(f"{'s_memrealtime' if real else 's_memtime'} s[60:61]")
    e("s_waitcnt lgkmcnt(0)")
    e(f"s_mov_b32 s{PROF_S0+idx}, s60")

def stamp_dump(e, n, kidx, sW, ws_lo, vt=2):
    if not PROF:
        return
    e(f"s_lshl_b32 s60, s2, 3")
    e(f"s_add_u32 s60, s60, s{sW}")
    e(f"s_lshl_b32 s60, s60, 7")
    e(f"s_add_u32 s60, s60, {hex(PROF_OFF + kidx*0x40000)}")
    e(f"s_add_u32 s96, s{ws_lo}, s60")
    e(f"s_addc_u32 s97, s{ws_lo+1}, 0")
    e("s_mov_b32 s98, 128")
    e("s_mov_b32 s99, 0x00020000")
    e("s_mov_b64 exec, 1")
    e(f"v_mov_b32 v{vt+1}, 0")
    for i in range(n):
        e(f"v_mov_b32 v{vt}, s{PROF_S0+i}")
        e(f"buffer_store_dword v{vt}, v{vt+1}, s[96:99], 0 offen offset:{4*i}")
        e("s_nop 1")
    e("s_waitcnt vmcnt(0)")


import re as _re
_VR = _re.compile(r"\bv\[(\d+):(\d+)\]|\bv(\d+)\b")

def vregs(text):
    out = set()
    for m in _VR.finditer(text):
        if m.group(3) is not None:
            out.add(int(m.group(3)))
        else:
            out.update(range(int(m.group(1)), int(m.group(2)) + 1))
    return out

def autowait(lines, pending):
    out = []
    pending = list(pending)
    for ln in lines:
        st = ln.strip()
        op = st.split()[0] if st else ""
        if not st or st.startswith(";") or st.endswith(":"):
            out.append(ln); continue
        if op == "s_waitcnt":
            m = _re.search(r"lgkmcnt\((\d+)\)", st)
            if m:
                n = int(m.group(1))
                pending = pending[len(pending) - n:] if n < len(pending) else pending
            out.append(ln); continue
        if op.startswith("ds_"):
            ops = st[len(op):].split(",")
            if op.startswith("ds_read"):
                dst = vregs(ops[0]); use = vregs(",".join(ops[1:]))
            else:
                dst = set(); use = vregs(st[len(op):])
            need = use
        else:
            dst = None; need = vregs(st[len(op):])
        idx = -1
        for i, p in enumerate(pending):
            if p & need:
                idx = i
        if idx >= 0:
            n = min(15, len(pending) - 1 - idx)
            out.append(f"s_waitcnt lgkmcnt({n})")
            pending = pending[len(pending) - n:] if n else []
        out.append(ln)
        if dst is not None:
            pending.append(dst)
    return out, pending
```

```python
from common import *

XR = 98304
ST = 147456
CSP = ST + 4096
CS = CSP + 6144
RS = CS + 1536
NM = RS + 512
K1_LDS = NM + 512

S_XP, S_WQKV, S_WO, S_GATE, S_UP, S_DOWN, S_OUT, S_DBG, S_WS = 40, 42, 44, 48, 50, 52, 54, 56, 58
SRDX, SRDW, SRDO = 8, 12, 16
sTB, sROLE, sW, sCNT, sWso, sXso, sWM0, sXwr, sXwb, sXrd, sONES = 20, 21, 22, 23, 24, 25, 27, 28, 29, 30, 31
sT0, sT1, sT2, sT3 = 32, 33, 34, 35
sA, sB = 36, 37
sBIG = 38
sMASK = 39


def load_ptrs(e):
    e("s_load_dwordx16 s[40:55], s[0:1], 0")
    e("s_load_dwordx4 s[56:59], s[0:1], 64")


def k1_prologue(e):
    e("s_cmp_ge_u32 s2, 256")
    e("s_cbranch_scc1 k1_exit")
    load_ptrs(e)
    e("v_and_b32 v1, 63, v0")
    e("v_lshrrev_b32 v2, 6, v0")
    e("s_and_b32 s3, s2, 7")
    e("s_lshr_b32 s4, s2, 3")
    e(f"v_readfirstlane_b32 s{sW}, v2")
    e("s_and_b32 s5, s3, 1")
    e("s_lshl_b32 s5, s5, 3")
    e("s_and_b32 s6, s4, 7")
    e(f"s_add_u32 s{sTB}, s5, s6")
    e("s_lshr_b32 s5, s3, 1")
    e("s_lshl_b32 s5, s5, 2")
    e("s_lshr_b32 s6, s4, 3")
    e(f"s_add_u32 s{sROLE}, s5, s6")
    e(f"s_mov_b32 s{sONES}, 0x3f803f80")
    e(f"s_mov_b32 s{sBIG}, 0x40000000")
    e(f"s_mov_b32 s{sMASK}, 0xffff0000")
    e("s_waitcnt lgkmcnt(0)")
    stamp(e, 0, True)
    stamp(e, 1)
    e(f"s_cmp_eq_u32 s{sROLE}, 15")
    e("s_cbranch_scc1 k1_helper")
    e(f"s_cmp_ge_u32 s{sROLE}, 6")
    e("s_cbranch_scc1 k1_ffn")
    e(f"s_cmp_ge_u32 s{sROLE}, 4")
    e("s_cbranch_scc1 k1_v")
    e("s_branch k1_qk")


EXP = set()
DW, DX = 2, 3

def gemm(e, cls, store_sc=""):
    ffn = cls == "ffn"
    NT = 3 if ffn else 5
    NU = 2 if ffn else 1
    WSLOT = 24576 if ffn else 20480
    WROW = 384 if ffn else 640
    GROW = 3456 if ffn else 3840
    R = Regs(2, 256, "v")
    t = [R.a() for _ in range(8)]
    vWs = [R.a() for _ in range(3)]
    vXs = [R.a() for _ in range(2)]
    if ffn:
        vWA = [[[R.a() for i in range(3)] for p in range(2)] for st in range(2)]
    else:
        vWA = [[R.a() for par in range(2)] for p in range(2)]
    vXB = [R.a() for _ in range(4)]
    vXc = R.a()
    vS0 = [R.a() for _ in range(2)]
    vSc = R.a()
    vCS = [[R.a(), R.a()] for _ in range(NT)]
    _p = R.a(2, 2)
    vS1, vS2 = [_p, _p + 1], [R.a(), R.a()]
    vU = [[R.a(), R.a()] for _ in range(2)]
    fA = [[R.a(4, 4) for i in range(NT)] for b in range(2)]
    fB = [[R.a(4, 4) for u in range(NU)] for b in range(2)]
    fS = R.a(4, 4)
    acc = [[R.a(16, 4) for u in range(NU)] for i in range(NT)]
    L = 1

    e.lab(f"k1_{cls}")
    e.c(f"---------------- setup {cls} ----------------")
    if ffn:
        e(f"s_and_b32 s{sA}, s{sW}, 1")
        e(f"s_lshr_b32 s{sB}, s{sW}, 1")
    else:
        e(f"s_and_b32 s{sA}, s{sW}, 3")
        e(f"s_lshr_b32 s{sB}, s{sW}, 2")
    srd(e, SRDX, S_XP, 0, X_SZ)
    if ffn:
        e(f"s_cmp_ge_u32 s{sW}, 4")
        e(f"s_cselect_b32 s{SRDW}, s{S_UP}, s{S_GATE}")
        e(f"s_cselect_b32 s{SRDW+1}, s{S_UP+1}, s{S_GATE+1}")
        e(f"s_mov_b32 s{SRDW+2}, {hex(WG_SZ)}")
        e(f"s_mov_b32 s{SRDW+3}, 0x00020000")
        e(f"s_and_b32 s{sT0}, s{sW}, 3")
        e(f"s_lshl_b32 s{sT0}, s{sT0}, 3")
        e(f"s_lshr_b32 s{sT1}, s{sW}, 2")
        e(f"s_sub_u32 s{sT2}, s{sROLE}, 6")
        e(f"s_mul_i32 s{sT2}, s{sT2}, 384")
        e(f"s_mul_i32 s{sT3}, s{sT0}, {GROW}")
        e(f"s_add_u32 s{sT2}, s{sT2}, s{sT3}")
        e(f"s_lshl_b32 s{sT3}, s{sT1}, 2")
        nper, magic = 24, 2731
    else:
        srd(e, SRDW, S_WQKV, 0, WQKV_SZ)
        e(f"s_lshl_b32 s{sT0}, s{sW}, 2")
        e(f"s_mul_i32 s{sT2}, s{sROLE}, 640")
        e(f"s_mul_i32 s{sT3}, s{sT0}, {GROW}")
        e(f"s_add_u32 s{sT2}, s{sT2}, s{sT3}")
        nper, magic = 40, 1639
    e(f"s_mov_b32 s4, {magic}")
    e(f"s_mov_b32 s5, {GROW}")
    for i in range(3):
        e(f"v_add_u32 v{t[0]}, {64*i}, v{L}")
        e(f"v_mul_lo_u32 v{t[1]}, v{t[0]}, s4")
        e(f"v_lshrrev_b32 v{t[1]}, 16, v{t[1]}")
        e(f"v_mul_u32_u24 v{t[2]}, {nper}, v{t[1]}")
        e(f"v_sub_u32 v{t[2]}, v{t[0]}, v{t[2]}")
        e(f"v_bfe_u32 v{t[3]}, v{t[1]}, 1, 1")
        if ffn:
            e(f"v_lshlrev_b32 v{t[3]}, 1, v{t[3]}")
            e(f"v_or_b32 v{t[3]}, s{sT3}, v{t[3]}")
        else:
            e(f"v_lshlrev_b32 v{t[3]}, 2, v{t[3]}")
        e(f"v_xor_b32 v{t[2]}, v{t[2]}, v{t[3]}")
        e(f"v_mul_lo_u32 v{t[1]}, v{t[1]}, s5")
        e(f"v_lshl_add_u32 v{t[1]}, v{t[2]}, 4, v{t[1]}")
        e(f"v_add_u32 v{t[1]}, s{sT2}, v{t[1]}")
        e(f"v_subrev_u32 v{vWs[i]}, {1024*i}, v{t[1]}")
    if ffn:
        e(f"s_and_b32 s4, s{sW}, 3")
        e(f"s_mul_i32 s4, s4, 3072")
        e(f"s_mul_i32 s5, s{sT1}, 12288")
        e(f"s_add_u32 s{sWM0}, s4, s5")
    else:
        e(f"s_mul_i32 s{sWM0}, s{sW}, 2560")
    e(f"s_lshl_b32 s4, s{sTB}, 7")
    e(f"s_lshl_b32 s5, s{sW}, 4")
    e(f"s_add_u32 s4, s4, s5")
    e(f"s_mul_i32 s4, s4, 1280")
    for i in range(2):
        e(f"v_lshrrev_b32 v{t[0]}, 3, v{L}")
        e(f"v_add_u32 v{t[0]}, {8*i}, v{t[0]}")
        e(f"v_bfe_u32 v{t[1]}, v{t[0]}, 1, 3")
        e(f"v_and_b32 v{t[2]}, 7, v{L}")
        e(f"v_xor_b32 v{t[2]}, v{t[2]}, v{t[1]}")
        e(f"v_mul_u32_u24 v{t[0]}, 1280, v{t[0]}")
        e(f"v_lshl_add_u32 v{t[0]}, v{t[2]}, 4, v{t[0]}")
        e(f"v_add_u32 v{t[0]}, s4, v{t[0]}")
        e(f"v_subrev_u32 v{vXs[i]}, {1024*i}, v{t[0]}")
    e(f"s_lshl_b32 s{sXwb}, s{sW}, 11")
    e(f"s_add_u32 s{sXwb}, s{sXwb}, {XR}")

    def dma_w(slot):
        out = [f"s_add_u32 m0, s{sWM0}, {slot*WSLOT}", "s_nop 0",
               f"buffer_load_dwordx4 v{vWs[0]}, s[{SRDW}:{SRDW+3}], s{sWso} offen lds",
               f"buffer_load_dwordx4 v{vWs[1]}, s[{SRDW}:{SRDW+3}], s{sWso} offen offset:1024 lds"]
        if not ffn:
            out.append("s_mov_b32 exec_hi, 0")
        out.append(f"buffer_load_dwordx4 v{vWs[2]}, s[{SRDW}:{SRDW+3}], s{sWso} offen offset:2048 lds")
        if not ffn:
            out.append("s_mov_b32 exec_hi, -1")
        if 'hot' not in EXP:
            out.append(f"s_add_u32 s{sWso}, s{sWso}, {32*GROW}")
        return out

    def dma_x():
        return [f"s_add_u32 m0, s{sXwb}, s{sXwr}",
                f"s_add_u32 s{sXwr}, s{sXwr}, 16384",
                f"buffer_load_dwordx4 v{vXs[0]}, s[{SRDX}:{SRDX+3}], s{sXso} offen lds",
                f"buffer_load_dwordx4 v{vXs[1]}, s[{SRDX}:{SRDX+3}], s{sXso} offen offset:1024 lds",
                f"s_cmp_eq_u32 s{sXwr}, 49152",
                f"s_cselect_b32 s{sXwr}, 0, s{sXwr}",
                f"s_add_u32 s{sXso}, s{sXso}, {0 if 'hot' in EXP else 128}",
                f"s_cmp_ge_u32 s{sXso}, 1280",
                f"s_cselect_b32 s{sXso}, s{sBIG}, s{sXso}"]

    e(f"s_mov_b32 s{sWso}, 0")
    e(f"s_mov_b32 s{sXso}, 0")
    e(f"s_mov_b32 s{sXwr}, 0")
    e(f"s_mov_b32 s{sXrd}, 0")
    for op in [dma_w(0), dma_x(), dma_w(1), dma_w(2), dma_x(), dma_w(3)]:
        for x in op:
            e(x)

    g, r4, c4, bb = t[0], t[1], t[2], t[3]
    e(f"v_lshrrev_b32 v{g}, 4, v{L}")
    e(f"v_bfe_u32 v{r4}, v{L}, 2, 2")
    e(f"v_and_b32 v{c4}, 3, v{L}")
    e(f"v_bfe_u32 v{bb}, v{L}, 3, 1")
    e(f"v_lshrrev_b32 v{t[4]}, 1, v{g}")
    e(f"v_lshl_add_u32 v{t[4]}, v{t[4]}, 3, v{r4}")
    e(f"v_mul_u32_u24 v{t[4]}, {WROW}, v{t[4]}")
    e(f"v_and_b32 v{t[5]}, 1, v{g}")
    if ffn:
        e(f"v_mul_u32_u24 v{t[6]}, 12288, v{t[5]}")
        e(f"v_add_u32 v{t[4]}, v{t[4]}, v{t[6]}")
        e(f"v_and_b32 v{t[6]}, 1, v{c4}")
        e(f"v_lshl_add_u32 v{t[4]}, v{t[6]}, 3, v{t[4]}")
        e(f"v_lshlrev_b32 v{t[5]}, 2, v{t[5]}")
        e(f"v_lshl_add_u32 v{t[5]}, v{bb}, 1, v{t[5]}")
        e(f"v_lshrrev_b32 v{t[6]}, 1, v{c4}")
        e(f"s_mul_i32 s4, s{sB}, 6")
        e(f"s_mul_i32 s5, s{sA}, {16*WROW}")
        e(f"s_sub_u32 s6, {16*WROW}, s5")
        for i in range(3):
            e(f"v_add_u32 v{t[7]}, s4, v{t[6]}")
            if i:
                e(f"v_add_u32 v{t[7]}, {2*i}, v{t[7]}")
            e(f"v_xor_b32 v{t[7]}, v{t[7]}, v{t[5]}")
            e(f"v_lshl_add_u32 v{t[7]}, v{t[7]}, 4, v{t[4]}")
            e(f"v_add_u32 v{vWA[0][0][i]}, s5, v{t[7]}")
            e(f"v_add_u32 v{vWA[0][1][i]}, s6, v{t[7]}")
            e(f"v_add_u32 v{vWA[1][0][i]}, 49152, v{vWA[0][0][i]}")
            e(f"v_add_u32 v{vWA[1][1][i]}, 49152, v{vWA[0][1][i]}")
    else:
        e(f"v_lshl_add_u32 v{t[4]}, v{t[5]}, 5, v{t[4]}")
        e(f"v_lshl_add_u32 v{t[4]}, v{c4}, 3, v{t[4]}")
        e(f"s_mul_i32 s4, s{sB}, 320")
        e(f"v_add_u32 v{t[4]}, s4, v{t[4]}")
        e(f"v_lshlrev_b32 v{t[5]}, 6, v{bb}")
        e(f"v_sub_u32 v{t[6]}, 0, v{t[5]}")
        e(f"s_cmp_eq_u32 s{sB}, 0")
        e(f"s_cselect_b64 vcc, -1, 0")
        e(f"v_cndmask_b32 v{t[7]}, v{t[6]}, v{t[5]}, vcc")
        e(f"v_sub_u32 v{t[6]}, 0, v{t[7]}")
        e(f"s_and_b32 s5, s{sA}, 1")
        e(f"s_mul_i32 s5, s5, {16*WROW}")
        e(f"s_sub_u32 s6, {16*WROW}, s5")
        e(f"v_add_u32 v{t[7]}, v{t[4]}, v{t[7]}")
        e(f"v_add_u32 v{t[6]}, v{t[4]}, v{t[6]}")
        e(f"v_add_u32 v{vWA[0][0]}, s5, v{t[7]}")
        e(f"v_add_u32 v{vWA[0][1]}, s5, v{t[6]}")
        e(f"v_add_u32 v{vWA[1][0]}, s6, v{t[7]}")
        e(f"v_add_u32 v{vWA[1][1]}, s6, v{t[6]}")
    e(f"v_and_b32 v{t[0]}, 31, v{L}")
    e(f"v_bfe_u32 v{t[1]}, v{L}, 1, 3")
    e(f"v_lshrrev_b32 v{t[2]}, 5, v{L}")
    e(f"s_and_b32 s4, s{sA}, 1")
    if ffn:
        e(f"s_lshl_b32 s5, s{sA}, 13")
    else:
        e(f"s_lshl_b32 s5, s{sA}, 12")
    e(f"s_add_u32 s5, s5, {XR}")
    e(f"v_lshlrev_b32 v{t[0]}, 7, v{t[0]}")
    e(f"v_add_u32 v{t[0]}, s5, v{t[0]}")
    for q in range(4):
        e(f"s_xor_b32 s6, s4, {q}")
        e(f"s_lshl_b32 s6, s6, 1")
        e(f"v_add_u32 v{t[3]}, s6, v{t[2]}")
        e(f"v_xor_b32 v{t[3]}, v{t[3]}, v{t[1]}")
        e(f"v_lshl_add_u32 v{vXB[q]}, v{t[3]}, 4, v{t[0]}")
    e(f"v_and_b32 v{t[0]}, 15, v{L}")
    e(f"v_bfe_u32 v{t[1]}, v{L}, 1, 3")
    e(f"v_lshrrev_b32 v{t[2]}, 4, v{L}")
    e(f"v_lshlrev_b32 v{t[2]}, 1, v{t[2]}")
    e(f"v_xor_b32 v{t[2]}, v{t[2]}, v{t[1]}")
    e(f"v_lshlrev_b32 v{t[0]}, 7, v{t[0]}")
    e(f"v_add_u32 v{t[0]}, s{sXwb}, v{t[0]}")
    e(f"v_lshl_add_u32 v{vS0[0]}, v{t[2]}, 4, v{t[0]}")
    e(f"v_xor_b32 v{vS0[1]}, 16, v{vS0[0]}")
    for i in range(NT):
        e(f"v_mov_b32 v{vCS[i][0]}, 0")
        e(f"v_mov_b32 v{vCS[i][1]}, 0")
        for u in range(NU):
            for r in range(16):
                e(f"v_mov_b32 v{acc[i][u]+r}, 0")
    for x in vS1 + vS2:
        e(f"v_mov_b32 v{x}, 0")

    def reads_w(st, p):
        out = []
        for i in range(NT):
            if ffn:
                base = vWA[st >> 1][p][i]
                off = (st & 1) * WSLOT
            else:
                base = vWA[p][i & 1]
                off = st * WSLOT + 64 * i
            a = fA[p][i]
            out.append([f"ds_read_b64_tr_b16 v[{a}:{a+1}], v{base} offset:{off}",
                        f"ds_read_b64_tr_b16 v[{a+2}:{a+3}], v{base} offset:{off+4*WROW}"])
        return out

    def reads_x(st, p):
        q = 2 * (st & 1) + p
        out = [f"v_add_u32 v{vXc}, s{sXrd}, v{vXB[q]}"]
        for u in range(NU):
            b = fB[p][u]
            out.append(f"ds_read_b128 v[{b}:{b+3}], v{vXc} offset:{4096*u}")
        return out

    adv_xrd = [f"s_add_u32 s{sXrd}, s{sXrd}, 16384", f"s_cmp_eq_u32 s{sXrd}, 49152",
               f"s_cselect_b32 s{sXrd}, 0, s{sXrd}"]

    e("s_waitcnt vmcnt(11) lgkmcnt(0)")
    e("s_barrier")
    stamp(e, 2)
    pro = reads_x(0, 0) + [x for l_ in reads_w(0, 0) for x in l_]
    pro, pro_pending = autowait(pro, [])
    for x in pro:
        e(x)
    e(f"s_mov_b32 s{sCNT}, 5")
    if True:
        e(f"s_cmp_ge_u32 s{sW}, 4")
        lp = e.newlab("k1p")
        e(f"s_cbranch_scc0 {lp}")
        e("s_setprio 1")
        e.lab(lp)
    loop = f"k1_{cls}_loop"
    e.lab(loop)

    def mfmas(p):
        out = []
        for i in range(NT):
            for u in range(NU):
                if 'nomfma' in EXP:
                    out.append("s_nop 0")
                    continue
                a, b, c = fA[p][i], fB[p][u], acc[i][u]
                if cls == "v":
                    a, b = b, a
                out.append(f"v_mfma_f32_32x32x16_bf16 v[{c}:{c+15}], v[{a}:{a+3}], v[{b}:{b+3}], v[{c}:{c+15}]")
        return out

    NS = NT * NU

    def unpack_ops(items):
        seq = []
        prev = None
        def fin(p):
            (reg, kind, idx), u_ = p
            if kind == 'c':
                return [f"v_add_f32 v{vCS[idx][0]}, v{vCS[idx][0]}, v{u_[0]}",
                        f"v_add_f32 v{vCS[idx][1]}, v{vCS[idx][1]}, v{u_[1]}"]
            return [f"v_add_f32 v{vS1[0]}, v{vS1[0]}, v{u_[0]}",
                    f"v_add_f32 v{vS1[1]}, v{vS1[1]}, v{u_[1]}",
                    f"v_fmac_f32 v{vS2[0]}, v{u_[0]}, v{u_[0]}",
                    f"v_fmac_f32 v{vS2[1]}, v{u_[1]}, v{u_[1]}"]
        for j, it in enumerate(items):
            u_ = vU[j & 1]
            seq.append(f"v_lshlrev_b32 v{u_[0]}, 16, v{it[0]}")
            seq.append(f"v_and_b32 v{u_[1]}, s{sMASK}, v{it[0]}")
            if prev: seq += fin(prev)
            prev = (it, u_)
        if prev: seq += fin(prev)
        return seq

    p0_tiles = list(range(2)) if ffn else list(range(3))
    p1_tiles = [i for i in range(NT) if i not in p0_tiles]
    body = []
    class B:
        pass
    def emit_slots(ms, fl):
        for i, m in enumerate(ms):
            body.append(m)
            if i < len(fl):
                body.extend(fl[i])

    def place(fl, items, slots):
        for it, sl in zip(items, slots):
            fl[sl] += it

    for st in range(4):
        body.append(f"; stage {st} pos 0")
        rw = reads_w(st, 1)
        rx = reads_x(st, 1)
        fl = [[] for _ in range(NS)]
        sread = [f"v_add_u32 v{vSc}, s{sXrd}, v{vS0[st & 1]}", f"ds_read_b128 v[{fS}:{fS+3}], v{vSc}"]
        if ffn:
            fl[0] += rx + rw[0]
            fl[1] += rw[1] + rw[2]
            fl[2] += sread
        else:
            fl[0] += rx + rw[0] + rw[1][:1]
            fl[1] += rw[1][1:] + rw[2] + rw[3]
            fl[2] += rw[4] + sread
        if 'nodots' in EXP:
            ops = []
        else:
            ops = unpack_ops([(fA[0][i] + r, 'c', i) for i in p0_tiles for r in range(4)])
        fl = merge(fl, spread(ops, NS))
        emit_slots(mfmas(0), fl)
        body.append("s_waitcnt vmcnt(8) lgkmcnt(0)" if 'nodma' not in EXP else "s_waitcnt lgkmcnt(0)")
        if 'nobar' not in EXP:
            body.append("s_barrier")
        nst = (st + 1) & 3
        rw = reads_w(nst, 0)
        rx = reads_x(nst, 0)
        fl = [[] for _ in range(NS)]
        if st & 1:
            fl[0] += adv_xrd
        if ffn:
            fl[0] += rx + rw[0]
            fl[1] += rw[1] + rw[2]
        else:
            fl[0] += rx + rw[0] + rw[1][:1]
            fl[1] += rw[1][1:] + rw[2] + rw[3]
            fl[2] += rw[4]
        if 'nodma' not in EXP:
            fl[DW] = fl[DW] + dma_w(st)
            if not (st & 1):
                fl[DX] = fl[DX] + dma_x()
        if 'nodots' in EXP:
            ops = []
        else:
            ops = unpack_ops([(fA[1][i] + r, 'c', i) for i in p1_tiles for r in range(4)] +
                             [(fS + r, 's', 0) for r in range(4)])
        fl = merge(fl, spread(ops, NS))
        emit_slots(mfmas(1), fl)
    b1, pend1 = autowait(body, pro_pending)
    b2, pend2 = autowait(body, pend1)
    assert b1 == b2, "loop waits not periodic"
    for x in b1:
        e(x)
    e(f"s_sub_u32 s{sCNT}, s{sCNT}, 1")
    e(f"s_cmp_lg_u32 s{sCNT}, 0")
    e(f"s_cbranch_scc1 {loop}")

    e.c("epilogue: reduce stats / colsum through LDS")
    stamp(e, 3)
    e("s_nop 3")
    e(f"v_add_f32 v{vS1[0]}, v{vS1[0]}, v{vS1[1]}")
    e(f"v_add_f32 v{vS1[1]}, v{vS2[0]}, v{vS2[1]}")
    assert vS1[1] == vS1[0] + 1 and vS1[0] % 2 == 0
    e(f"v_and_b32 v{t[0]}, 15, v{L}")
    e(f"v_lshlrev_b32 v{t[0]}, 5, v{t[0]}")
    e(f"v_lshrrev_b32 v{t[1]}, 4, v{L}")
    e(f"v_lshl_add_u32 v{t[0]}, v{t[1]}, 3, v{t[0]}")
    e(f"s_lshl_b32 s4, s{sW}, 9")
    e(f"s_add_u32 s4, s4, {ST}")
    e(f"v_add_u32 v{t[0]}, s4, v{t[0]}")
    e(f"ds_write_b64 v{t[0]}, v[{vS1[0]}:{vS1[1]}]")
    e(f"v_and_b32 v{t[1]}, 31, v{L}")
    e(f"v_lshlrev_b32 v{t[1]}, 4, v{t[1]}")
    e(f"v_lshrrev_b32 v{t[2]}, 5, v{L}")
    e(f"v_lshl_add_u32 v{t[1]}, v{t[2]}, 2, v{t[1]}")
    e(f"s_mul_i32 s4, s{sB}, {NT*512}")
    e(f"s_and_b32 s5, s{sA}, 1")
    e(f"s_lshl_b32 s5, s5, 3")
    e(f"s_add_u32 s4, s4, s5")
    e(f"s_add_u32 s4, s4, {CSP}")
    e(f"v_add_u32 v{t[1]}, s4, v{t[1]}")
    for i in range(NT):
        e(f"v_add_f32 v{vCS[i][0]}, v{vCS[i][0]}, v{vCS[i][1]}")
        e(f"ds_write_b32 v{t[1]}, v{vCS[i][0]} offset:{512*i}")
    e("s_waitcnt lgkmcnt(0)")
    e("s_barrier")
    lred, lrd = e.newlab("k1red"), e.newlab("k1rd")
    q4 = fA[0][0]
    e(f"s_cmp_ge_u32 s{sW}, 6")
    e(f"s_cbranch_scc1 {lred}")
    e(f"v_lshlrev_b32 v{t[0]}, 4, v0")
    e(f"v_add_u32 v{t[0]}, {CSP}, v{t[0]}")
    e(f"ds_read_b128 v[{q4}:{q4+3}], v{t[0]}")
    e(f"v_lshlrev_b32 v{t[1]}, 2, v0")
    e(f"v_add_u32 v{t[1]}, {CS}, v{t[1]}")
    e("s_waitcnt lgkmcnt(0)")
    e(f"v_add_f32 v{q4}, v{q4}, v{q4+1}")
    e(f"v_add_f32 v{q4+2}, v{q4+2}, v{q4+3}")
    e(f"v_add_f32 v{q4}, v{q4}, v{q4+2}")
    e(f"ds_write_b32 v{t[1]}, v{q4}")
    e(f"s_branch {lrd}")
    e.lab(lred)
    e(f"v_subrev_u32 v{t[1]}, 384, v0")
    e(f"v_lshlrev_b32 v{t[0]}, 5, v{t[1]}")
    e(f"v_add_u32 v{t[0]}, {ST}, v{t[0]}")
    e(f"ds_read_b128 v[{q4}:{q4+3}], v{t[0]}")
    e(f"ds_read_b128 v[{q4+4}:{q4+7}], v{t[0]} offset:16")
    e(f"v_lshlrev_b32 v{t[1]}, 2, v{t[1]}")
    e(f"v_add_u32 v{t[1]}, {RS}, v{t[1]}")
    e(f"s_mov_b32 s4, {hex(f2u(1.0/640))}")
    e(f"s_mov_b32 s5, {hex(f2u(1e-5))}")
    e("s_waitcnt lgkmcnt(0)")
    e(f"v_add_f32 v{q4}, v{q4}, v{q4+2}")
    e(f"v_add_f32 v{q4+1}, v{q4+1}, v{q4+3}")
    e(f"v_add_f32 v{q4+4}, v{q4+4}, v{q4+6}")
    e(f"v_add_f32 v{q4+5}, v{q4+5}, v{q4+7}")
    e(f"v_add_f32 v{q4}, v{q4}, v{q4+4}")
    e(f"v_add_f32 v{q4+1}, v{q4+1}, v{q4+5}")
    e(f"v_mul_f32 v{q4}, s4, v{q4}")
    e(f"v_mul_f32 v{q4+1}, s4, v{q4+1}")
    e(f"v_fma_f32 v{q4+1}, -v{q4}, v{q4}, v{q4+1}")
    e(f"v_max_f32 v{q4+1}, 0, v{q4+1}")
    e(f"v_add_f32 v{q4+1}, s5, v{q4+1}")
    e(f"v_rsq_f32 v{q4+1}, v{q4+1}")
    e(f"v_sub_f32 v{q4}, 0, v{q4}")
    e(f"ds_write_b32 v{t[1]}, v{q4+1}")
    e(f"ds_write_b32 v{t[1]}, v{q4} offset:{NM-RS}")
    e.lab(lrd)
    e("s_waitcnt lgkmcnt(0)")
    e("s_barrier")
    stamp(e, 4)
    e(f"v_and_b32 v{t[0]}, 31, v{L}")
    e(f"s_lshl_b32 s4, s{sA}, {6 if ffn else 5}")
    e(f"v_add_u32 v{t[0]}, s4, v{t[0]}")
    e(f"v_lshlrev_b32 v{t[0]}, 2, v{t[0]}")
    e(f"v_add_u32 v{t[0]}, {RS}, v{t[0]}")
    vNM = [R.a() for _ in range(NU)]
    vRS = [R.a() for _ in range(NU)]
    if cls != "v":
        for u in range(NU):
            e(f"ds_read_b32 v{vNM[u]}, v{t[0]} offset:{128*u+NM-RS}")
            e(f"ds_read_b32 v{vRS[u]}, v{t[0]} offset:{128*u}")
    e(f"v_and_b32 v{t[1]}, 31, v{L}")
    e(f"s_mul_i32 s4, s{sB}, {NT*32}")
    e(f"v_add_u32 v{t[1]}, s4, v{t[1]}")
    e(f"v_lshlrev_b32 v{t[1]}, 2, v{t[1]}")
    e(f"v_add_u32 v{t[1]}, {CS}, v{t[1]}")
    e("s_waitcnt lgkmcnt(0)")
    h = t[2]
    e(f"v_lshrrev_b32 v{h}, 5, v{L}")
    tmpc = fA[0][0]
    assert fA[0][0] % 4 == 0
    csa = t[3]
    e(f"s_mul_i32 s4, s{sB}, {NT*128}")
    e(f"v_lshlrev_b32 v{csa}, 4, v{h}")
    e(f"v_add_u32 v{csa}, s4, v{csa}")
    e(f"v_add_u32 v{csa}, {CS}, v{csa}")
    sc = store_sc
    if ffn:
        srd(e, SRDO, S_WS, ACT_OFF, ACT_SZ)
        e(f"s_lshl_b32 s4, s{sTB}, 3")
        e(f"s_lshl_b32 s5, s{sA}, 2")
        e(f"s_add_u32 s4, s4, s5")
        e(f"s_mul_i32 s4, s4, {ACT_ROW}")
        e(f"s_sub_u32 s5, s{sROLE}, 6")
        e(f"s_mul_i32 s5, s5, 12")
        e(f"s_mul_i32 s6, s{sB}, 3")
        e(f"s_add_u32 s5, s5, s6")
        e(f"s_lshl_b32 s5, s5, 9")
        e(f"s_add_u32 s4, s4, s5")
        e(f"v_bfe_u32 v{t[4]}, v{L}, 4, 1")
        e(f"v_mul_u32_u24 v{t[4]}, {ACT_ROW}, v{t[4]}")
        e(f"v_lshl_add_u32 v{t[4]}, v{h}, 8, v{t[4]}")
        e(f"v_and_b32 v{t[5]}, 15, v{L}")
        e(f"v_lshl_add_u32 v{t[4]}, v{t[5]}, 4, v{t[4]}")
        e(f"v_add_u32 v{t[4]}, s4, v{t[4]}")
        e(f"s_mov_b32 s7, {2*ACT_ROW}")
        for u in range(NU):
            e(f"v_mul_f32 v{vRS[u]}, v{vRS[u]}, v{vRS[u]}")
        pk = fB[0][0]
        for i in range(3):
            for a in range(4):
                e(f"ds_read_b128 v[{tmpc+4*a}:{tmpc+4*a+3}], v{csa} offset:{128*i+32*a}")
            e("s_waitcnt lgkmcnt(0)")
            for u in range(2):
                c = acc[i][u]
                for r in range(16):
                    e(f"v_fmac_f32 v{c+r}, v{vNM[u]}, v{tmpc+r}")
                for r in range(8):
                    e(f"v_max_f32 v{c+r}, 0, v{c+r}")
                    e(f"v_mul_f32 v{c+8+r}, v{vRS[u]}, v{c+8+r}")
                for r in range(8):
                    e(f"v_mul_f32 v{c+r}, v{c+r}, v{c+8+r}")
                p_ = pk + 8 * ((2 * i + u) & 1)
                p_ = c + 8
                for r in range(4):
                    e(f"v_cvt_pk_bf16_f32 v{p_+r}, v{c+2*r}, v{c+2*r+1}")
                so = "0" if u == 0 else "s7"
                e(f"buffer_store_dwordx4 v[{p_}:{p_+3}], v{t[4]}, s[{SRDO}:{SRDO+3}], {so} offen offset:{512*i} {sc}")
    elif cls == "qk":
        e(f"s_mov_b32 s6, {hex(QB_OFF)}")
        e(f"s_cmp_ge_u32 s{sROLE}, 2")
        e(f"s_cselect_b32 s4, {hex(KB_OFF)}, s6")
        e(f"s_cselect_b32 s5, 1.0, {hex(f2u(20**-0.5*1.4426950408889634))}")
        srd(e, SRDO, S_WS, "s4", QK_SZ)
        e(f"v_mul_f32 v{vRS[0]}, s5, v{vRS[0]}")
        e(f"s_and_b32 s4, s{sROLE}, 1")
        e(f"s_lshl_b32 s4, s4, 3")
        e(f"s_lshl_b32 s5, s{sB}, 2")
        e(f"s_add_u32 s4, s4, s5")
        e(f"s_lshl_b32 s4, s4, 6")
        e(f"s_lshl_b32 s5, s{sTB}, 2")
        e(f"s_add_u32 s4, s4, s5")
        e(f"s_add_u32 s4, s4, s{sA}")
        e(f"s_mul_i32 s4, s4, 2560")
        e(f"v_lshlrev_b32 v{t[4]}, 4, v{L}")
        e(f"v_add_u32 v{t[4]}, s4, v{t[4]}")
        e(f"v_lshlrev_b32 v{t[5]}, 3, v{L}")
        e(f"v_add_u32 v{t[5]}, s4, v{t[5]}")
        e(f"v_add_u32 v{t[5]}, 2048, v{t[5]}")
        stg = R.a(40, 4)
        def dst(G):
            p, k = divmod(G, 5)
            base = stg + 10 * p if False else stg + 10 * p
            return {0: base, 1: base + 2, 2: base + 8, 3: base + 4, 4: base + 6}[k]
        done = set()
        for i in range(5):
            for a in range(4):
                e(f"ds_read_b128 v[{tmpc+4*a}:{tmpc+4*a+3}], v{csa} offset:{128*i+32*a}")
            e("s_waitcnt lgkmcnt(0)")
            c = acc[i][0]
            for r in range(16):
                e(f"v_fmac_f32 v{c+r}, v{vNM[0]}, v{tmpc+r}")
            for r in range(16):
                e(f"v_mul_f32 v{c+r}, v{vRS[0]}, v{c+r}")
            for a in range(4):
                G = 4 * i + a
                d = dst(G)
                e(f"v_cvt_pk_bf16_f32 v{d}, v{c+4*a}, v{c+4*a+1}")
                e(f"v_cvt_pk_bf16_f32 v{d+1}, v{c+4*a+2}, v{c+4*a+3}")
                done.add(G)
                p, k = divmod(G, 5)
                if k == 4:
                    base = stg + 10 * p
                    e(f"s_mov_b32 s7, {p*64*2560}")
                    e(f"buffer_store_dwordx4 v[{base}:{base+3}], v{t[4]}, s[{SRDO}:{SRDO+3}], s7 offen {sc}")
                    e(f"buffer_store_dwordx4 v[{base+4}:{base+7}], v{t[4]}, s[{SRDO}:{SRDO+3}], s7 offen offset:1024 {sc}")
                    e(f"buffer_store_dwordx2 v[{base+8}:{base+9}], v{t[5]}, s[{SRDO}:{SRDO+3}], s7 offen {sc}")
    else:
        srd(e, SRDO, S_WS, VB_OFF, VB_SZ)
        e(f"s_lshl_b32 s4, s{sA}, 7")
        e(f"v_lshlrev_b32 v{t[4]}, 4, v{h}")
        e(f"v_add_u32 v{t[4]}, s4, v{t[4]}")
        e(f"v_add_u32 v{t[4]}, {RS}, v{t[4]}")
        rsq = fA[0][0]
        nmq = rsq + 16
        assert fA[1][2] + 4 >= nmq + 16
        for a in range(4):
            e(f"ds_read_b128 v[{rsq+4*a}:{rsq+4*a+3}], v{t[4]} offset:{32*a}")
            e(f"ds_read_b128 v[{nmq+4*a}:{nmq+4*a+3}], v{t[4]} offset:{32*a+NM-RS}")
        csl = [R.a() for _ in range(5)]
        for i in range(5):
            e(f"ds_read_b32 v{csl[i]}, v{t[1]} offset:{128*i}")
        e(f"s_sub_u32 s4, s{sROLE}, 4")
        e(f"s_lshl_b32 s4, s4, 4")
        e(f"s_lshl_b32 s5, s{sB}, 3")
        e(f"s_add_u32 s4, s4, s5")
        e(f"s_lshl_b32 s4, s4, 6")
        e(f"s_lshl_b32 s5, s{sTB}, 2")
        e(f"s_add_u32 s4, s4, s5")
        e(f"s_add_u32 s4, s4, s{sA}")
        e(f"s_mul_i32 s4, s4, 1280")
        e(f"s_mov_b32 s5, 3277")
        e(f"s_mov_b32 s6, {64*1280}")
        va = [R.a() for _ in range(5)]
        for i in range(5):
            e(f"v_and_b32 v{t[5]}, 31, v{L}")
            e(f"v_add_u32 v{t[5]}, {32*i}, v{t[5]}")
            e(f"v_mul_lo_u32 v{t[6]}, v{t[5]}, s5")
            e(f"v_lshrrev_b32 v{t[6]}, 16, v{t[6]}")
            e(f"v_mul_u32_u24 v{t[7]}, 20, v{t[6]}")
            e(f"v_sub_u32 v{t[5]}, v{t[5]}, v{t[7]}")
            e(f"v_mul_lo_u32 v{t[6]}, v{t[6]}, s6")
            e(f"v_lshl_add_u32 v{t[6]}, v{t[5]}, 4, v{t[6]}")
            e(f"v_mul_u32_u24 v{t[7]}, 320, v{h}")
            e(f"v_add3_u32 v{va[i]}, v{t[6]}, v{t[7]}, s4")
        e("s_waitcnt lgkmcnt(0)")
        for i in range(5):
            c = acc[i][0]
            for r in range(16):
                e(f"v_fmac_f32 v{c+r}, v{nmq+r}, v{csl[i]}")
            for r in range(16):
                e(f"v_mul_f32 v{c+r}, v{rsq+r}, v{c+r}")
            for sidx in range(2):
                d = c + 8 * sidx
                for r in range(4):
                    e(f"v_cvt_pk_bf16_f32 v{d+r}, v{d+2*r}, v{d+2*r+1}")
                e(f"buffer_store_dwordx4 v[{d}:{d+3}], v{va[i]}, s[{SRDO}:{SRDO+3}], 0 offen offset:{640*sidx} {sc}")
    stamp(e, 7)
    e("s_waitcnt vmcnt(0)")
    stamp(e, 5)
    stamp(e, 6, True)
    stamp_dump(e, 8, 0, sW, S_WS)
    e("s_endpgm")
    return R.hi


def f2u(x):
    import struct
    return struct.unpack("<I", struct.pack("<f", x))[0]


def helper(e, store_sc=""):
    R = Regs(2, 256, "v")
    t = [R.a() for _ in range(4)]
    vSrc, vRd, vDst = R.a(), R.a(), R.a()
    fr = [R.a(4, 4) for _ in range(5)]
    L = 1
    SRDA, SRDB = 8, 12
    sKS, sSO, sBUF, sNX = 24, 25, 26, 28
    e.lab("k1_helper")
    srd(e, SRDA, S_DOWN, 0, WD_SZ)
    srd(e, SRDB, S_WO, 0, WO_SZ)
    srd(e, SRDO, S_WS, W3_OFF, W3_SZ)
    e(f"v_lshlrev_b32 v{vSrc}, 4, v{L}")
    e(f"v_lshrrev_b32 v{t[0]}, 5, v{L}")
    e(f"v_bfe_u32 v{t[1]}, v{L}, 4, 1")
    e(f"v_bfe_u32 v{t[2]}, v{L}, 2, 2")
    e(f"v_lshl_add_u32 v{t[2]}, v{t[1]}, 2, v{t[2]}")
    e(f"v_lshl_add_u32 v{t[2]}, v{t[0]}, 4, v{t[2]}")
    e(f"v_mul_u32_u24 v{t[2]}, 1280, v{t[2]}")
    e(f"v_and_b32 v{t[3]}, 3, v{L}")
    e(f"v_mul_u32_u24 v{t[3]}, 40, v{t[3]}")
    e(f"s_mul_i32 s4, s{sW}, 160")
    e(f"v_add3_u32 v{vRd}, v{t[2]}, v{t[3]}, s4")
    e(f"s_mul_i32 s4, s{sW}, {W3_CB}")
    e(f"v_add_u32 v{vDst}, s4, v{vSrc}")
    e(f"s_mov_b32 s{sKS}, s{sTB}")
    loop = "k1_h_loop"
    e.lab(loop)
    lo, l2, lgo = "k1_h_o", "k1_h_x", "k1_h_go"
    e(f"s_mul_i32 m0, s{sW}, 5120")
    e(f"s_cmp_ge_u32 s{sKS}, 54")
    e(f"s_cbranch_scc1 {lo}")
    e(f"s_lshl_b32 s4, s{sKS}, 5")
    e(f"s_lshl_b32 s5, s{sW}, 2")
    e(f"s_add_u32 s4, s4, s5")
    e(f"s_mul_i32 s{sSO}, s4, 1280")
    for i in range(4):
        e(f"buffer_load_dwordx4 v{vSrc}, s[{SRDA}:{SRDA+3}], s{sSO} offen offset:{1024*i} lds")
    e(f"s_add_u32 s{sSO}, s{sSO}, 4096")
    e(f"s_add_u32 m0, m0, 4096")
    e("s_nop 0")
    e(f"buffer_load_dwordx4 v{vSrc}, s[{SRDA}:{SRDA+3}], s{sSO} offen lds")
    e(f"s_branch {lgo}")
    e.lab(lo)
    e(f"s_cmp_ge_u32 s{sKS}, 70")
    e(f"s_cbranch_scc1 {l2}")
    e(f"s_sub_u32 s4, s{sKS}, 54")
    e(f"s_mul_i32 s4, s4, 40")
    e(f"s_lshr_b32 s5, s{sW}, 2")
    e(f"s_mul_i32 s5, s5, 20")
    e(f"s_add_u32 s4, s4, s5")
    e(f"s_and_b32 s5, s{sW}, 3")
    e(f"s_lshl_b32 s5, s5, 2")
    e(f"s_add_u32 s4, s4, s5")
    e("s_branch k1_h_wo")
    e.lab(l2)
    e(f"s_sub_u32 s4, s{sKS}, 70")
    e(f"s_lshl_b32 s4, s4, 3")
    e(f"s_lshr_b32 s5, s{sW}, 2")
    e(f"s_lshl_b32 s5, s5, 2")
    e(f"s_add_u32 s4, s4, s5")
    e(f"s_and_b32 s5, s{sW}, 1")
    e(f"s_lshl_b32 s5, s5, 1")
    e(f"s_add_u32 s4, s4, s5")
    e(f"s_bfe_u32 s5, s{sW}, 0x10001")
    e(f"s_add_u32 s4, s4, s5")
    e(f"s_mul_i32 s4, s4, 20")
    e(f"s_add_u32 s4, s4, 16")
    e.lab("k1_h_wo")
    e(f"s_mul_i32 s{sSO}, s4, 1280")
    for i in range(4):
        e(f"buffer_load_dwordx4 v{vSrc}, s[{SRDB}:{SRDB+3}], s{sSO} offen offset:{1024*i} lds")
    e(f"s_add_u32 s{sSO}, s{sSO}, 4096")
    e(f"s_add_u32 m0, m0, 4096")
    e("s_nop 0")
    e(f"buffer_load_dwordx4 v{vSrc}, s[{SRDB}:{SRDB+3}], s{sSO} offen lds")
    e.lab(lgo)
    e("s_waitcnt vmcnt(0)")
    e("s_barrier")
    for c5 in range(5):
        e(f"ds_read_b64_tr_b16 v[{fr[c5]}:{fr[c5]+1}], v{vRd} offset:{8*c5}")
        e(f"ds_read_b64_tr_b16 v[{fr[c5]+2}:{fr[c5]+3}], v{vRd} offset:{8*c5+8*1280}")
    e(f"s_mul_i32 s4, s{sKS}, 5120")
    e("s_waitcnt lgkmcnt(0)")
    e("s_barrier")
    for c5 in range(4):
        e(f"buffer_store_dwordx4 v[{fr[c5]}:{fr[c5]+3}], v{vDst}, s[{SRDO}:{SRDO+3}], s4 offen offset:{1024*c5} {store_sc}")
    e(f"s_add_u32 s4, s4, 4096")
    e(f"buffer_store_dwordx4 v[{fr[4]}:{fr[4]+3}], v{vDst}, s[{SRDO}:{SRDO+3}], s4 offen {store_sc}")
    e(f"s_add_u32 s{sKS}, s{sKS}, 16")
    e(f"s_cmp_lt_u32 s{sKS}, 74")
    e("s_waitcnt vmcnt(0)")
    e(f"s_cbranch_scc1 {loop}")
    stamp(e, 5)
    stamp(e, 6, True)
    stamp_dump(e, 8, 0, sW, S_WS)
    e("s_endpgm")


def gen_k1(e, name):
    e.l.append(kernel_header(name))
    k1_prologue(e)
    hi = 0
    hi = max(hi, gemm(e, "qk"))
    hi = max(hi, gemm(e, "v"))
    hi = max(hi, gemm(e, "ffn"))
    helper(e)
    e.lab("k1_exit")
    e("s_endpgm")
    return hi
```

```python
from common import *
from k1 import load_ptrs, S_WS, f2u

TILE_B = 6656
K2_LDS = 12 * TILE_B
NEG = -1.0e30


def gen_k2(e, name, store_sc=""):
    e.l.append(kernel_header(name))
    sP, sQB, sW, sHD, sTQ, sLT, sN = 20, 21, 22, 23, 24, 25, 26
    SRDS, SRDQ, SRDO = 8, 12, 16
    R = Regs(2, 256, "v")
    t = [R.a() for _ in range(8)]
    L = 1
    e("s_cmp_ge_u32 s2, 256")
    e("s_cbranch_scc1 k2_exit")
    load_ptrs(e)
    e("v_and_b32 v1, 63, v0")
    e("v_lshrrev_b32 v2, 6, v0")
    e("s_and_b32 s3, s2, 7")
    e("s_lshr_b32 s4, s2, 3")
    e(f"v_readfirstlane_b32 s{sW}, v2")
    e("s_lshl_b32 s3, s3, 1")
    e("s_lshr_b32 s5, s4, 4")
    e(f"s_add_u32 s{sP}, s3, s5")
    e(f"s_and_b32 s{sQB}, s4, 15")
    e(f"s_lshr_b32 s{sHD}, s{sW}, 2")
    e(f"s_and_b32 s4, s{sW}, 3")
    e(f"s_lshl_b32 s{sTQ}, s{sQB}, 2")
    e(f"s_add_u32 s{sTQ}, s{sTQ}, s4")
    e("s_waitcnt lgkmcnt(0)")
    stamp(e, 0, True)
    stamp(e, 1)
    vQ = R.a(4, 4)
    vQx = R.a(2, 2)
    srd(e, SRDQ, S_WS, QB_OFF, QK_SZ)
    e(f"s_lshl_b32 s4, s{sP}, 6")
    e(f"s_add_u32 s4, s4, s{sTQ}")
    e(f"s_mul_i32 s4, s4, 2560")
    e(f"s_lshl_b32 s5, s{sHD}, 10")
    e(f"s_add_u32 s5, s5, s4")
    e(f"s_add_u32 s6, s4, 2048")
    e(f"v_lshlrev_b32 v{t[0]}, 4, v{L}")
    e(f"v_lshlrev_b32 v{t[1]}, 3, v{L}")
    e(f"buffer_load_dwordx4 v[{vQ}:{vQ+3}], v{t[0]}, s[{SRDQ}:{SRDQ+3}], s5 offen")
    e(f"buffer_load_dwordx2 v[{vQx}:{vQx+1}], v{t[1]}, s[{SRDQ}:{SRDQ+3}], s6 offen")
    sLT0, sSO, sSTR, sM = 27, 28, 29, 30
    e(f"s_lshl_b32 s4, s{sQB}, 2")
    e(f"s_sub_u32 s5, 8, s4")
    e(f"s_cmp_ge_u32 s4, 8")
    e(f"s_cselect_b32 s{sLT0}, 0, s5")
    e(f"s_add_u32 s5, s4, s{sLT0}")
    e(f"s_sub_u32 s5, s5, 8")
    e(f"s_cmp_eq_u32 s{sW}, 7")
    e("s_cbranch_scc1 k2_nodma")
    e(f"s_cmp_ge_u32 s{sW}, 3")
    e("s_cbranch_scc1 k2_vdma")
    e(f"s_mul_i32 s6, s{sP}, {64*2560}")
    e(f"s_add_u32 s6, s6, {hex(KB_OFF)}")
    srd(e, SRDS, S_WS, "s6", 64 * 2560)
    e(f"s_mov_b32 s{sSTR}, 2560")
    e(f"s_lshl_b32 s6, s{sW}, 10")
    e(f"v_add_u32 v{t[2]}, s6, v{t[0]}")
    e(f"s_mov_b32 s{sM}, s6")
    e(f"s_cmp_eq_u32 s{sW}, 2")
    e("s_cbranch_scc0 k2_dmago")
    e("s_mov_b32 exec_hi, 0")
    e("s_branch k2_dmago")
    e.lab("k2_vdma")
    e(f"s_sub_u32 s6, s{sW}, 3")
    e(f"s_lshr_b32 s7, s6, 1")
    e(f"s_lshl_b32 s31, s{sP}, 1")
    e(f"s_add_u32 s7, s7, s31")
    e(f"s_mul_i32 s7, s7, {64*1280}")
    e(f"s_add_u32 s7, s7, {hex(VB_OFF)}")
    srd(e, SRDS, S_WS, "s7", 64 * 1280)
    e(f"s_mov_b32 s{sSTR}, 1280")
    e(f"s_lshl_b32 s{sM}, s6, 10")
    e(f"s_add_u32 s{sM}, s{sM}, 2560")
    e(f"s_and_b32 s6, s6, 1")
    e(f"s_mul_i32 s6, s6, 640")
    e(f"v_lshrrev_b32 v{t[2]}, 5, v{L}")
    e(f"v_mul_u32_u24 v{t[2]}, 320, v{t[2]}")
    e(f"v_and_b32 v{t[3]}, 31, v{L}")
    e(f"v_lshl_add_u32 v{t[2]}, v{t[3]}, 4, v{t[2]}")
    e(f"v_add_u32 v{t[2]}, s6, v{t[2]}")
    e("s_mov_b32 exec_lo, 0x000fffff")
    e("s_mov_b32 exec_hi, 0x000fffff")
    e.lab("k2_dmago")
    e(f"s_mul_i32 s{sSO}, s5, s{sSTR}")
    e(f"s_mul_i32 s6, s{sLT0}, {TILE_B}")
    e(f"s_add_u32 s{sM}, s{sM}, s6")
    e(f"s_mov_b32 s{sLT}, s{sLT0}")
    e.lab("k2_dmaloop")
    e(f"s_mov_b32 m0, s{sM}")
    e(f"s_add_u32 s{sM}, s{sM}, {TILE_B}")
    e(f"buffer_load_dwordx4 v{t[2]}, s[{SRDS}:{SRDS+3}], s{sSO} offen lds")
    e(f"s_add_u32 s{sSO}, s{sSO}, s{sSTR}")
    e(f"s_add_u32 s{sLT}, s{sLT}, 1")
    e(f"s_cmp_lt_u32 s{sLT}, 12")
    e("s_cbranch_scc1 k2_dmaloop")
    e("s_mov_b64 exec, -1")
    e.lab("k2_nodma")
    e(f"v_lshrrev_b32 v{t[2]}, 3, v0")
    e(f"v_mul_u32_u24 v{t[2]}, {TILE_B}, v{t[2]}")
    e(f"v_and_b32 v{t[3]}, 7, v0")
    e(f"v_lshl_add_u32 v{t[2]}, v{t[3]}, 9, v{t[2]}")
    e(f"v_add_u32 v{t[2]}, {2560+320}, v{t[2]}")
    one4 = R.a(4, 4)
    for r in range(4):
        e(f"v_mov_b32 v{one4+r}, 0x3f803f80")
    e("v_cmp_gt_u32 vcc, 96, v0")
    e("s_and_saveexec_b64 s[4:5], vcc")
    e("s_cbranch_execz k2_noones")
    e(f"ds_write_b128 v{t[2]}, v[{one4}:{one4+3}]")
    e.lab("k2_noones")
    e("s_mov_b64 exec, -1")
    vMD = R.a(16, 4)
    vC = R.a(16, 4)
    vS = R.a(16, 4)
    vO = R.a(16, 4)
    vK = [R.a(4, 4) for _ in range(2)]
    vKx = [R.a(2, 2) for _ in range(2)]
    vV = [R.a(4, 4) for _ in range(2)]
    vP = R.a(8, 4)
    vM = R.a()
    vKA, vKX, vVA = R.a(), R.a(), R.a()
    e(f"v_and_b32 v{t[2]}, 31, v{L}")
    e(f"v_lshrrev_b32 v{t[3]}, 5, v{L}")
    e(f"v_lshlrev_b32 v{t[4]}, 2, v{t[3]}")
    e(f"v_sub_u32 v{t[2]}, v{t[2]}, v{t[4]}")
    e(f"v_mov_b32 v{t[5]}, {hex(f2u(NEG))}")
    for r in range(16):
        cr = (r & 3) + 8 * (r >> 2)
        e(f"v_cmp_le_i32 vcc, {cr}, v{t[2]}")
        e("s_nop 1")
        e(f"v_cndmask_b32 v{vMD+r}, v{t[5]}, 0, vcc") if False else e(f"v_cndmask_b32_e64 v{vMD+r}, v{t[5]}, 0, vcc")
    e(f"v_cmp_eq_u32 vcc, s{sHD}, v{t[3]}")
    e("s_waitcnt vmcnt(0) lgkmcnt(0)")
    e(f"v_cndmask_b32 v{vQx}, 0, v{vQx}, vcc")
    e(f"v_cndmask_b32 v{vQx+1}, 0, v{vQx+1}, vcc")
    e("s_barrier")
    stamp(e, 2)
    e(f"s_and_b32 s4, s{sW}, 3")
    e(f"s_add_u32 s4, s4, 8")
    e(f"s_mul_i32 s4, s4, {TILE_B}")
    e(f"s_lshl_b32 s5, s{sHD}, 10")
    e(f"s_add_u32 s5, s5, s4")
    e(f"v_add_u32 v{vKA}, s5, v{t[0]}")
    e(f"s_add_u32 s5, s4, 2048")
    e(f"v_add_u32 v{vKX}, s5, v{t[1]}")
    e(f"s_lshl_b32 s5, s{sHD}, 11")
    e(f"s_add_u32 s5, s5, s4")
    e(f"s_add_u32 s5, s5, 2560")
    e(f"v_add_u32 v{vVA}, s5, v{t[0]}")
    e(f"s_min_u32 s{sN}, s{sTQ}, 7")

    def rdK(b):
        e(f"ds_read_b128 v[{vK[b]}:{vK[b]+3}], v{t[6]}")
        e(f"ds_read_b64 v[{vKx[b]}:{vKx[b]+1}], v{t[7]}")

    def S(b, c):
        e(f"v_mfma_f32_32x32x16_bf16 v[{vS}:{vS+15}], v[{vK[b]}:{vK[b]+3}], v[{vQ}:{vQ+3}], {c}")
        e(f"v_mfma_f32_32x32x8_bf16 v[{vS}:{vS+15}], v[{vKx[b]}:{vKx[b]+1}], v[{vQx}:{vQx+1}], v[{vS}:{vS+15}]")

    def mx(first):
        e("s_nop 11")
        if first:
            e(f"v_max3_f32 v{vM}, v{vS}, v{vS+1}, v{vS+2}")
            e(f"v_max_f32 v{vM}, v{vM}, v{vS+3}")
            rng = range(4, 16, 2)
        else:
            rng = range(0, 16, 2)
        for r in rng:
            e(f"v_max3_f32 v{vM}, v{vM}, v{vS+r}, v{vS+r+1}")

    def step_addr():
        e(f"v_subrev_u32 v{t[6]}, {TILE_B}, v{t[6]}")
        e(f"v_subrev_u32 v{t[7]}, {TILE_B}, v{t[7]}")

    e.c("pass 1")
    e(f"v_mov_b32 v{t[6]}, v{vKA}")
    e(f"v_mov_b32 v{t[7]}, v{vKX}")
    rdK(0)
    e("s_waitcnt lgkmcnt(0)")
    S(0, f"v[{vMD}:{vMD+15}]")
    mx(True)
    e(f"s_mov_b32 s{sLT}, s{sN}")
    e("s_cmp_eq_u32 s%d, 0" % sLT)
    e("s_cbranch_scc1 k2_p1w")
    e.lab("k2_p1loop")
    step_addr()
    rdK(0)
    e("s_waitcnt lgkmcnt(0)")
    S(0, "0")
    mx(False)
    e(f"s_sub_u32 s{sLT}, s{sLT}, 1")
    e(f"s_cmp_lg_u32 s{sLT}, 0")
    e("s_cbranch_scc1 k2_p1loop")
    e.lab("k2_p1w")
    e(f"s_cmp_lt_u32 s{sTQ}, 8")
    e("s_cbranch_scc1 k2_p1done")
    step_addr()
    rdK(0)
    for r in range(16):
        e(f"v_sub_f32 v{vC+r}, v{t[5]}, v{vMD+r}")
    e("s_waitcnt lgkmcnt(0)")
    S(0, f"v[{vC}:{vC+15}]")
    mx(False)
    e.lab("k2_p1done")
    stamp(e, 3)
    e(f"v_mov_b32 v{t[2]}, v{vM}")
    e("s_nop 1")
    e(f"v_permlane32_swap_b32 v{t[2]}, v{vM}")
    e("s_nop 1")
    e(f"v_max_f32 v{vM}, v{vM}, v{t[2]}")
    e.c("pass 2")
    for r in range(16):
        e(f"v_mov_b32 v{vO+r}, 0")

    def rdV():
        e(f"ds_read_b128 v[{vV[0]}:{vV[0]+3}], v{t[4]}")
        e(f"ds_read_b128 v[{vV[1]}:{vV[1]+3}], v{t[4]} offset:1024")

    def PV():
        e("s_nop 11")
        for r in range(16):
            e(f"v_exp_f32 v{vS+r}, v{vS+r}")
        e("s_nop 0")
        for r in range(8):
            e(f"v_cvt_pk_bf16_f32 v{vP+r}, v{vS+2*r}, v{vS+2*r+1}")
        e("s_nop 1")
        e(f"v_mfma_f32_32x32x16_bf16 v[{vO}:{vO+15}], v[{vV[0]}:{vV[0]+3}], v[{vP}:{vP+3}], v[{vO}:{vO+15}]")
        e(f"v_mfma_f32_32x32x16_bf16 v[{vO}:{vO+15}], v[{vV[1]}:{vV[1]+3}], v[{vP+4}:{vP+7}], v[{vO}:{vO+15}]")

    e(f"v_mov_b32 v{t[6]}, v{vKA}")
    e(f"v_mov_b32 v{t[7]}, v{vKX}")
    e(f"v_mov_b32 v{t[4]}, v{vVA}")
    rdK(0)
    rdV()
    for r in range(16):
        e(f"v_sub_f32 v{vC+r}, v{vMD+r}, v{vM}")
    e("s_waitcnt lgkmcnt(0)")
    S(0, f"v[{vC}:{vC+15}]")
    PV()
    for r in range(16):
        e(f"v_sub_f32 v{vC+r}, 0, v{vM}")
    e(f"s_mov_b32 s{sLT}, s{sN}")
    e("s_cmp_eq_u32 s%d, 0" % sLT)
    e("s_cbranch_scc1 k2_p2w")
    e.lab("k2_p2loop")
    step_addr()
    e(f"v_subrev_u32 v{t[4]}, {TILE_B}, v{t[4]}")
    rdK(0)
    rdV()
    e("s_waitcnt lgkmcnt(0)")
    S(0, f"v[{vC}:{vC+15}]")
    PV()
    e(f"s_sub_u32 s{sLT}, s{sLT}, 1")
    e(f"s_cmp_lg_u32 s{sLT}, 0")
    e("s_cbranch_scc1 k2_p2loop")
    e.lab("k2_p2w")
    e(f"s_cmp_lt_u32 s{sTQ}, 8")
    e("s_cbranch_scc1 k2_p2done")
    step_addr()
    e(f"v_subrev_u32 v{t[4]}, {TILE_B}, v{t[4]}")
    rdK(0)
    rdV()
    e("s_nop 7")
    for r in range(16):
        e(f"v_sub_f32 v{vC+r}, v{t[5]}, v{vMD+r}")
        e(f"v_sub_f32 v{vC+r}, v{vC+r}, v{vM}")
    e("s_waitcnt lgkmcnt(0)")
    S(0, f"v[{vC}:{vC+15}]")
    PV()
    e.lab("k2_p2done")
    stamp(e, 4)
    e("s_nop 11")
    e(f"v_mov_b32 v{t[2]}, v{vO+8}")
    e(f"v_mov_b32 v{t[3]}, v{vO+8}")
    e("s_nop 1")
    e(f"v_permlane32_swap_b32 v{t[2]}, v{t[3]}")
    e("s_nop 1")
    e(f"v_rcp_f32 v{t[3]}, v{t[3]}")
    e("s_nop 0")
    for r in range(12):
        e(f"v_mul_f32 v{vO+r}, v{t[3]}, v{vO+r}")
    for r in range(6):
        e(f"v_cvt_pk_bf16_f32 v{vP+r}, v{vO+2*r}, v{vO+2*r+1}")
    srd(e, SRDO, S_WS, ACT_OFF, ACT_SZ)
    e(f"s_lshl_b32 s4, s{sTQ}, 1")
    e(f"s_mul_i32 s4, s4, {ACT_ROW}")
    e(f"v_bfe_u32 v{t[2]}, v{L}, 4, 1")
    e(f"v_mul_u32_u24 v{t[2]}, {ACT_ROW}, v{t[2]}")
    e(f"v_and_b32 v{t[3]}, 15, v{L}")
    e(f"v_lshl_add_u32 v{t[2]}, v{t[3]}, 4, v{t[2]}")
    e(f"v_add_u32 v{t[2]}, s4, v{t[2]}")
    e(f"v_lshrrev_b32 v{t[3]}, 5, v{L}")
    e(f"v_lshl_add_u32 v{t[3]}, v{t[3]}, 8, v{t[2]}")
    e(f"s_add_u32 s5, s{sP}, 54")
    e(f"s_lshl_b32 s5, s5, 10")
    e(f"s_lshl_b32 s6, s{sHD}, 9")
    e(f"s_add_u32 s5, s5, s6")
    e(f"buffer_store_dwordx4 v[{vP}:{vP+3}], v{t[3]}, s[{SRDO}:{SRDO+3}], s5 offen {store_sc}")
    e(f"s_lshr_b32 s5, s{sP}, 2")
    e(f"s_add_u32 s5, s5, 70")
    e(f"s_lshl_b32 s5, s5, 10")
    e(f"s_and_b32 s6, s{sP}, 3")
    e(f"s_lshl_b32 s6, s6, 8")
    e(f"s_add_u32 s5, s5, s6")
    e(f"s_lshl_b32 s6, s{sHD}, 3")
    e(f"s_add_u32 s5, s5, s6")
    e("s_mov_b32 exec_hi, 0")
    e(f"buffer_store_dwordx2 v[{vP+4}:{vP+5}], v{t[2]}, s[{SRDO}:{SRDO+3}], s5 offen {store_sc}")
    e("s_mov_b32 exec_hi, -1")
    stamp(e, 7)
    e("s_waitcnt vmcnt(0)")
    stamp(e, 5)
    stamp(e, 6, True)
    stamp_dump(e, 8, 1, sW, S_WS)
    e.lab("k2_exit")
    e("s_endpgm")
    return R.hi
```

```python
from common import *
from k1 import load_ptrs, S_WS, S_XP, S_OUT

SLOT = 40960
K3_LDS = 3 * SLOT


def gen_k3(e, name):
    e.l.append(kernel_header(name))
    sTB, sCB, sW, sU, sPAR = 20, 21, 22, 23, 24
    SRDA, SRDW, SRDX, SRDO = 8, 12, 16, 28
    R = Regs(2, 256, "v")
    t = [R.a() for _ in range(6)]
    L = 1
    e("s_cmp_ge_u32 s2, 256")
    e("s_cbranch_scc1 k3_exit")
    load_ptrs(e)
    e("v_and_b32 v1, 63, v0")
    e("v_lshrrev_b32 v2, 6, v0")
    e("s_and_b32 s3, s2, 7")
    e("s_lshr_b32 s4, s2, 3")
    e(f"v_readfirstlane_b32 s{sW}, v2")
    e("s_lshr_b32 s5, s3, 1")
    e("s_lshl_b32 s5, s5, 3")
    e("s_and_b32 s6, s4, 7")
    e(f"s_add_u32 s{sTB}, s5, s6")
    e("s_and_b32 s5, s3, 1")
    e("s_lshl_b32 s5, s5, 2")
    e("s_lshr_b32 s6, s4, 3")
    e(f"s_add_u32 s{sCB}, s5, s6")
    e(f"s_and_b32 s{sU}, s{sW}, 3")
    e(f"s_lshr_b32 s{sPAR}, s{sW}, 2")
    e("s_waitcnt lgkmcnt(0)")
    stamp(e, 0, True)
    stamp(e, 1)
    e(f"s_lshl_b32 s4, s{sTB}, 2")
    e(f"s_add_u32 s4, s4, s{sU}")
    e(f"s_mul_i32 s4, s4, {ACT_ROW}")
    if ACT_OFF:
        e(f"s_add_u32 s4, s4, {hex(ACT_OFF)}")
    srd(e, SRDA, S_WS, "s4", ACT_ROW)
    e(f"s_mul_i32 s4, s{sCB}, {W3_CB}")
    e(f"s_add_u32 s4, s4, {hex(W3_OFF)}")
    srd(e, SRDW, S_WS, "s4", W3_CB)
    vL16 = R.a()
    e(f"v_lshlrev_b32 v{vL16}, 4, v{L}")
    fAct = [[R.a(4, 4) for m in range(4)] for b in range(3)]
    fW = [[R.a(4, 4) for c in range(5)] for b in range(2)]
    acc = [R.a(4, 4) for c in range(5)]
    xres = R.a(12, 4)
    vRd = R.a()
    sWso, sAso, sM = 25, 26, 27
    e(f"s_mul_i32 s{sWso}, s{sW}, 5120")
    e(f"s_mul_i32 s{sM}, s{sW}, 5120")
    e(f"s_lshl_b32 s{sAso}, s{sPAR}, 10")

    def issue(c):
        b = c % 3
        e(f"s_add_u32 m0, s{sM}, {b*SLOT}")
        e(f"s_add_u32 s4, s{sWso}, 4096")
        for i in range(4):
            e(f"buffer_load_dwordx4 v{vL16}, s[{SRDW}:{SRDW+3}], s{sWso} offen offset:{1024*i} lds")
        e(f"s_add_u32 m0, s{sM}, {b*SLOT+4096}")
        e(f"s_add_u32 s{sWso}, s{sWso}, {8*5120}")
        e(f"buffer_load_dwordx4 v{vL16}, s[{SRDW}:{SRDW+3}], s4 offen lds")
        for m in range(4):
            off = 2048 * m
            if off < 4096:
                e(f"buffer_load_dwordx4 v[{fAct[b][m]}:{fAct[b][m]+3}], v{vL16}, s[{SRDA}:{SRDA+3}], s{sAso} offen offset:{off}")
            else:
                if m == 2:
                    e(f"s_add_u32 s5, s{sAso}, 4096")
                e(f"buffer_load_dwordx4 v[{fAct[b][m]}:{fAct[b][m]+3}], v{vL16}, s[{SRDA}:{SRDA+3}], s5 offen offset:{off-4096}")
        e(f"s_add_u32 s{sAso}, s{sAso}, 8192")

    issue(0)
    issue(1)
    srd(e, SRDX, S_XP, 0, X_SZ)
    srd(e, SRDO, S_OUT, 0, X_SZ)
    vOA = R.a()
    e(f"s_lshl_b32 s4, s{sTB}, 6")
    e(f"s_lshl_b32 s5, s{sU}, 4")
    e(f"s_add_u32 s4, s4, s5")
    e(f"s_mul_i32 s4, s4, 1280")
    e(f"s_mul_i32 s5, s{sCB}, 160")
    e(f"s_add_u32 s4, s4, s5")
    e(f"v_and_b32 v{t[0]}, 15, v{L}")
    e(f"v_mul_u32_u24 v{t[0]}, 1280, v{t[0]}")
    e(f"v_lshrrev_b32 v{t[1]}, 4, v{L}")
    e(f"v_mul_u32_u24 v{t[1]}, 40, v{t[1]}")
    e(f"v_add3_u32 v{vOA}, v{t[0]}, v{t[1]}, s4")
    e(f"s_mul_i32 s4, s{sPAR}, 5120")
    e(f"v_add_u32 v{vRd}, s4, v{vL16}")
    vRd2 = R.a()
    e(f"v_add_u32 v{vRd2}, {SLOT}, v{vRd}")
    vRd3 = R.a()
    e(f"v_add_u32 v{vRd3}, {2*SLOT}, v{vRd}")
    rdb = [vRd, vRd2, vRd3]
    for c in range(5):
        for r in range(4):
            e(f"v_mov_b32 v{acc[c]+r}, 0")
    NCH = 10
    for c in range(NCH):
        b = c % 3
        e.c(f"chunk {c}")
        e(f"s_waitcnt vmcnt({9 if c < NCH-1 else 0}) lgkmcnt(0)")
        e("s_barrier")
        if c == 0: stamp(e, 2)
        if c == 5: stamp(e, 4)
        if c + 2 < NCH:
            issue(c + 2)
        if c == NCH - 2:
            pass
        nm = 4 if c < NCH - 1 else 1
        for c5 in range(5):
            e(f"ds_read_b128 v[{fW[0][c5]}:{fW[0][c5]+3}], v{rdb[b]} offset:{1024*c5}")
        for m in range(nm):
            if m + 1 < nm:
                for c5 in range(5):
                    e(f"ds_read_b128 v[{fW[(m+1)&1][c5]}:{fW[(m+1)&1][c5]+3}], v{rdb[b]} offset:{10240*(m+1)+1024*c5}")
                e("s_waitcnt lgkmcnt(5)")
            else:
                e("s_waitcnt lgkmcnt(0)")
            for c5 in range(5):
                w_, a_ = fW[m & 1][c5], fAct[b][m]
                e(f"v_mfma_f32_16x16x32_bf16 v[{acc[c5]}:{acc[c5]+3}], v[{w_}:{w_+3}], v[{a_}:{a_+3}], v[{acc[c5]}:{acc[c5]+3}]")
    stamp(e, 3)
    e(f"buffer_load_dwordx4 v[{xres}:{xres+3}], v{vOA}, s[{SRDX}:{SRDX+3}], 0 offen")
    e(f"buffer_load_dwordx4 v[{xres+4}:{xres+7}], v{vOA}, s[{SRDX}:{SRDX+3}], 0 offen offset:16")
    e(f"buffer_load_dwordx2 v[{xres+8}:{xres+9}], v{vOA}, s[{SRDX}:{SRDX+3}], 0 offen offset:32")
    e("s_barrier")
    e(f"s_mul_i32 s4, s{sU}, 5120")
    e(f"v_add_u32 v{t[0]}, s4, v{vL16}")
    e(f"s_cmp_eq_u32 s{sPAR}, 0")
    e("s_cbranch_scc1 k3_lo")
    e("s_nop 7")
    for c5 in range(5):
        e(f"ds_write_b128 v{t[0]}, v[{acc[c5]}:{acc[c5]+3}] offset:{1024*c5}")
    e("s_waitcnt lgkmcnt(0)")
    e("s_barrier")
    e("s_waitcnt vmcnt(0)")
    stamp(e, 7)
    stamp(e, 5)
    stamp(e, 6, True)
    stamp_dump(e, 8, 2, sW, S_WS)
    e("s_endpgm")
    e.lab("k3_lo")
    e("s_barrier")
    for c5 in range(5):
        e(f"ds_read_b128 v[{fW[0][c5]}:{fW[0][c5]+3}], v{t[0]} offset:{1024*c5}")
    e("s_waitcnt vmcnt(0) lgkmcnt(0)")
    pk = fW[1][0]
    for c5 in range(5):
        for r in range(4):
            e(f"v_add_f32 v{acc[c5]+r}, v{acc[c5]+r}, v{fW[0][c5]+r}")
        for hh in range(2):
            xr = xres + 2 * c5 + hh
            e(f"v_lshlrev_b32 v{t[1]}, 16, v{xr}")
            e(f"v_and_b32 v{t[2]}, 0xffff0000, v{xr}")
            e(f"v_add_f32 v{acc[c5]+2*hh}, v{acc[c5]+2*hh}, v{t[1]}")
            e(f"v_add_f32 v{acc[c5]+2*hh+1}, v{acc[c5]+2*hh+1}, v{t[2]}")
            e(f"v_cvt_pk_bf16_f32 v{pk+2*c5+hh}, v{acc[c5]+2*hh}, v{acc[c5]+2*hh+1}")
    e(f"buffer_store_dwordx4 v[{pk}:{pk+3}], v{vOA}, s[{SRDO}:{SRDO+3}], 0 offen")
    e(f"buffer_store_dwordx4 v[{pk+4}:{pk+7}], v{vOA}, s[{SRDO}:{SRDO+3}], 0 offen offset:16")
    e(f"buffer_store_dwordx2 v[{pk+8}:{pk+9}], v{vOA}, s[{SRDO}:{SRDO+3}], 0 offen offset:32")
    stamp(e, 7)
    e("s_waitcnt vmcnt(0)")
    stamp(e, 5)
    stamp(e, 6, True)
    stamp_dump(e, 8, 2, sW, S_WS)
    e.lab("k3_exit")
    e("s_endpgm")
    return R.hi
```

```python
from common import *
import struct

def f2u(x):
    return struct.unpack("<I", struct.pack("<f", x))[0]

R_RING = 5
XSLOT = 8192
XR = 122880
P1_LDS = XR + R_RING * XSLOT
CSL = 0
RSL = 1536
NML = 2048

CSG_OFF = 0x1800000
CSG_SZ = 16 * 384 * 8

S_XP, S_WQKV, S_WO, S_GATE, S_UP, S_DOWN, S_OUT, S_DBG, S_WS = 40, 42, 44, 48, 50, 52, 54, 56, 58
SRDX, SRDW, SRDO = 8, 12, 16
sTB, sROLE, sW, sCNT, sWso, sXso, sWM0, sXM0 = 20, 21, 22, 23, 24, 25, 27, 28
sNONCE = 29
sT0, sT1, sT2, sT3 = 32, 33, 34, 35
sA, sB = 36, 37
sMASK = 39
SRDC, SRDD = 72, 76
EXP = set()


def load_ptrs(e):
    e("s_load_dwordx16 s[40:55], s[0:1], 0")
    e("s_load_dwordx4 s[56:59], s[0:1], 64")


def prologue(e, pfx="k1"):
    e("s_cmp_ge_u32 s2, 256")
    e(f"s_cbranch_scc1 {pfx}_exit")
    load_ptrs(e)
    e("v_and_b32 v1, 63, v0")
    e("v_lshrrev_b32 v2, 6, v0")
    e("s_and_b32 s3, s2, 7")
    e("s_lshr_b32 s4, s2, 3")
    e(f"v_readfirstlane_b32 s{sW}, v2")
    e("s_and_b32 s5, s3, 1")
    e("s_lshl_b32 s5, s5, 3")
    e("s_and_b32 s6, s4, 7")
    e(f"s_add_u32 s{sTB}, s5, s6")
    e("s_lshr_b32 s5, s3, 1")
    e("s_lshl_b32 s5, s5, 2")
    e("s_lshr_b32 s6, s4, 3")
    e(f"s_add_u32 s{sROLE}, s5, s6")
    e(f"s_add_u32 s{sROLE}, s{sROLE}, 15")
    e(f"s_and_b32 s{sROLE}, s{sROLE}, 15")
    e(f"s_mov_b32 s{sMASK}, 0xffff0000")
    e(f"s_cmp_eq_u32 s{sROLE}, 15")
    e(f"s_cbranch_scc1 {pfx}_helper")
    e(f"s_cmp_ge_u32 s{sROLE}, 6")
    e(f"s_cbranch_scc1 {pfx}_ffn")
    e(f"s_cmp_ge_u32 s{sROLE}, 4")
    e(f"s_cbranch_scc1 {pfx}_v")
    e(f"s_branch {pfx}_qk")


def gemm(e, cls, store_sc="", finish=None, pfx="k1"):
    ffn = cls == "ffn"
    RR = R_RING
    NT = 3 if ffn else 5
    NU = 2 if ffn else 1
    WSLOT = 24576 if ffn else 20480
    WROW = 384 if ffn else 640
    GROW = 3456 if ffn else 3840
    NCS = 384 if ffn else 320
    R = Regs(2, 256, "v")
    t = [R.a() for _ in range(8)]
    vWs = [R.a() for _ in range(3)]
    vXs = R.a()
    nset = 2 if RR > 3 else 1
    NWB = 3 if ffn else 2
    vWA = [[R.a() for i in range(NWB)] for st in range(nset)]
    vXB = [R.a() for _ in range(2)]
    vSA = R.a()
    _p = R.a(2, 2)
    vS1, vS2 = [_p, _p + 1], [R.a(), R.a()]
    vU = [[R.a(), R.a()] for _ in range(2)]
    vG = R.a(2, 2)
    vN = R.a()
    vGA = R.a()
    fA = [[R.a(4, 4) for i in range(NT)] for b in range(2)]
    fB = [[R.a(4, 4) for u in range(NU)] for b in range(2)]
    fS = R.a(4, 4)
    acc = [[R.a(16, 4) for u in range(NU)] for i in range(NT)]
    L = 1

    e.lab(f"{pfx}_{cls}")
    e.c(f"---------------- setup {cls} ----------------")
    if ffn:
        e(f"s_and_b32 s{sA}, s{sW}, 1")
        e(f"s_lshr_b32 s{sB}, s{sW}, 1")
    else:
        e(f"s_and_b32 s{sA}, s{sW}, 3")
        e(f"s_lshr_b32 s{sB}, s{sW}, 2")
    if ffn:
        e(f"s_and_b32 s{sT0}, s{sW}, 3")
        e(f"s_lshr_b32 s{sT1}, s{sW}, 2")
        e(f"s_sub_u32 s{sT2}, s{sROLE}, 6")
        e(f"s_mul_i32 s{sT2}, s{sT2}, 384")
        e(f"s_mul_i32 s{sT3}, s{sT0}, {8*GROW}")
        e(f"s_add_u32 s{sT2}, s{sT2}, s{sT3}")
        e(f"s_lshl_b32 s{sT3}, s{sT1}, 2")
        e(f"s_mul_i32 s4, s{sT0}, 3072")
        e(f"s_mul_i32 s5, s{sT1}, 12288")
        e(f"s_add_u32 s{sWM0}, s4, s5")
        nper, magic = 24, 2731
        e(f"v_mov_b32 v{t[4]}, v{L}")
    else:
        e(f"s_mul_i32 s4, s{sW}, 3")
        e(f"s_lshl_b32 s5, s{sW}, 1")
        e(f"s_add_u32 s5, s5, 4")
        e(f"s_cmp_ge_u32 s{sW}, 4")
        e(f"s_cselect_b32 s4, s5, s4")
        e(f"s_lshl_b32 s{sWM0}, s4, 10")
        e(f"s_lshl_b32 s4, s4, 6")
        e(f"s_mul_i32 s{sT2}, s{sROLE}, 640")
        nper, magic = 40, 1639
        e(f"v_add_u32 v{t[4]}, s4, v{L}")
    e(f"s_mov_b32 s4, {magic}")
    e(f"s_mov_b32 s5, {GROW}")
    for i in range(3):
        e(f"v_add_u32 v{t[0]}, {64*i}, v{t[4]}")
        e(f"v_mul_lo_u32 v{t[1]}, v{t[0]}, s4")
        e(f"v_lshrrev_b32 v{t[1]}, 16, v{t[1]}")
        e(f"v_mul_u32_u24 v{t[2]}, {nper}, v{t[1]}")
        e(f"v_sub_u32 v{t[2]}, v{t[0]}, v{t[2]}")
        e(f"v_bfe_u32 v{t[3]}, v{t[1]}, 1, 1")
        if ffn:
            e(f"v_lshl_or_b32 v{t[3]}, v{t[3]}, 1, s{sT3}")
        else:
            e(f"v_lshlrev_b32 v{t[3]}, 2, v{t[3]}")
        e(f"v_xor_b32 v{t[2]}, v{t[2]}, v{t[3]}")
        e(f"v_mul_lo_u32 v{t[1]}, v{t[1]}, s5")
        e(f"v_lshl_add_u32 v{t[1]}, v{t[2]}, 4, v{t[1]}")
        e(f"v_add_u32 v{t[1]}, s{sT2}, v{t[1]}")
        e(f"v_subrev_u32 v{vWs[i]}, {1024*i}, v{t[1]}")
    e(f"s_lshl_b32 s4, s{sTB}, 7")
    e(f"s_lshl_b32 s5, s{sW}, 4")
    e(f"s_add_u32 s4, s4, s5")
    e(f"s_mul_i32 s4, s4, 1280")
    e(f"v_lshrrev_b32 v{t[0]}, 2, v{L}")
    e(f"v_bfe_u32 v{t[1]}, v{L}, 4, 2")
    e(f"v_and_b32 v{t[2]}, 3, v{L}")
    e(f"v_xor_b32 v{t[2]}, v{t[2]}, v{t[1]}")
    e(f"v_mul_u32_u24 v{t[0]}, 1280, v{t[0]}")
    e(f"v_lshl_add_u32 v{t[0]}, v{t[2]}, 4, v{t[0]}")
    e(f"v_add_u32 v{vXs}, s4, v{t[0]}")
    e(f"s_lshl_b32 s{sXM0}, s{sW}, 10")
    e(f"s_add_u32 s{sXM0}, s{sXM0}, {XR}")
    e(f"s_mov_b32 s{sWso}, 0")
    e(f"s_mov_b32 s{sXso}, 0")
    e("s_waitcnt lgkmcnt(0)")
    stamp(e, 0, True)
    stamp(e, 1)
    srd(e, SRDX, S_XP, 0, X_SZ)
    if ffn:
        e(f"s_cmp_ge_u32 s{sW}, 4")
        e(f"s_cselect_b32 s{SRDW}, s{S_UP}, s{S_GATE}")
        e(f"s_cselect_b32 s{SRDW+1}, s{S_UP+1}, s{S_GATE+1}")
        e(f"s_mov_b32 s{SRDW+2}, {hex(WG_SZ)}")
        e(f"s_mov_b32 s{SRDW+3}, 0x00020000")
    else:
        srd(e, SRDW, S_WQKV, 0, WQKV_SZ)

    def dma_group(slot, var):
        nw = 3 if (ffn or var == 0) else 2
        hot = 'hot' in EXP
        it = [[f"s_add_u32 m0, s{sXM0}, {slot*XSLOT}", "s_nop 0",
               f"buffer_load_dwordx4 v{vXs}, s[{SRDX}:{SRDX+3}], s{sXso} offen lds"]]
        it.append([f"s_add_u32 m0, s{sWM0}, {slot*WSLOT}", f"s_add_u32 s{sXso}, s{sXso}, {0 if hot else 64}",
                   f"buffer_load_dwordx4 v{vWs[0]}, s[{SRDW}:{SRDW+3}], s{sWso} offen lds"])
        for i in range(1, nw):
            it.append([f"buffer_load_dwordx4 v{vWs[i]}, s[{SRDW}:{SRDW+3}], s{sWso} offen offset:{1024*i} lds"])
        it[-1].append(f"s_add_u32 s{sWso}, s{sWso}, {0 if hot else 32*GROW}")
        return it

    def gsize(var):
        return 4 if (ffn or var == 0) else 3

    setup = []
    q = setup.append
    g, r4, c4, bb = t[0], t[1], t[2], t[3]
    q(f"v_lshrrev_b32 v{g}, 4, v{L}")
    q(f"v_bfe_u32 v{r4}, v{L}, 2, 2")
    q(f"v_and_b32 v{c4}, 3, v{L}")
    q(f"v_bfe_u32 v{bb}, v{L}, 3, 1")
    q(f"v_lshrrev_b32 v{t[4]}, 1, v{g}")
    q(f"v_lshl_add_u32 v{t[4]}, v{t[4]}, 3, v{r4}")
    q(f"v_mul_u32_u24 v{t[4]}, {WROW}, v{t[4]}")
    q(f"v_and_b32 v{t[5]}, 1, v{g}")
    if ffn:
        q(f"v_mul_u32_u24 v{t[6]}, 12288, v{t[5]}")
        q(f"v_add_u32 v{t[4]}, v{t[4]}, v{t[6]}")
        q(f"v_and_b32 v{t[6]}, 1, v{c4}")
        q(f"v_lshl_add_u32 v{t[4]}, v{t[6]}, 3, v{t[4]}")
        q(f"v_lshlrev_b32 v{t[5]}, 2, v{t[5]}")
        q(f"v_lshl_add_u32 v{t[5]}, v{bb}, 1, v{t[5]}")
        q(f"v_lshrrev_b32 v{t[6]}, 1, v{c4}")
        q(f"s_mul_i32 s4, s{sB}, 6")
        for i in range(3):
            q(f"v_add3_u32 v{t[7]}, v{t[6]}, s4, {2*i}")
            q(f"v_xor_b32 v{t[7]}, v{t[7]}, v{t[5]}")
            q(f"v_lshl_add_u32 v{vWA[0][i]}, v{t[7]}, 4, v{t[4]}")
            if nset > 1:
                q(f"v_add_u32 v{vWA[1][i]}, {3*WSLOT}, v{vWA[0][i]}")
    else:
        q(f"v_lshl_add_u32 v{t[4]}, v{t[5]}, 5, v{t[4]}")
        q(f"v_lshl_add_u32 v{t[4]}, v{c4}, 3, v{t[4]}")
        q(f"s_mul_i32 s4, s{sB}, 320")
        q(f"v_add_u32 v{t[4]}, s4, v{t[4]}")
        q(f"v_lshlrev_b32 v{t[5]}, 6, v{bb}")
        q(f"v_sub_u32 v{t[6]}, 0, v{t[5]}")
        q(f"s_cmp_eq_u32 s{sB}, 0")
        q(f"s_cselect_b64 vcc, -1, 0")
        q(f"v_cndmask_b32 v{t[7]}, v{t[6]}, v{t[5]}, vcc")
        q(f"v_add_u32 v{vWA[0][0]}, v{t[4]}, v{t[7]}")
        q(f"v_sub_u32 v{vWA[0][1]}, v{t[4]}, v{t[7]}")
        if nset > 1:
            q(f"v_add_u32 v{vWA[1][0]}, {3*WSLOT}, v{vWA[0][0]}")
            q(f"v_add_u32 v{vWA[1][1]}, {3*WSLOT}, v{vWA[0][1]}")
    q(f"v_and_b32 v{t[0]}, 31, v{L}")
    q(f"v_bfe_u32 v{t[1]}, v{L}, 2, 2")
    q(f"v_lshrrev_b32 v{t[2]}, 5, v{L}")
    q(f"s_lshl_b32 s5, s{sA}, {12 if ffn else 11}")
    q(f"s_add_u32 s5, s5, {XR}")
    q(f"v_lshlrev_b32 v{t[0]}, 6, v{t[0]}")
    q(f"v_add_u32 v{t[0]}, s5, v{t[0]}")
    q(f"v_xor_b32 v{t[3]}, v{t[2]}, v{t[1]}")
    q(f"v_lshl_add_u32 v{vXB[0]}, v{t[3]}, 4, v{t[0]}")
    q(f"v_xor_b32 v{vXB[1]}, 32, v{vXB[0]}")
    q(f"v_lshlrev_b32 v{t[0]}, 4, v{L}")
    q(f"v_add_u32 v{vSA}, s{sXM0}, v{t[0]}")
    q(f"v_min_u32 v{t[0]}, {NCS-1}, v0")
    q(f"v_lshlrev_b32 v{vGA}, 2, v{t[0]}")
    for x in vS1 + vS2:
        q(f"v_mov_b32 v{x}, 0")
    zero = [f"v_mov_b32 v{acc[i][u]+r}, 0" for i in range(NT) for u in range(NU) for r in range(16)]
    setup_all = setup + zero

    def reads_w(slot, p):
        out = []
        for i in range(NT):
            st_, sl = (1, slot - 3) if slot >= 3 else (0, slot)
            if ffn:
                base = vWA[st_][i]
                off = sl * WSLOT + p * 16 * WROW
            else:
                base = vWA[st_][i & 1]
                off = sl * WSLOT + p * 16 * WROW + 64 * i
            a = fA[p][i]
            out.append([f"ds_read_b64_tr_b16 v[{a}:{a+1}], v{base} offset:{off}",
                        f"ds_read_b64_tr_b16 v[{a+2}:{a+3}], v{base} offset:{off+4*WROW}"])
        return out

    def reads_x(slot, p):
        return [f"ds_read_b128 v[{fB[p][u]}:{fB[p][u]+3}], v{vXB[p]} offset:{slot*XSLOT+2048*u}" for u in range(NU)]

    def read_s(slot):
        return f"ds_read_b128 v[{fS}:{fS+3}], v{vSA} offset:{slot*XSLOT}"

    def read_slots(slot, p):
        rw, rx = reads_w(slot, p), reads_x(slot, p)
        if ffn:
            return [rw[0], [rx[0]], [rx[1]], rw[1], rw[2], []]
        return [rw[0] + rx, rw[1], rw[2], rw[3], rw[4]]

    def stats_ops(regs):
        seq = []
        prev = None
        def fin(u_):
            return [f"v_add_f32 v{vS1[0]}, v{vS1[0]}, v{u_[0]}",
                    f"v_add_f32 v{vS1[1]}, v{vS1[1]}, v{u_[1]}",
                    f"v_fmac_f32 v{vS2[0]}, v{u_[0]}, v{u_[0]}",
                    f"v_fmac_f32 v{vS2[1]}, v{u_[1]}, v{u_[1]}"]
        for j, r in enumerate(regs):
            u_ = vU[j & 1]
            seq.append(f"v_lshlrev_b32 v{u_[0]}, 16, v{r}")
            seq.append(f"v_and_b32 v{u_[1]}, s{sMASK}, v{r}")
            if prev: seq += fin(prev)
            prev = u_
        if prev: seq += fin(prev)
        return seq

    def mfmas(p):
        out = []
        for i in range(NT):
            for u in range(NU):
                a, b, c = fA[p][i], fB[p][u], acc[i][u]
                if cls == "v":
                    a, b = b, a
                out.append(f"v_mfma_f32_32x32x16_bf16 v[{c}:{c+15}], v[{a}:{a+3}], v[{b}:{b+3}], v[{c}:{c+15}]")
        return out

    NS = NT * NU
    NSTG = 20

    def weave(ms, fl):
        out = []
        for i, m in enumerate(ms):
            out.append(m)
            if i < len(fl):
                out.extend(fl[i])
        return out

    def stage(n, slot, var, fifo, last_group, extra0=None, extra1=None, force_vm=None):
        body = []
        G = gsize(var)
        fl = read_slots(slot, 1)
        fl = [list(x) for x in fl]
        ops = [] if 'nostats' in EXP else stats_ops([fS + 2, fS + 3])
        fl = merge(fl, spread(ops, NS))
        if var == 1 and 'nodma' not in EXP:
            gid = None if n is None else n + RR - 2
            if gid is None or gid <= last_group:
                items = dma_group((slot - 2) % RR, var)
                for k_, it in enumerate(items):
                    fl[min(NS - 1, 1 + k_)] += it
                fifo.append((gid, len(items)))
        if extra0:
            fl = merge(fl, extra0)
            fifo.append(("cs", 2))
        body += weave(mfmas(0), fl)
        if n is None:
            vm = G * (RR - 3)
        else:
            vm = 0
            seen = False
            for gid, cnt in fifo:
                if seen: vm += cnt
                if gid == n + 1: seen = True
            assert seen or n == NSTG - 1
            if force_vm is not None: vm = force_vm
        if n is None or n < NSTG - 1:
            if 'nodma' not in EXP:
                body.append(f"s_waitcnt vmcnt({vm})")
            body.append("s_barrier")
        nslot = (slot + 1) % RR
        if n is None or n < NSTG - 1:
            fl = [list(x) for x in read_slots(nslot, 0)]
            if 'nostats' not in EXP:
                fl[0] = [read_s(nslot)] + fl[0]
                ops = stats_ops([fS, fS + 1])
                fl = merge(fl, spread(ops, NS, NS - 3))
        else:
            fl = [[] for _ in range(NS)]
        if var == 0 and 'nodma' not in EXP:
            gid = None if n is None else n + RR - 1
            if gid is None or gid <= last_group:
                items = dma_group((slot - 1) % RR, var)
                for k_, it in enumerate(items):
                    fl[min(NS - 1, 1 + k_)] += it
                fifo.append((gid, len(items)))
        if extra1:
            fl = merge(fl, extra1)
        body += weave(mfmas(1), fl)
        return body

    inv640, eps = 30, 31
    fin = [f"s_mov_b32 s{inv640}, {hex(f2u(1.0/640))}",
           f"s_mov_b32 s{eps}, {hex(f2u(1e-5))}",
           f"v_add_f32 v{vS1[0]}, v{vS1[0]}, v{vS1[1]}",
           f"v_add_f32 v{vS2[0]}, v{vS2[0]}, v{vS2[1]}",
           f"v_lshrrev_b32 v{t[0]}, 2, v{L}",
           f"s_lshl_b32 s4, s{sW}, 6",
           f"v_add_f32_dpp v{vS1[0]}, v{vS1[0]}, v{vS1[0]} quad_perm:[1,0,3,2] row_mask:0xf bank_mask:0xf",
           f"v_add_f32_dpp v{vS2[0]}, v{vS2[0]}, v{vS2[0]} quad_perm:[1,0,3,2] row_mask:0xf bank_mask:0xf",
           f"v_lshlrev_b32 v{t[0]}, 2, v{t[0]}",
           f"v_add_u32 v{t[0]}, s4, v{t[0]}",
           f"v_add_f32_dpp v{vS1[0]}, v{vS1[0]}, v{vS1[0]} quad_perm:[2,3,0,1] row_mask:0xf bank_mask:0xf",
           f"v_add_f32_dpp v{vS2[0]}, v{vS2[0]}, v{vS2[0]} quad_perm:[2,3,0,1] row_mask:0xf bank_mask:0xf",
           "s_nop 0",
           f"v_mul_f32 v{vS1[0]}, s{inv640}, v{vS1[0]}",
           f"v_mul_f32 v{vS2[0]}, s{inv640}, v{vS2[0]}",
           f"v_fma_f32 v{vS2[0]}, -v{vS1[0]}, v{vS1[0]}, v{vS2[0]}",
           f"v_max_f32 v{vS2[0]}, 0, v{vS2[0]}",
           f"v_add_f32 v{vS2[0]}, s{eps}, v{vS2[0]}",
           f"v_rsq_f32 v{vS2[0]}, v{vS2[0]}",
           f"v_sub_f32 v{vS1[0]}, 0, v{vS1[0]}",
           f"ds_write_b32 v{t[0]}, v{vS2[0]} offset:{RSL}",
           f"ds_write_b32 v{t[0]}, v{vS1[0]} offset:{NML}"]

    gl_load = [f"v_lshlrev_b32 v{t[1]}, 1, v{vGA}",
               f"s_mul_i32 s4, s{sROLE}, {384*8}",
               f"buffer_load_dwordx2 v[{vG}:{vG+1}], v{t[1]}, s[{SRDC}:{SRDC+3}], s4 offen sc1",
               f"buffer_load_dword v{vN}, off, s[{SRDD}:{SRDD+3}], 0 sc1"]

    for var in range(2):
        lv = f"{pfx}_{cls}_v{var}"
        if var == 0:
            e(f"s_cmp_ge_u32 s{sW}, 4")
            e(f"s_cbranch_scc1 {pfx}_{cls}_v1")
        else:
            e.lab(lv)
        ngp = RR - 1 if var == 0 else RR - 2
        chunks = [setup_all[k * len(setup_all) // ngp:(k + 1) * len(setup_all) // ngp] for k in range(ngp)]
        fifo = []
        for gi in range(ngp):
            for it in dma_group(gi, var):
                for x in it: e(x)
            fifo.append((gi, gsize(var)))
            for x in chunks[gi]: e(x)
        srd(e, SRDD, S_DBG, 0, 256)
        srd(e, SRDC, S_WS, CSG_OFF, CSG_SZ)
        vm0 = gsize(var) * (ngp - 1)
        e(f"s_waitcnt vmcnt({vm0})")
        e("s_barrier")
        stamp(e, 2)
        pro = []
        rs0 = read_slots(0, 0)
        if 'nostats' not in EXP:
            pro.append(read_s(0))
        for x in rs0: pro += x
        if 'nostats' not in EXP:
            pro += stats_ops([fS, fS + 1])
        pro, pend = autowait(pro, [])
        for x in pro: e(x)
        nit = NSTG // RR - 1
        e(f"s_mov_b32 s{sCNT}, {nit}")
        if var == 1 and 'noprio' not in EXP:
            e("s_setprio 1")
        loop = f"{pfx}_{cls}_loop{var}"
        e.lab(loop)
        body = []
        ff = []
        for st in range(RR):
            body += stage(None, st, var, ff, 99)
        b1, pend1 = autowait(body, pend)
        b2, pend2 = autowait(body, pend1)
        assert b1 == b2, "loop waits not periodic"
        for x in b1: e(x)
        e(f"s_sub_u32 s{sCNT}, s{sCNT}, 1")
        e(f"s_cmp_lg_u32 s{sCNT}, 0")
        e(f"s_cbranch_scc1 {loop}")
        n0 = NSTG - RR
        hi_g = n0 + RR - 2 if var == 0 else n0 + RR - 3
        ff = [(g_, gsize(var)) for g_ in range(n0 + 1, hi_g + 1)]
        tail = []
        lretry, lback = e.newlab("k1retry"), e.newlab("k1back")
        for st in range(RR):
            n = n0 + st
            ex0 = ex1 = None
            fv = None
            if n == NSTG - 3:
                ex0 = [[] for _ in range(NS)]
                ex0[NS - 1] = gl_load
            if n == NSTG - 2:
                fv = 0
                ex1 = [[] for _ in range(NS)]
                ex1[1] = [f"v_cmp_ne_u32 vcc, v{vN}, v{vG+1}",
                          f"v_cmp_eq_u32 s[30:31], 0, v{vN}",
                          "s_nop 0",
                          "s_or_b64 vcc, vcc, s[30:31]",
                          (f"s_cbranch_vccnz {lretry}" if 'nowait' not in EXP else "s_nop 0"),
                          f"{lback}:",
                          f"ds_write_b32 v{vGA}, v{vG} offset:{CSL}"]
            if n == NSTG - 1:
                ex1 = spread(fin, NS)
            sb = stage(n, st, var, ff, NSTG - 1, ex0, ex1, fv)
            tail += sb
        tl, pend3 = autowait(tail, pend1)
        for x in tl: e(x)
        e(f"v_readfirstlane_b32 s{sNONCE}, v{vN}")
        e("s_waitcnt lgkmcnt(0)")
        e("s_barrier")
        if var == 0:
            e(f"s_branch {pfx}_{cls}_epi")
        ret = [f"{lretry}:", f"s_mov_b32 s{sCNT}, 200000", f"{lretry}_l:", "s_sleep 2"] + gl_load + [
            "s_waitcnt vmcnt(0)",
            f"v_cmp_ne_u32 vcc, v{vN}, v{vG+1}",
            f"v_cmp_eq_u32 s[30:31], 0, v{vN}",
            "s_nop 0",
            "s_or_b64 vcc, vcc, s[30:31]",
            f"s_cbranch_vccz {lback}",
            f"s_sub_u32 s{sCNT}, s{sCNT}, 1",
            f"s_cmp_lg_u32 s{sCNT}, 0",
            f"s_cbranch_scc1 {lretry}_l",
            f"s_branch {lback}"]
        if var == 0:
            for x in ret: e(x)
        else:
            e(f"s_branch {pfx}_{cls}_epi")
            for x in ret: e(x)

    e.lab(f"{pfx}_{cls}_epi")
    e("s_setprio 0")
    stamp(e, 3)
    e(f"v_and_b32 v{t[0]}, 31, v{L}")
    e(f"s_lshl_b32 s4, s{sA}, {6 if ffn else 5}")
    e(f"v_add_u32 v{t[0]}, s4, v{t[0]}")
    e(f"v_lshlrev_b32 v{t[0]}, 2, v{t[0]}")
    vNM = [R.a() for _ in range(NU)]
    vRS = [R.a() for _ in range(NU)]
    if cls != "v":
        for u in range(NU):
            e(f"ds_read_b32 v{vNM[u]}, v{t[0]} offset:{128*u+NML}")
            e(f"ds_read_b32 v{vRS[u]}, v{t[0]} offset:{128*u+RSL}")
    h = t[2]
    e(f"v_lshrrev_b32 v{h}, 5, v{L}")
    csa = t[3]
    e(f"s_mul_i32 s4, s{sB}, {NT*128}")
    e(f"v_lshlrev_b32 v{csa}, 4, v{h}")
    e(f"v_add_u32 v{csa}, s4, v{csa}")
    sc = store_sc
    frag0 = fA[0][0]
    nfr = (2 * NT + 2 * NU) * 4 + 4
    assert fS + 4 == frag0 + nfr
    if ffn:
        csr = [frag0, frag0 + 16, R.a(16, 4)]
        assert nfr >= 32
        for i in range(3):
            for a in range(4):
                e(f"ds_read_b128 v[{csr[i]+4*a}:{csr[i]+4*a+3}], v{csa} offset:{CSL+128*i+32*a}")
        srd(e, SRDO, S_WS, ACT_OFF, ACT_SZ)
        e(f"s_lshl_b32 s4, s{sTB}, 3")
        e(f"s_lshl_b32 s5, s{sA}, 2")
        e(f"s_add_u32 s4, s4, s5")
        e(f"s_mul_i32 s4, s4, {ACT_ROW}")
        e(f"s_sub_u32 s5, s{sROLE}, 6")
        e(f"s_mul_i32 s5, s5, 12")
        e(f"s_mul_i32 s6, s{sB}, 3")
        e(f"s_add_u32 s5, s5, s6")
        e(f"s_lshl_b32 s5, s5, 9")
        e(f"s_add_u32 s4, s4, s5")
        e(f"v_bfe_u32 v{t[4]}, v{L}, 4, 1")
        e(f"v_mul_u32_u24 v{t[4]}, {ACT_ROW}, v{t[4]}")
        e(f"v_lshl_add_u32 v{t[4]}, v{h}, 8, v{t[4]}")
        e(f"v_and_b32 v{t[5]}, 15, v{L}")
        e(f"v_lshl_add_u32 v{t[4]}, v{t[5]}, 4, v{t[4]}")
        e(f"v_add_u32 v{t[4]}, s4, v{t[4]}")
        e(f"s_mov_b32 s7, {2*ACT_ROW}")
        body = []
        for u in range(NU):
            body.append(f"v_mul_f32 v{vRS[u]}, v{vRS[u]}, v{vRS[u]}")
        for i in range(3):
            for u in range(2):
                c = acc[i][u]
                tm = csr[i]
                for r in range(16):
                    body.append(f"v_fmac_f32 v{c+r}, v{vNM[u]}, v{tm+r}")
                for r in range(8):
                    body.append(f"v_max_f32 v{c+r}, 0, v{c+r}")
                    body.append(f"v_mul_f32 v{c+8+r}, v{vRS[u]}, v{c+8+r}")
                for r in range(8):
                    body.append(f"v_mul_f32 v{c+r}, v{c+r}, v{c+8+r}")
                p_ = c + 8
                for r in range(4):
                    body.append(f"v_cvt_pk_bf16_f32 v{p_+r}, v{c+2*r}, v{c+2*r+1}")
                so = "0" if u == 0 else "s7"
                body.append(f"buffer_store_dwordx4 v[{p_}:{p_+3}], v{t[4]}, s[{SRDO}:{SRDO+3}], {so} offen offset:{512*i} {sc}")
        pend = [{vNM[0]}, {vRS[0]}, {vNM[1]}, {vRS[1]}] + [set(range(csr[i] + 4 * a, csr[i] + 4 * a + 4)) for i in range(3) for a in range(4)]
        e("s_waitcnt lgkmcnt(12)")
        pend = pend[4:]
        bl, _ = autowait(body, pend)
        for x in bl: e(x)
    elif cls == "qk":
        nbuf = nfr // 16
        tm = [frag0 + 16 * k for k in range(2)]
        for i in range(2):
            for a in range(4):
                e(f"ds_read_b128 v[{tm[i]+4*a}:{tm[i]+4*a+3}], v{csa} offset:{CSL+128*i+32*a}")
        e(f"s_mov_b32 s6, {hex(QB_OFF)}")
        e(f"s_cmp_ge_u32 s{sROLE}, 2")
        e(f"s_cselect_b32 s4, {hex(KB_OFF)}, s6")
        e(f"s_cselect_b32 s5, 1.0, {hex(f2u(20**-0.5*1.4426950408889634))}")
        srd(e, SRDO, S_WS, "s4", QK_SZ)
        e(f"s_mov_b32 s31, s5")
        e(f"s_and_b32 s4, s{sROLE}, 1")
        e(f"s_lshl_b32 s4, s4, 3")
        e(f"s_lshl_b32 s5, s{sB}, 2")
        e(f"s_add_u32 s4, s4, s5")
        e(f"s_lshl_b32 s4, s4, 6")
        e(f"s_lshl_b32 s5, s{sTB}, 2")
        e(f"s_add_u32 s4, s4, s5")
        e(f"s_add_u32 s4, s4, s{sA}")
        e(f"s_mul_i32 s4, s4, 2560")
        e(f"v_lshlrev_b32 v{t[4]}, 4, v{L}")
        e(f"v_add_u32 v{t[4]}, s4, v{t[4]}")
        e(f"v_lshlrev_b32 v{t[5]}, 3, v{L}")
        e(f"v_add_u32 v{t[5]}, s4, v{t[5]}")
        e(f"v_add_u32 v{t[5]}, 2048, v{t[5]}")
        stg = R.a(40, 4)
        def dst(G):
            p, k = divmod(G, 5)
            base = stg + 10 * p
            return {0: base, 1: base + 2, 2: base + 8, 3: base + 4, 4: base + 6}[k]
        body = [f"v_mul_f32 v{vRS[0]}, s31, v{vRS[0]}"]
        for i in range(5):
            c = acc[i][0]
            tmc = tm[i & 1]
            for r in range(16):
                body.append(f"v_fmac_f32 v{c+r}, v{vNM[0]}, v{tmc+r}")
            if i + 2 < 5:
                for a in range(4):
                    body.append(f"ds_read_b128 v[{tmc+4*a}:{tmc+4*a+3}], v{csa} offset:{CSL+128*(i+2)+32*a}")
            for r in range(16):
                body.append(f"v_mul_f32 v{c+r}, v{vRS[0]}, v{c+r}")
            for a in range(4):
                G = 4 * i + a
                d = dst(G)
                body.append(f"v_cvt_pk_bf16_f32 v{d}, v{c+4*a}, v{c+4*a+1}")
                body.append(f"v_cvt_pk_bf16_f32 v{d+1}, v{c+4*a+2}, v{c+4*a+3}")
                p, k = divmod(G, 5)
                if k == 4:
                    base = stg + 10 * p
                    body.append(f"s_mov_b32 s7, {p*64*2560}")
                    body.append(f"buffer_store_dwordx4 v[{base}:{base+3}], v{t[4]}, s[{SRDO}:{SRDO+3}], s7 offen {sc}")
                    body.append(f"buffer_store_dwordx4 v[{base+4}:{base+7}], v{t[4]}, s[{SRDO}:{SRDO+3}], s7 offen offset:1024 {sc}")
                    body.append(f"buffer_store_dwordx2 v[{base+8}:{base+9}], v{t[5]}, s[{SRDO}:{SRDO+3}], s7 offen {sc}")
        pend = [{vNM[0]}, {vRS[0]}] + [set(range(tm[i] + 4 * a, tm[i] + 4 * a + 4)) for i in range(2) for a in range(4)]
        bl, _ = autowait(body, pend)
        for x in bl: e(x)
    else:
        srd(e, SRDO, S_WS, VB_OFF, VB_SZ)
        e(f"s_lshl_b32 s4, s{sA}, 7")
        e(f"v_lshlrev_b32 v{t[4]}, 4, v{h}")
        e(f"v_add_u32 v{t[4]}, s4, v{t[4]}")
        rsq = frag0
        nmq = rsq + 16
        assert nfr >= 32
        for a in range(4):
            e(f"ds_read_b128 v[{rsq+4*a}:{rsq+4*a+3}], v{t[4]} offset:{32*a+RSL}")
            e(f"ds_read_b128 v[{nmq+4*a}:{nmq+4*a+3}], v{t[4]} offset:{32*a+NML}")
        e(f"v_and_b32 v{t[1]}, 31, v{L}")
        e(f"s_mul_i32 s4, s{sB}, {NT*32}")
        e(f"v_add_u32 v{t[1]}, s4, v{t[1]}")
        e(f"v_lshlrev_b32 v{t[1]}, 2, v{t[1]}")
        csl = [R.a() for _ in range(5)]
        for i in range(5):
            e(f"ds_read_b32 v{csl[i]}, v{t[1]} offset:{CSL+128*i}")
        e(f"s_sub_u32 s4, s{sROLE}, 4")
        e(f"s_lshl_b32 s4, s4, 4")
        e(f"s_lshl_b32 s5, s{sB}, 3")
        e(f"s_add_u32 s4, s4, s5")
        e(f"s_lshl_b32 s4, s4, 6")
        e(f"s_lshl_b32 s5, s{sTB}, 2")
        e(f"s_add_u32 s4, s4, s5")
        e(f"s_add_u32 s4, s4, s{sA}")
        e(f"s_mul_i32 s4, s4, 1280")
        e(f"s_mov_b32 s5, 3277")
        e(f"s_mov_b32 s6, {64*1280}")
        va = [R.a() for _ in range(5)]
        for i in range(5):
            e(f"v_and_b32 v{t[5]}, 31, v{L}")
            e(f"v_add_u32 v{t[5]}, {32*i}, v{t[5]}")
            e(f"v_mul_lo_u32 v{t[6]}, v{t[5]}, s5")
            e(f"v_lshrrev_b32 v{t[6]}, 16, v{t[6]}")
            e(f"v_mul_u32_u24 v{t[7]}, 20, v{t[6]}")
            e(f"v_sub_u32 v{t[5]}, v{t[5]}, v{t[7]}")
            e(f"v_mul_lo_u32 v{t[6]}, v{t[6]}, s6")
            e(f"v_lshl_add_u32 v{t[6]}, v{t[5]}, 4, v{t[6]}")
            e(f"v_mul_u32_u24 v{t[7]}, 320, v{h}")
            e(f"v_add3_u32 v{va[i]}, v{t[6]}, v{t[7]}, s4")
        e("s_waitcnt lgkmcnt(0)")
        for i in range(5):
            c = acc[i][0]
            for r in range(16):
                e(f"v_fmac_f32 v{c+r}, v{nmq+r}, v{csl[i]}")
            for r in range(16):
                e(f"v_mul_f32 v{c+r}, v{rsq+r}, v{c+r}")
            for sidx in range(2):
                d = c + 8 * sidx
                for r in range(4):
                    e(f"v_cvt_pk_bf16_f32 v{d+r}, v{d+2*r}, v{d+2*r+1}")
                e(f"buffer_store_dwordx4 v[{d}:{d+3}], v{va[i]}, s[{SRDO}:{SRDO+3}], 0 offen offset:{640*sidx} {sc}")
    stamp(e, 7)
    if finish is None:
        e("s_waitcnt vmcnt(0)")
        stamp(e, 5)
        stamp(e, 6, True)
        stamp_dump(e, 8, 0, sW, S_WS)
        e("s_endpgm")
    else:
        finish(e, cls)
    return R.hi


def helper(e, store_sc="", finish=None, pfx="k1"):
    R = Regs(2, 256, "v")
    t = [R.a() for _ in range(6)]
    vSrc, vRd, vDst, vOff = R.a(), R.a(), R.a(), R.a()
    ac = R.a(8, 4)
    u_ = [R.a() for _ in range(4)]
    fr = [R.a(4, 4) for _ in range(5)]
    L = 1
    SRDA, SRDB, SRDS = 8, 12, 80
    sKS, sSO = 24, 25
    PART = 0
    BUF0 = 32768
    e.lab(f"{pfx}_helper")
    e(f"v_lshlrev_b32 v{vSrc}, 4, v{L}")
    e(f"v_lshrrev_b32 v{t[0]}, 5, v{L}")
    e(f"v_bfe_u32 v{t[1]}, v{L}, 4, 1")
    e(f"v_bfe_u32 v{t[2]}, v{L}, 2, 2")
    e(f"v_lshl_add_u32 v{t[2]}, v{t[1]}, 2, v{t[2]}")
    e(f"v_lshl_add_u32 v{t[2]}, v{t[0]}, 4, v{t[2]}")
    e(f"v_mul_u32_u24 v{t[2]}, 1280, v{t[2]}")
    e(f"v_and_b32 v{t[3]}, 3, v{L}")
    e(f"v_mul_u32_u24 v{t[3]}, 40, v{t[3]}")
    e(f"s_mul_i32 s4, s{sW}, 160")
    e(f"s_add_u32 s4, s4, {BUF0}")
    e(f"v_add3_u32 v{vRd}, v{t[2]}, v{t[3]}, s4")
    e(f"s_mul_i32 s4, s{sW}, {W3_CB}")
    e(f"v_add_u32 v{vDst}, s4, v{vSrc}")
    for r in range(8):
        e(f"v_mov_b32 v{ac+r}, 0")
    e("s_waitcnt lgkmcnt(0)")
    stamp(e, 0, True)
    stamp(e, 1)
    srd(e, SRDA, S_DOWN, 0, WD_SZ)
    srd(e, SRDB, S_WO, 0, WO_SZ)
    srd(e, SRDO, S_WS, W3_OFF, W3_SZ)
    srd(e, SRDD, S_DBG, 0, 256)
    srd(e, SRDC, S_WS, CSG_OFF, CSG_SZ)
    l0 = e.newlab("k1n")
    e(f"s_or_b32 s4, s2, s{sW}")
    e("s_cmp_lg_u32 s4, 0")
    e(f"s_cbranch_scc1 {l0}")
    e("s_memrealtime s[6:7]")
    e("s_waitcnt lgkmcnt(0)")
    e("s_or_b32 s6, s6, 1")
    e(f"v_mov_b32 v{t[0]}, s6")
    e("s_mov_b64 exec, 1")
    e(f"buffer_store_dword v{t[0]}, off, s[{SRDD}:{SRDD+3}], 0 sc1")
    e("s_mov_b64 exec, -1")
    e.lab(l0)

    def w3_dma(j):
        b = BUF0 + (j % 3) * 40960
        lab = e.newlab("w3")
        e(f"s_add_u32 s{sKS}, s{sTB}, {16*j}")
        e(f"s_mul_i32 m0, s{sW}, 5120")
        e(f"s_add_u32 m0, m0, {b}")
        def issue(sr):
            for i in range(4):
                e(f"buffer_load_dwordx4 v{vSrc}, s[{sr}:{sr+3}], s{sSO} offen offset:{1024*i} lds")
            e(f"s_add_u32 s{sSO}, s{sSO}, 4096")
            e(f"s_add_u32 m0, m0, 4096")
            e("s_nop 0")
            e(f"buffer_load_dwordx4 v{vSrc}, s[{sr}:{sr+3}], s{sSO} offen lds")
        if j >= 3:
            e(f"s_cmp_ge_u32 s{sKS}, 54")
            e(f"s_cbranch_scc1 {lab}_o")
        if j <= 3:
            e(f"s_lshl_b32 s4, s{sKS}, 5")
            e(f"s_lshl_b32 s5, s{sW}, 2")
            e(f"s_add_u32 s4, s4, s5")
            e(f"s_mul_i32 s{sSO}, s4, 1280")
            issue(SRDA)
        if j >= 3:
            e(f"s_branch {lab}_go")
            e.lab(f"{lab}_o")
            e(f"s_cmp_ge_u32 s{sKS}, 70")
            e(f"s_cbranch_scc1 {lab}_x")
            e(f"s_sub_u32 s4, s{sKS}, 54")
            e(f"s_mul_i32 s4, s4, 40")
            e(f"s_lshr_b32 s5, s{sW}, 2")
            e(f"s_mul_i32 s5, s5, 20")
            e(f"s_add_u32 s4, s4, s5")
            e(f"s_and_b32 s5, s{sW}, 3")
            e(f"s_lshl_b32 s5, s5, 2")
            e(f"s_add_u32 s4, s4, s5")
            e(f"s_branch {lab}_wo")
            e.lab(f"{lab}_x")
            e(f"s_sub_u32 s4, s{sKS}, 70")
            e(f"s_lshl_b32 s4, s4, 3")
            e(f"s_lshr_b32 s5, s{sW}, 2")
            e(f"s_lshl_b32 s5, s5, 2")
            e(f"s_add_u32 s4, s4, s5")
            e(f"s_and_b32 s5, s{sW}, 1")
            e(f"s_lshl_b32 s5, s5, 1")
            e(f"s_add_u32 s4, s4, s5")
            e(f"s_bfe_u32 s5, s{sW}, 0x10001")
            e(f"s_add_u32 s4, s4, s5")
            e(f"s_mul_i32 s4, s4, 20")
            e(f"s_add_u32 s4, s4, 16")
            e.lab(f"{lab}_wo")
            e(f"s_mul_i32 s{sSO}, s4, 1280")
            issue(SRDB)
            e.lab(f"{lab}_go")

    def colsum(ffn):
        NB = 8 if ffn else 9
        NIT = 4 if ffn else 3
        nper, magic, GROW = (24, 2731, 3456) if ffn else (40, 1639, 3840)
        rows = 10 if ffn else 12
        ncol = 192 if ffn else 320
        m = R.mark()
        buf = [R.a(4, 4) for _ in range(2 * NB)]
        R.reset(m)
        if ffn:
            e(f"s_cmp_ge_u32 s{sW}, 4")
            e(f"s_cselect_b32 s{SRDS}, s{S_UP}, s{S_GATE}")
            e(f"s_cselect_b32 s{SRDS+1}, s{S_UP+1}, s{S_GATE+1}")
            e(f"s_mov_b32 s{SRDS+2}, {hex(WG_SZ)}")
            e(f"s_mov_b32 s{SRDS+3}, 0x00020000")
            e(f"v_and_b32 v{t[0]}, 255, v0")
            e(f"s_sub_u32 s4, s{sTB}, 6")
            e(f"s_mul_i32 s4, s4, 384")
        else:
            srd(e, SRDS, S_WQKV, 0, WQKV_SZ)
            e(f"v_mov_b32 v{t[0]}, v0")
            e(f"s_mul_i32 s4, s{sTB}, 640")
        e(f"s_mov_b32 s5, {magic}")
        e(f"s_mov_b32 s6, {GROW}")
        e(f"v_mul_lo_u32 v{t[1]}, v{t[0]}, s5")
        e(f"v_lshrrev_b32 v{t[1]}, 16, v{t[1]}")
        e(f"v_mul_u32_u24 v{t[2]}, {nper}, v{t[1]}")
        e(f"v_sub_u32 v{t[2]}, v{t[0]}, v{t[2]}")
        e(f"v_mul_lo_u32 v{t[3]}, v{t[1]}, s6")
        e(f"v_lshl_add_u32 v{t[3]}, v{t[2]}, 4, v{t[3]}")
        e(f"v_add_u32 v{vOff}, s4, v{t[3]}")
        e(f"v_cmp_gt_u32 vcc, {nper*rows}, v{t[0]}")
        e(f"v_mov_b32 v{t[3]}, 0x7ff00000")
        e(f"v_cndmask_b32 v{vOff}, v{t[3]}, v{vOff}, vcc")
        if ffn:
            e(f"s_lshr_b32 s4, s{sW}, 2")
            e(f"s_mul_i32 s4, s4, {rows}")
            e(f"v_add_u32 v{t[1]}, s4, v{t[1]}")
        e(f"v_mul_u32_u24 v{t[1]}, {ncol*4}, v{t[1]}")
        e(f"v_lshl_add_u32 v{t[4]}, v{t[2]}, 5, v{t[1]}")
        e(f"v_mov_b32 v{t[3]}, 24576")
        e(f"v_cndmask_b32 v{t[4]}, v{t[3]}, v{t[4]}, vcc")
        e(f"s_mov_b32 s{sSO}, 0")
        def ld(k):
            e(f"buffer_load_dwordx4 v[{buf[k]}:{buf[k]+3}], v{vOff}, s[{SRDS}:{SRDS+3}], s{sSO} offen")
            e(f"s_add_u32 s{sSO}, s{sSO}, {rows*GROW}")
        def proc(k):
            for r in range(4):
                a, b = u_[2 * (r & 1)], u_[2 * (r & 1) + 1]
                e(f"v_lshlrev_b32 v{a}, 16, v{buf[k]+r}")
                e(f"v_and_b32 v{b}, s{sMASK}, v{buf[k]+r}")
                e(f"v_add_f32 v{ac+2*r}, v{ac+2*r}, v{a}")
                e(f"v_add_f32 v{ac+2*r+1}, v{ac+2*r+1}, v{b}")
        for k in range(2 * NB):
            ld(k)
        lp = e.newlab("cs")
        e(f"s_mov_b32 s{sCNT}, {NIT-1}")
        e.lab(lp)
        for blk in range(2):
            for k in range(NB):
                e(f"s_waitcnt vmcnt({2*NB-1})")
                proc(blk * NB + k)
                ld(blk * NB + k)
        e(f"s_sub_u32 s{sCNT}, s{sCNT}, 1")
        e(f"s_cmp_lg_u32 s{sCNT}, 0")
        e(f"s_cbranch_scc1 {lp}")
        for j in range(3):
            w3_dma(j)
        for k in range(2 * NB):
            e(f"s_waitcnt vmcnt({2*NB-1-k+15})")
            proc(k)
        e(f"ds_write_b128 v{t[4]}, v[{ac}:{ac+3}] offset:{PART}")
        e(f"ds_write_b128 v{t[4]}, v[{ac+4}:{ac+7}] offset:{PART+16}")
        if ffn:
            e(f"v_min_u32 v{t[0]}, 383, v0")
            e(f"v_lshrrev_b32 v{t[1]}, 5, v{t[0]}")
            e(f"v_bfe_u32 v{t[2]}, v{t[0]}, 4, 1")
            e(f"v_and_b32 v{t[3]}, 15, v{t[0]}")
            e(f"v_lshl_add_u32 v{t[3]}, v{t[1]}, 4, v{t[3]}")
            e(f"v_mul_u32_u24 v{t[2]}, {rows*ncol}, v{t[2]}")
            e(f"v_add_u32 v{t[3]}, v{t[3]}, v{t[2]}")
        else:
            e(f"v_min_u32 v{t[0]}, 319, v0")
            e(f"v_mov_b32 v{t[3]}, v{t[0]}")
        e(f"v_lshlrev_b32 v{t[3]}, 2, v{t[3]}")
        e("s_waitcnt lgkmcnt(0)")
        e("s_barrier")
        for r in range(rows):
            dst_ = buf[0] + r
            e(f"ds_read_b32 v{dst_}, v{t[3]} offset:{PART + r*ncol*4}")
        ln = e.newlab("csn")
        e(f"s_mov_b32 s{sCNT}, 200000")
        e.lab(ln)
        e(f"buffer_load_dword v{t[5]}, off, s[{SRDD}:{SRDD+3}], 0 sc1")
        e("s_waitcnt vmcnt(0)")
        e(f"v_readfirstlane_b32 s{sNONCE}, v{t[5]}")
        e(f"s_cmp_lg_u32 s{sNONCE}, 0")
        e(f"s_cbranch_scc1 {ln}_ok")
        e("s_sleep 2")
        e(f"s_sub_u32 s{sCNT}, s{sCNT}, 1")
        e(f"s_cmp_lg_u32 s{sCNT}, 0")
        e(f"s_cbranch_scc1 {ln}")
        e.lab(f"{ln}_ok")
        e("s_waitcnt lgkmcnt(0)")
        for r in range(1, rows):
            e(f"v_add_f32 v{buf[0]}, v{buf[0]}, v{buf[0]+r}")
        e(f"v_mov_b32 v{buf[0]+1}, s{sNONCE}")
        e(f"v_lshlrev_b32 v{t[0]}, 3, v{t[0]}")
        e(f"s_mul_i32 s4, s{sTB}, {384*8}")
        e(f"buffer_store_dwordx2 v[{buf[0]}:{buf[0]+1}], v{t[0]}, s[{SRDC}:{SRDC+3}], s4 offen sc1")
        return buf[-1] + 4

    lq, lnone, lgo = f"{pfx}_h_q", f"{pfx}_h_none", f"{pfx}_h_w3"
    e(f"s_cmp_eq_u32 s{sTB}, 15")
    e(f"s_cbranch_scc1 {lnone}")
    e(f"s_cmp_lt_u32 s{sTB}, 6")
    e(f"s_cbranch_scc1 {lq}")
    hi = colsum(True)
    e(f"s_branch {lgo}")
    e.lab(lq)
    hi = max(hi, colsum(False))
    e(f"s_branch {lgo}")
    e.lab(lnone)
    for j in range(3):
        w3_dma(j)
    e.lab(lgo)
    stamp(e, 3)
    waits = [10, 15, 15, 10, 10]
    lend = f"{pfx}_h_end"
    for j in range(5):
        if j == 4:
            e(f"s_cmp_ge_u32 s{sTB}, 10")
            e(f"s_cbranch_scc1 {lend}")
        off = (j % 3) * 40960
        e(f"s_waitcnt vmcnt({waits[j]})")
        e("s_barrier")
        e(f"s_mov_b32 s4, {off}")
        e(f"v_add_u32 v{t[0]}, s4, v{vRd}")
        for c5 in range(5):
            e(f"ds_read_b64_tr_b16 v[{fr[c5]}:{fr[c5]+1}], v{t[0]} offset:{8*c5}")
            e(f"ds_read_b64_tr_b16 v[{fr[c5]+2}:{fr[c5]+3}], v{t[0]} offset:{8*c5+8*1280}")
        e(f"s_add_u32 s4, s{sTB}, {16*j}")
        e(f"s_mul_i32 s7, s4, 5120")
        e("s_waitcnt lgkmcnt(0)")
        e("s_barrier")
        for c5 in range(4):
            e(f"buffer_store_dwordx4 v[{fr[c5]}:{fr[c5]+3}], v{vDst}, s[{SRDO}:{SRDO+3}], s7 offen offset:{1024*c5} {store_sc}")
        e(f"s_add_u32 s7, s7, 4096")
        e(f"buffer_store_dwordx4 v[{fr[4]}:{fr[4]+3}], v{vDst}, s[{SRDO}:{SRDO+3}], s7 offen {store_sc}")
        if j == 0:
            w3_dma(3)
        if j == 1:
            l4 = e.newlab("w3s")
            e(f"s_cmp_ge_u32 s{sTB}, 10")
            e(f"s_cbranch_scc1 {l4}")
            w3_dma(4)
            e.lab(l4)
        e("s_nop 0")
    e.lab(lend)
    stamp(e, 7)
    if finish is None:
        e("s_waitcnt vmcnt(0)")
        stamp(e, 5)
        stamp(e, 6, True)
        stamp_dump(e, 8, 0, sW, S_WS)
        e("s_endpgm")
    else:
        finish(e, "helper")
    return max(R.hi, hi)


def gen_k1(e, name, store_sc=""):
    e.l.append(kernel_header(name))
    prologue(e)
    hi = 0
    hi = max(hi, gemm(e, "qk", store_sc))
    hi = max(hi, gemm(e, "v", store_sc))
    hi = max(hi, gemm(e, "ffn", store_sc))
    hi = max(hi, helper(e, store_sc))
    e.lab("k1_exit")
    e("s_endpgm")
    return hi
```

```python
import sys
from common import *
import k1, k2, k3, p1

HDR = open("cdna_kernels/" + KNAME + ".s.ref").read().split("; Override launch")[0]

def build():
    e = E()
    k3.NATURAL = "nat" in p1.EXP
    sc = "sc1" if "sc1" in p1.EXP else ""
    sc2 = "sc1" if "sc1b" in p1.EXP else ""
    h1 = p1.gen_k1(e, "k1_kernel", sc)
    h2 = k2.gen_k2(e, "k2_kernel", sc2)
    h3 = k3.gen_k3(e, "k3_kernel")
    txt = HDR
    txt += f"; @launch kernel=k1_kernel grid=(256,1,1) block=(512,1,1) lds={p1.P1_LDS}\n"
    txt += f"; @launch kernel=k2_kernel grid=(256,1,1) block=(512,1,1) lds={k2.K2_LDS}\n"
    txt += f"; @launch kernel=k3_kernel grid=(256,1,1) block=(512,1,1) lds={k3.K3_LDS}\n"
    txt += '.amdgcn_target "amdgcn-amd-amdhsa--gfx950"\n.text\n'
    txt += e.text()
    txt += '.section .rodata,"a"\n'
    for n in ["k1_kernel", "k2_kernel", "k3_kernel"]:
        txt += ".p2align 6\n" + kernel_desc(n)
    print("vgpr hi:", h1, h2, h3, file=sys.stderr)
    return txt

if __name__ == "__main__":
    import common
    if "--prof" in sys.argv:
        sys.argv.remove("--prof")
        common.PROF = True
    for a in list(sys.argv):
        if a.startswith("--exp="):
            sys.argv.remove(a)
            p1.EXP.update(a[6:].split(","))
    out = sys.argv[1] if len(sys.argv) > 1 else "v3.s"
    open(out, "w").write(build())
```

```python
KNAME = "parallel_sum__sliding_block__glu_gated_reglu__prompt"

ACT_OFF = 0x0000000
ACT_ROW = 74 * 1024
ACT_SZ = 128 * ACT_ROW
QB_OFF = 0x0A00000
KB_OFF = 0x0D00000
QK_SZ = 16 * 64 * 2560
VB_OFF = 0x1000000
VB_SZ = 32 * 64 * 1280
W3_OFF = 0x1300000
W3_CB = 74 * 5120
W3_SZ = 8 * W3_CB

X_SZ = 2048 * 1280
WQKV_SZ = 640 * 3840
WG_SZ = 640 * 3456
WD_SZ = 1728 * 1280
WO_SZ = 640 * 1280


class E:
    def __init__(self):
        self.l = []
        self.nlab = 0

    def __call__(self, s=""):
        for x in s.split("\n"):
            self.l.append("    " + x.strip() if x.strip() and not x.strip().endswith(":") else x.strip())

    def lab(self, name):
        self.l.append(name + ":")

    def newlab(self, p="L"):
        self.nlab += 1
        return f"{p}_{self.nlab}"

    def c(self, s):
        self.l.append("    ; " + s)

    def text(self):
        return "\n".join(self.l) + "\n"


class Regs:
    def __init__(self, start, limit, pfx):
        self.n = start
        self.limit = limit
        self.pfx = pfx
        self.hi = start

    def a(self, cnt=1, align=1):
        if cnt >= 2 and align == 1:
            align = 2
        self.n = (self.n + align - 1) // align * align
        r = self.n
        self.n += cnt
        assert self.n <= self.limit, f"out of {self.pfx} regs ({self.n})"
        self.hi = max(self.hi, self.n)
        return r

    def mark(self):
        return self.n

    def reset(self, m):
        self.n = m


def v(i, n=1):
    return f"v{i}" if n == 1 else f"v[{i}:{i+n-1}]"


def s(i, n=1):
    return f"s{i}" if n == 1 else f"s[{i}:{i+n-1}]"


def srd(e, d, base_lo, off, size):
    if off == 0:
        e(f"s_mov_b32 s{d}, s{base_lo}")
        e(f"s_mov_b32 s{d+1}, s{base_lo+1}")
    else:
        o = off if isinstance(off, str) else hex(off)
        e(f"s_add_u32 s{d}, s{base_lo}, {o}")
        e(f"s_addc_u32 s{d+1}, s{base_lo+1}, 0")
    e(f"s_mov_b32 s{d+2}, {size if isinstance(size, str) else hex(size)}")
    e(f"s_mov_b32 s{d+3}, 0x00020000")


def interleave(e, mfmas, fillers):
    for i, m in enumerate(mfmas):
        e(m)
        if i < len(fillers):
            for f in fillers[i]:
                e(f)
    for fl in fillers[len(mfmas):]:
        for f in fl:
            e(f)


def spread(items, nslots, start=0):
    out = [[] for _ in range(nslots)]
    n = len(items)
    k = nslots - start
    for j, it in enumerate(items):
        out[start + min(k - 1, j * k // max(n, 1))].append(it)
    return out


def merge(*lists):
    n = max(len(x) for x in lists)
    out = [[] for _ in range(n)]
    for x in lists:
        for i, y in enumerate(x):
            out[i] += y
    return out


def kernel_header(name):
    return f""".globl {name}
.p2align 8
.type {name},@function
{name}:
"""


def kernel_desc(name, vgpr=256, sgpr=102):
    acc = min(256, (vgpr + 3) // 4 * 4)
    return f""".amdhsa_kernel {name}
  .amdhsa_next_free_vgpr {vgpr}
  .amdhsa_next_free_sgpr {sgpr}
  .amdhsa_accum_offset {acc}
  .amdhsa_group_segment_fixed_size 0
  .amdhsa_kernarg_size 80
  .amdhsa_user_sgpr_count 2
  .amdhsa_user_sgpr_kernarg_segment_ptr 1
  .amdhsa_system_sgpr_workgroup_id_x 1
.end_amdhsa_kernel
"""


PROF = False
PROF_OFF = 0x3000000
PROF_S0 = 84
def stamp(e, idx, real=False):
    if not PROF:
        return
    assert idx < 14
    e(f"{'s_memrealtime' if real else 's_memtime'} s[98:99]")
    e("s_waitcnt lgkmcnt(0)")
    e(f"s_mov_b32 s{PROF_S0+idx}, s98")

def stamp_dump(e, n, kidx, sW, ws_lo, vt=2):
    if not PROF:
        return
    e(f"s_lshl_b32 s98, s2, 3")
    e(f"s_add_u32 s98, s98, s{sW}")
    e(f"s_lshl_b32 s98, s98, 7")
    e(f"s_add_u32 s98, s98, {hex(PROF_OFF + kidx*0x40000)}")
    e(f"s_add_u32 s8, s{ws_lo}, s98")
    e(f"s_addc_u32 s9, s{ws_lo+1}, 0")
    e("s_mov_b32 s10, 128")
    e("s_mov_b32 s11, 0x00020000")
    e("s_mov_b64 exec, 1")
    e(f"v_mov_b32 v{vt+1}, 0")
    for i in range(n):
        e(f"v_mov_b32 v{vt}, s{PROF_S0+i}")
        e(f"buffer_store_dword v{vt}, v{vt+1}, s[8:11], 0 offen offset:{4*i}")
        e("s_nop 1")
    e("s_waitcnt vmcnt(0)")


import re as _re
_VR = _re.compile(r"\bv\[(\d+):(\d+)\]|\bv(\d+)\b")

def vregs(text):
    out = set()
    for m in _VR.finditer(text):
        if m.group(3) is not None:
            out.add(int(m.group(3)))
        else:
            out.update(range(int(m.group(1)), int(m.group(2)) + 1))
    return out

def autowait(lines, pending):
    out = []
    pending = list(pending)
    for ln in lines:
        st = ln.strip()
        op = st.split()[0] if st else ""
        if not st or st.startswith(";") or st.endswith(":"):
            out.append(ln); continue
        if op == "s_waitcnt":
            m = _re.search(r"lgkmcnt\((\d+)\)", st)
            if m:
                n = int(m.group(1))
                pending = pending[len(pending) - n:] if n < len(pending) else pending
            out.append(ln); continue
        if op.startswith("ds_"):
            ops = st[len(op):].split(",")
            if op.startswith("ds_read"):
                dst = vregs(ops[0]); use = vregs(",".join(ops[1:]))
            else:
                dst = set(); use = vregs(st[len(op):])
            need = use
        else:
            dst = None; need = vregs(st[len(op):])
        idx = -1
        for i, p in enumerate(pending):
            if p & need:
                idx = i
        if idx >= 0:
            n = min(15, len(pending) - 1 - idx)
            out.append(f"s_waitcnt lgkmcnt({n})")
            pending = pending[len(pending) - n:] if n else []
        out.append(ln)
        if dst is not None:
            pending.append(dst)
    return out, pending
```

```python
from common import *
from k1 import load_ptrs, S_WS, S_XP, S_OUT
from p1 import S_WO, S_DOWN
NATURAL = False

SLOT = 40960
K3_LDS = 3 * SLOT


def gen_k3(e, name):
    e.l.append(kernel_header(name))
    sTB, sCB, sW, sU, sPAR = 20, 21, 22, 23, 24
    SRDA, SRDW, SRDX, SRDO = 8, 12, 16, 28
    R = Regs(2, 256, "v")
    t = [R.a() for _ in range(6)]
    L = 1
    e("s_cmp_ge_u32 s2, 256")
    e("s_cbranch_scc1 k3_exit")
    load_ptrs(e)
    e("v_and_b32 v1, 63, v0")
    e("v_lshrrev_b32 v2, 6, v0")
    e("s_and_b32 s3, s2, 7")
    e("s_lshr_b32 s4, s2, 3")
    e(f"v_readfirstlane_b32 s{sW}, v2")
    e("s_lshr_b32 s5, s3, 1")
    e("s_lshl_b32 s5, s5, 3")
    e("s_and_b32 s6, s4, 7")
    e(f"s_add_u32 s{sTB}, s5, s6")
    e("s_and_b32 s5, s3, 1")
    e("s_lshl_b32 s5, s5, 2")
    e("s_lshr_b32 s6, s4, 3")
    e(f"s_add_u32 s{sCB}, s5, s6")
    e(f"s_and_b32 s{sU}, s{sW}, 3")
    e(f"s_lshr_b32 s{sPAR}, s{sW}, 2")
    e("s_waitcnt lgkmcnt(0)")
    stamp(e, 0, True)
    stamp(e, 1)
    e(f"s_lshl_b32 s4, s{sTB}, 2")
    e(f"s_add_u32 s4, s4, s{sU}")
    e(f"s_mul_i32 s4, s4, {ACT_ROW}")
    if ACT_OFF:
        e(f"s_add_u32 s4, s4, {hex(ACT_OFF)}")
    srd(e, SRDA, S_WS, "s4", ACT_ROW)
    if NATURAL:
        srd(e, SRDW, S_DOWN, 0, WD_SZ)
    else:
        e(f"s_mul_i32 s4, s{sCB}, {W3_CB}")
        e(f"s_add_u32 s4, s4, {hex(W3_OFF)}")
        srd(e, SRDW, S_WS, "s4", W3_CB)
    vL16 = R.a()
    e(f"v_lshlrev_b32 v{vL16}, 4, v{L}")
    fAct = [[R.a(4, 4) for m in range(4)] for b in range(3)]
    fW = [[R.a(4, 4) for c in range(5)] for b in range(2)]
    acc = [R.a(4, 4) for c in range(5)]
    xres = R.a(12, 4)
    vRd = R.a()
    sWso, sAso, sM = 25, 26, 27
    e(f"s_mul_i32 s{sWso}, s{sW}, {40960 if NATURAL else 5120}")
    e(f"s_mul_i32 s{sM}, s{sW}, 5120")
    e(f"s_lshl_b32 s{sAso}, s{sPAR}, 10")
    if NATURAL:
        vWc = [R.a() for _ in range(5)]
        vWo = [R.a() for _ in range(5)]
        vWl = [R.a() for _ in range(5)]
        sSTR = 30
        e(f"s_mov_b32 s{sSTR}, {8*40960}")
        e(f"s_mul_i32 s6, s{sCB}, 160")
        e("s_mov_b32 s4, 6554")
        for j in range(5):
            sub = 1024 * j if j < 4 else 0
            e(f"v_add_u32 v{t[0]}, {64*j}, v{L}")
            e(f"v_mul_lo_u32 v{t[1]}, v{t[0]}, s4")
            e(f"v_lshrrev_b32 v{t[1]}, 16, v{t[1]}")
            e(f"v_mul_u32_u24 v{t[2]}, 10, v{t[1]}")
            e(f"v_sub_u32 v{t[2]}, v{t[0]}, v{t[2]}")
            e(f"v_lshlrev_b32 v{t[2]}, 4, v{t[2]}")
            e(f"v_add_u32 v{t[2]}, s6, v{t[2]}")
            if sub:
                e(f"v_subrev_u32 v{t[2]}, {sub}, v{t[2]}")
            e(f"v_mul_u32_u24 v{t[3]}, 1280, v{t[1]}")
            e(f"v_add_u32 v{vWc[j]}, v{t[3]}, v{t[2]}")
            e(f"v_lshrrev_b32 v{t[3]}, 4, v{t[1]}")
            e(f"v_lshl_add_u32 v{t[3]}, v{t[3]}, 2, v{t[1]}")
            e(f"v_mul_u32_u24 v{t[3]}, 1280, v{t[3]}")
            e(f"v_add_u32 v{vWo[j]}, v{t[3]}, v{t[2]}")
            e(f"v_lshrrev_b32 v{t[3]}, 4, v{t[1]}")
            e(f"v_lshlrev_b32 v{t[3]}, 2, v{t[3]}")
            e(f"v_bfe_u32 v{t[4]}, v{t[1]}, 2, 1")
            e(f"v_lshl_add_u32 v{t[3]}, v{t[4]}, 1, v{t[3]}")
            e(f"v_bfe_u32 v{t[4]}, v{t[1]}, 3, 1")
            e(f"v_add_u32 v{t[3]}, v{t[3]}, v{t[4]}")
            e(f"v_mul_u32_u24 v{t[3]}, 20, v{t[3]}")
            e(f"v_and_b32 v{t[4]}, 3, v{t[1]}")
            e(f"v_add3_u32 v{t[3]}, v{t[3]}, v{t[4]}, 16")
            e(f"v_mul_u32_u24 v{t[3]}, 1280, v{t[3]}")
            e(f"v_add_u32 v{vWl[j]}, v{t[3]}, v{t[2]}")

    def wswitch(c):
        for (cc, lo, vs, first, stride) in ((6, 54, vWo, True, 51200), (8, 70, vWl, False, 204800)):
            if c in (cc, cc + 1):
                lab = e.newlab("k3sw")
                e(f"s_cmp_ge_u32 s{sW}, 6")
                e(f"s_cbranch_scc{'0' if c == cc else '1'} {lab}")
                if first:
                    srd(e, SRDW, S_WO, 0, WO_SZ)
                e(f"s_add_u32 s{sWso}, s{sW}, {(8*c - lo) & 0xffffffff}")
                e(f"s_mul_i32 s{sWso}, s{sWso}, {stride}")
                e(f"s_mov_b32 s{sSTR}, {8*stride}")
                for j in range(5):
                    e(f"v_mov_b32 v{vWc[j]}, v{vs[j]}")
                e.lab(lab)

    def issue(c):
        b = c % 3
        if NATURAL:
            wswitch(c)
            if c == 9:
                e(f"s_cmp_ge_u32 s{sW}, 2")
                e(f"s_cselect_b32 s{sWso}, 0, s{sWso}")
            e(f"s_add_u32 m0, s{sM}, {b*SLOT}")
            e("s_nop 0")
            for i in range(4):
                e(f"buffer_load_dwordx4 v{vWc[i]}, s[{SRDW}:{SRDW+3}], s{sWso} offen offset:{1024*i} lds")
            e(f"s_add_u32 m0, s{sM}, {b*SLOT+4096}")
            e("s_nop 0")
            e(f"buffer_load_dwordx4 v{vWc[4]}, s[{SRDW}:{SRDW+3}], s{sWso} offen lds")
            e(f"s_add_u32 s{sWso}, s{sWso}, s{sSTR}")
        else:
            e(f"s_add_u32 m0, s{sM}, {b*SLOT}")
            e(f"s_add_u32 s4, s{sWso}, 4096")
            for i in range(4):
                e(f"buffer_load_dwordx4 v{vL16}, s[{SRDW}:{SRDW+3}], s{sWso} offen offset:{1024*i} lds")
            e(f"s_add_u32 m0, s{sM}, {b*SLOT+4096}")
            e(f"s_add_u32 s{sWso}, s{sWso}, {8*5120}")
            e(f"buffer_load_dwordx4 v{vL16}, s[{SRDW}:{SRDW+3}], s4 offen lds")
        for m in range(4):
            off = 2048 * m
            if off < 4096:
                e(f"buffer_load_dwordx4 v[{fAct[b][m]}:{fAct[b][m]+3}], v{vL16}, s[{SRDA}:{SRDA+3}], s{sAso} offen offset:{off}")
            else:
                if m == 2:
                    e(f"s_add_u32 s5, s{sAso}, 4096")
                e(f"buffer_load_dwordx4 v[{fAct[b][m]}:{fAct[b][m]+3}], v{vL16}, s[{SRDA}:{SRDA+3}], s5 offen offset:{off-4096}")
        e(f"s_add_u32 s{sAso}, s{sAso}, 8192")

    issue(0)
    issue(1)
    srd(e, SRDX, S_XP, 0, X_SZ)
    srd(e, SRDO, S_OUT, 0, X_SZ)
    vOA = R.a()
    e(f"s_lshl_b32 s4, s{sTB}, 6")
    e(f"s_lshl_b32 s5, s{sU}, 4")
    e(f"s_add_u32 s4, s4, s5")
    e(f"s_mul_i32 s4, s4, 1280")
    e(f"s_mul_i32 s5, s{sCB}, 160")
    e(f"s_add_u32 s4, s4, s5")
    e(f"v_and_b32 v{t[0]}, 15, v{L}")
    e(f"v_mul_u32_u24 v{t[0]}, 1280, v{t[0]}")
    e(f"v_lshrrev_b32 v{t[1]}, 4, v{L}")
    e(f"v_mul_u32_u24 v{t[1]}, 40, v{t[1]}")
    e(f"v_add3_u32 v{vOA}, v{t[0]}, v{t[1]}, s4")
    e(f"s_mul_i32 s4, s{sPAR}, 5120")
    if NATURAL:
        e(f"v_lshrrev_b32 v{t[0]}, 5, v{L}")
        e(f"v_bfe_u32 v{t[1]}, v{L}, 4, 1")
        e(f"v_bfe_u32 v{t[2]}, v{L}, 2, 2")
        e(f"v_lshl_add_u32 v{t[2]}, v{t[1]}, 2, v{t[2]}")
        e(f"v_lshl_add_u32 v{t[2]}, v{t[0]}, 4, v{t[2]}")
        e(f"v_mul_u32_u24 v{t[2]}, 160, v{t[2]}")
        e(f"v_and_b32 v{t[3]}, 3, v{L}")
        e(f"v_mul_u32_u24 v{t[3]}, 40, v{t[3]}")
        e(f"v_add3_u32 v{vRd}, v{t[2]}, v{t[3]}, s4")
    else:
        e(f"v_add_u32 v{vRd}, s4, v{vL16}")
    vRd2 = R.a()
    e(f"v_add_u32 v{vRd2}, {SLOT}, v{vRd}")
    vRd3 = R.a()
    e(f"v_add_u32 v{vRd3}, {2*SLOT}, v{vRd}")
    rdb = [vRd, vRd2, vRd3]
    for c in range(5):
        for r in range(4):
            e(f"v_mov_b32 v{acc[c]+r}, 0")
    NCH = 10
    for c in range(NCH):
        b = c % 3
        e.c(f"chunk {c}")
        e(f"s_waitcnt vmcnt({9 if c < NCH-1 else 0}) lgkmcnt(0)")
        e("s_barrier")
        if c == 0: stamp(e, 2)
        if c == 5: stamp(e, 4)
        if c + 2 < NCH:
            issue(c + 2)
        if c == NCH - 2:
            pass
        nm = 4 if c < NCH - 1 else 1
        def rdw(bi, mm):
            for c5 in range(5):
                f = fW[bi][c5]
                if NATURAL:
                    e(f"ds_read_b64_tr_b16 v[{f}:{f+1}], v{rdb[b]} offset:{10240*mm+8*c5}")
                    e(f"ds_read_b64_tr_b16 v[{f+2}:{f+3}], v{rdb[b]} offset:{10240*mm+8*c5+1280}")
                else:
                    e(f"ds_read_b128 v[{f}:{f+3}], v{rdb[b]} offset:{10240*mm+1024*c5}")
        rdw(0, 0)
        for m in range(nm):
            if m + 1 < nm:
                rdw((m + 1) & 1, m + 1)
                e(f"s_waitcnt lgkmcnt({10 if NATURAL else 5})")
            else:
                e("s_waitcnt lgkmcnt(0)")
            for c5 in range(5):
                w_, a_ = fW[m & 1][c5], fAct[b][m]
                e(f"v_mfma_f32_16x16x32_bf16 v[{acc[c5]}:{acc[c5]+3}], v[{w_}:{w_+3}], v[{a_}:{a_+3}], v[{acc[c5]}:{acc[c5]+3}]")
    stamp(e, 3)
    e(f"buffer_load_dwordx4 v[{xres}:{xres+3}], v{vOA}, s[{SRDX}:{SRDX+3}], 0 offen")
    e(f"buffer_load_dwordx4 v[{xres+4}:{xres+7}], v{vOA}, s[{SRDX}:{SRDX+3}], 0 offen offset:16")
    e(f"buffer_load_dwordx2 v[{xres+8}:{xres+9}], v{vOA}, s[{SRDX}:{SRDX+3}], 0 offen offset:32")
    e("s_barrier")
    e(f"s_mul_i32 s4, s{sU}, 5120")
    e(f"v_add_u32 v{t[0]}, s4, v{vL16}")
    e(f"s_cmp_eq_u32 s{sPAR}, 0")
    e("s_cbranch_scc1 k3_lo")
    e("s_nop 7")
    for c5 in range(5):
        e(f"ds_write_b128 v{t[0]}, v[{acc[c5]}:{acc[c5]+3}] offset:{1024*c5}")
    e("s_waitcnt lgkmcnt(0)")
    e("s_barrier")
    e("s_waitcnt vmcnt(0)")
    stamp(e, 7)
    stamp(e, 5)
    stamp(e, 6, True)
    stamp_dump(e, 8, 2, sW, S_WS)
    e("s_endpgm")
    e.lab("k3_lo")
    e("s_barrier")
    for c5 in range(5):
        e(f"ds_read_b128 v[{fW[0][c5]}:{fW[0][c5]+3}], v{t[0]} offset:{1024*c5}")
    e("s_waitcnt vmcnt(0) lgkmcnt(0)")
    pk = fW[1][0]
    for c5 in range(5):
        for r in range(4):
            e(f"v_add_f32 v{acc[c5]+r}, v{acc[c5]+r}, v{fW[0][c5]+r}")
        for hh in range(2):
            xr = xres + 2 * c5 + hh
            e(f"v_lshlrev_b32 v{t[1]}, 16, v{xr}")
            e(f"v_and_b32 v{t[2]}, 0xffff0000, v{xr}")
            e(f"v_add_f32 v{acc[c5]+2*hh}, v{acc[c5]+2*hh}, v{t[1]}")
            e(f"v_add_f32 v{acc[c5]+2*hh+1}, v{acc[c5]+2*hh+1}, v{t[2]}")
            e(f"v_cvt_pk_bf16_f32 v{pk+2*c5+hh}, v{acc[c5]+2*hh}, v{acc[c5]+2*hh+1}")
    e(f"buffer_store_dwordx4 v[{pk}:{pk+3}], v{vOA}, s[{SRDO}:{SRDO+3}], 0 offen")
    e(f"buffer_store_dwordx4 v[{pk+4}:{pk+7}], v{vOA}, s[{SRDO}:{SRDO+3}], 0 offen offset:16")
    e(f"buffer_store_dwordx2 v[{pk+8}:{pk+9}], v{vOA}, s[{SRDO}:{SRDO+3}], 0 offen offset:32")
    stamp(e, 7)
    e("s_waitcnt vmcnt(0)")
    stamp(e, 5)
    stamp(e, 6, True)
    stamp_dump(e, 8, 2, sW, S_WS)
    e.lab("k3_exit")
    e("s_endpgm")
    return R.hi
```

```python
from common import *
import struct

def f2u(x):
    return struct.unpack("<I", struct.pack("<f", x))[0]

R_RING = 5
XSLOT = 8192
XR = 122880
P1_LDS = XR + R_RING * XSLOT
CSL = 0
RSL = 1536
NML = 2048

CSG_OFF = 0x1800000
STG_REL = 0x10000
PCS_REL = 0x20000
CSG_SZ = 0x100000

S_XP, S_WQKV, S_WO, S_GATE, S_UP, S_DOWN, S_OUT, S_DBG, S_WS = 40, 42, 44, 48, 50, 52, 54, 56, 58
SRDX, SRDW, SRDO = 8, 12, 16
sTB, sROLE, sW, sCNT, sWso, sXso, sWM0, sXM0 = 20, 21, 22, 23, 24, 25, 27, 28
sNONCE = 29
sT0, sT1, sT2, sT3 = 32, 33, 34, 35
sA, sB = 36, 37
sMASK = 39
sTRIG = 60
sMINE, sPOFF = 26, 30
SRDC, SRDD = 72, 76
EXP = set()


def load_ptrs(e):
    e("s_load_dwordx16 s[40:55], s[0:1], 0")
    e("s_load_dwordx4 s[56:59], s[0:1], 64")


def prologue(e, pfx="k1"):
    e("s_cmp_ge_u32 s2, 256")
    e(f"s_cbranch_scc1 {pfx}_exit")
    load_ptrs(e)
    e("v_and_b32 v1, 63, v0")
    e("v_lshrrev_b32 v2, 6, v0")
    e("s_and_b32 s3, s2, 7")
    e("s_lshr_b32 s4, s2, 3")
    e(f"v_readfirstlane_b32 s{sW}, v2")
    e("s_and_b32 s5, s3, 1")
    e("s_lshl_b32 s5, s5, 3")
    e("s_and_b32 s6, s4, 7")
    e(f"s_add_u32 s{sTB}, s5, s6")
    e("s_lshr_b32 s5, s3, 1")
    e("s_lshl_b32 s5, s5, 2")
    e("s_lshr_b32 s6, s4, 3")
    e(f"s_add_u32 s{sROLE}, s5, s6")
    e(f"s_add_u32 s{sROLE}, s{sROLE}, 15")
    e(f"s_and_b32 s{sROLE}, s{sROLE}, 15")
    e(f"s_mov_b32 s{sMASK}, 0xffff0000")
    e(f"s_cmp_eq_u32 s{sROLE}, 15")
    e(f"s_cbranch_scc1 {pfx}_helper")
    e(f"s_cmp_ge_u32 s{sROLE}, 6")
    e(f"s_cbranch_scc1 {pfx}_ffn")
    e(f"s_cmp_ge_u32 s{sROLE}, 4")
    e(f"s_cbranch_scc1 {pfx}_v")
    e(f"s_branch {pfx}_qk")


def gemm(e, cls, store_sc="", finish=None, pfx="k1"):
    ffn = cls == "ffn"
    RR = R_RING
    NSTG = 20
    NT = 3 if ffn else 5
    NU = 2 if ffn else 1
    WSLOT = 24576 if ffn else 20480
    WROW = 384 if ffn else 640
    GROW = 3456 if ffn else 3840
    NCS = 384 if ffn else 320
    R = Regs(2, 256, "v")
    t = [R.a() for _ in range(8)]
    vWs = [R.a() for _ in range(3)]
    vXs = R.a()
    nset = 2 if RR > 3 else 1
    NWB = 3 if ffn else 2
    vWA = [[R.a() for i in range(NWB)] for st in range(nset)]
    vXB = [R.a() for _ in range(2)]
    vG = R.a(2, 2)
    vN = R.a()
    vGA = R.a()
    vSTA = R.a()
    vPA = R.a()
    vST = R.a(4, 4)
    vONE = R.a(4, 4)
    aCS = [R.a(4, 4) for i in range(NT)]
    fA = [[R.a(4, 4) for i in range(NT)] for b in range(2)]
    fB = [[R.a(4, 4) for u in range(NU)] for b in range(2)]
    fS = R.a(4, 4)
    acc = [[R.a(16, 4) for u in range(NU)] for i in range(NT)]
    L = 1

    e.lab(f"{pfx}_{cls}")
    e.c(f"---------------- setup {cls} ----------------")
    if ffn:
        e(f"s_and_b32 s{sA}, s{sW}, 1")
        e(f"s_lshr_b32 s{sB}, s{sW}, 1")
    else:
        e(f"s_and_b32 s{sA}, s{sW}, 3")
        e(f"s_lshr_b32 s{sB}, s{sW}, 2")
    if ffn:
        e(f"s_and_b32 s{sT0}, s{sW}, 3")
        e(f"s_lshr_b32 s{sT1}, s{sW}, 2")
        e(f"s_sub_u32 s{sT2}, s{sROLE}, 6")
        e(f"s_mul_i32 s{sT2}, s{sT2}, 384")
        e(f"s_mul_i32 s{sT3}, s{sT0}, {8*GROW}")
        e(f"s_add_u32 s{sT2}, s{sT2}, s{sT3}")
        e(f"s_lshl_b32 s{sT3}, s{sT1}, 2")
        e(f"s_mul_i32 s4, s{sT0}, 3072")
        e(f"s_mul_i32 s5, s{sT1}, 12288")
        e(f"s_add_u32 s{sWM0}, s4, s5")
        nper, magic = 24, 2731
        e(f"v_mov_b32 v{t[4]}, v{L}")
    else:
        e(f"s_mul_i32 s4, s{sW}, 3")
        e(f"s_lshl_b32 s5, s{sW}, 1")
        e(f"s_add_u32 s5, s5, 4")
        e(f"s_cmp_ge_u32 s{sW}, 4")
        e(f"s_cselect_b32 s4, s5, s4")
        e(f"s_lshl_b32 s{sWM0}, s4, 10")
        e(f"s_lshl_b32 s4, s4, 6")
        e(f"s_mul_i32 s{sT2}, s{sROLE}, 640")
        nper, magic = 40, 1639
        e(f"v_add_u32 v{t[4]}, s4, v{L}")
    e(f"s_mov_b32 s4, {magic}")
    e(f"s_mov_b32 s5, {GROW}")
    for i in range(3):
        e(f"v_add_u32 v{t[0]}, {64*i}, v{t[4]}")
        e(f"v_mul_lo_u32 v{t[1]}, v{t[0]}, s4")
        e(f"v_lshrrev_b32 v{t[1]}, 16, v{t[1]}")
        e(f"v_mul_u32_u24 v{t[2]}, {nper}, v{t[1]}")
        e(f"v_sub_u32 v{t[2]}, v{t[0]}, v{t[2]}")
        e(f"v_bfe_u32 v{t[3]}, v{t[1]}, 1, 1")
        if ffn:
            e(f"v_lshl_or_b32 v{t[3]}, v{t[3]}, 1, s{sT3}")
        else:
            e(f"v_lshlrev_b32 v{t[3]}, 2, v{t[3]}")
        e(f"v_xor_b32 v{t[2]}, v{t[2]}, v{t[3]}")
        e(f"v_mul_lo_u32 v{t[1]}, v{t[1]}, s5")
        e(f"v_lshl_add_u32 v{t[1]}, v{t[2]}, 4, v{t[1]}")
        e(f"v_add_u32 v{t[1]}, s{sT2}, v{t[1]}")
        e(f"v_subrev_u32 v{vWs[i]}, {1024*i}, v{t[1]}")
    e(f"s_lshl_b32 s4, s{sTB}, 7")
    e(f"s_lshl_b32 s5, s{sW}, 4")
    e(f"s_add_u32 s4, s4, s5")
    e(f"s_mul_i32 s4, s4, 1280")
    e(f"v_lshrrev_b32 v{t[0]}, 2, v{L}")
    e(f"v_bfe_u32 v{t[1]}, v{L}, 4, 2")
    e(f"v_and_b32 v{t[2]}, 3, v{L}")
    e(f"v_xor_b32 v{t[2]}, v{t[2]}, v{t[1]}")
    e(f"v_mul_u32_u24 v{t[0]}, 1280, v{t[0]}")
    e(f"v_lshl_add_u32 v{t[0]}, v{t[2]}, 4, v{t[0]}")
    e(f"v_add_u32 v{vXs}, s4, v{t[0]}")
    e(f"s_lshl_b32 s{sXM0}, s{sW}, 10")
    e(f"s_add_u32 s{sXM0}, s{sXM0}, {XR}")
    ROT = 4 if 'rot4' in EXP else 2
    if ROT == 2:
        e(f"s_lshr_b32 s6, s{sTB}, 3")
        e(f"s_mul_i32 s6, s6, 10")
        e(f"s_and_b32 s4, s{sTB}, 7")
        e(f"s_add_u32 s5, s4, 8")
        e(f"s_cmp_lt_u32 s4, 2")
        e(f"s_cselect_b32 s5, s5, 99")
    else:
        e(f"s_lshr_b32 s6, s{sTB}, 2")
        e(f"s_mul_i32 s6, s6, 5")
        e(f"s_and_b32 s4, s{sTB}, 3")
        e(f"s_cmp_eq_u32 s4, 0")
        e(f"s_cselect_b32 s5, 4, 99")
    e(f"s_mul_i32 s{sWso}, s6, {32*GROW}")
    e(f"s_lshl_b32 s{sXso}, s6, 6")
    nit0 = NSTG // RR - 1
    for sl in range(RR):
        e(f"s_mov_b32 s{sTRIG+sl}, 99")
        for pr in (4, 5):
            e(f"s_cmp_eq_u32 s{pr}, {sl}")
            e(f"s_cselect_b32 s{sTRIG+sl}, {nit0}, s{sTRIG+sl}")
            e(f"s_cmp_eq_u32 s{pr}, {sl+5}")
            e(f"s_cselect_b32 s{sTRIG+sl}, {nit0-1}, s{sTRIG+sl}")
    e(f"s_lshl_b32 s5, s{sROLE}, 4")
    e(f"s_add_u32 s4, s{sTB}, s5")
    e(f"s_mul_i32 s4, s4, 12")
    e(f"s_mul_i32 s5, s{sB}, {NT}")
    e(f"s_add_u32 s4, s4, s5")
    e(f"s_lshl_b32 s4, s4, 8")
    e(f"s_add_u32 s{sPOFF}, s4, {PCS_REL}")
    if ffn:
        e(f"s_cmp_eq_u32 s{sA}, 0")
        e(f"s_cselect_b32 s{sMINE}, 3, 4")
    else:
        e(f"s_lshl_b32 s{sMINE}, 1, s{sA}")
        e(f"s_cmp_eq_u32 s{sA}, 0")
        e(f"s_cselect_b32 s{sMINE}, 17, s{sMINE}")
    e("s_waitcnt lgkmcnt(0)")
    stamp(e, 0, True)
    stamp(e, 1)
    srd(e, SRDX, S_XP, 0, X_SZ)
    if ffn:
        e(f"s_cmp_ge_u32 s{sW}, 4")
        e(f"s_cselect_b32 s{SRDW}, s{S_UP}, s{S_GATE}")
        e(f"s_cselect_b32 s{SRDW+1}, s{S_UP+1}, s{S_GATE+1}")
        e(f"s_mov_b32 s{SRDW+2}, {hex(WG_SZ)}")
        e(f"s_mov_b32 s{SRDW+3}, 0x00020000")
    else:
        srd(e, SRDW, S_WQKV, 0, WQKV_SZ)

    def dma_group(slot, var):
        nw = 3 if (ffn or var == 0) else 2
        hot = 'hot' in EXP
        it = [[f"s_add_u32 m0, s{sXM0}, {slot*XSLOT}", "s_nop 0",
               f"buffer_load_dwordx4 v{vXs}, s[{SRDX}:{SRDX+3}], s{sXso} offen lds"]]
        it.append([f"s_add_u32 m0, s{sWM0}, {slot*WSLOT}", f"s_add_u32 s{sXso}, s{sXso}, {0 if hot else 64}",
                   f"buffer_load_dwordx4 v{vWs[0]}, s[{SRDW}:{SRDW+3}], s{sWso} offen lds"])
        for i in range(1, nw):
            it.append([f"buffer_load_dwordx4 v{vWs[i]}, s[{SRDW}:{SRDW+3}], s{sWso} offen offset:{1024*i} lds"])
        it[-1] += [f"s_add_u32 s{sWso}, s{sWso}, {0 if hot else 32*GROW}",
                   f"s_cmp_eq_u32 s{sXso}, 1280",
                   f"s_cselect_b32 s{sXso}, 0, s{sXso}",
                   f"s_cselect_b32 s{sWso}, 0, s{sWso}"]
        return it

    def gsize(var):
        return 4 if (ffn or var == 0) else 3

    setup = []
    q = setup.append
    g, r4, c4, bb = t[0], t[1], t[2], t[3]
    q(f"v_lshrrev_b32 v{g}, 4, v{L}")
    q(f"v_bfe_u32 v{r4}, v{L}, 2, 2")
    q(f"v_and_b32 v{c4}, 3, v{L}")
    q(f"v_bfe_u32 v{bb}, v{L}, 3, 1")
    q(f"v_lshrrev_b32 v{t[4]}, 1, v{g}")
    q(f"v_lshl_add_u32 v{t[4]}, v{t[4]}, 3, v{r4}")
    q(f"v_mul_u32_u24 v{t[4]}, {WROW}, v{t[4]}")
    q(f"v_and_b32 v{t[5]}, 1, v{g}")
    if ffn:
        q(f"v_mul_u32_u24 v{t[6]}, 12288, v{t[5]}")
        q(f"v_add_u32 v{t[4]}, v{t[4]}, v{t[6]}")
        q(f"v_and_b32 v{t[6]}, 1, v{c4}")
        q(f"v_lshl_add_u32 v{t[4]}, v{t[6]}, 3, v{t[4]}")
        q(f"v_lshlrev_b32 v{t[5]}, 2, v{t[5]}")
        q(f"v_lshl_add_u32 v{t[5]}, v{bb}, 1, v{t[5]}")
        q(f"v_lshrrev_b32 v{t[6]}, 1, v{c4}")
        q(f"s_mul_i32 s4, s{sB}, 6")
        for i in range(3):
            q(f"v_add3_u32 v{t[7]}, v{t[6]}, s4, {2*i}")
            q(f"v_xor_b32 v{t[7]}, v{t[7]}, v{t[5]}")
            q(f"v_lshl_add_u32 v{vWA[0][i]}, v{t[7]}, 4, v{t[4]}")
            if nset > 1:
                q(f"v_add_u32 v{vWA[1][i]}, {3*WSLOT}, v{vWA[0][i]}")
    else:
        q(f"v_lshl_add_u32 v{t[4]}, v{t[5]}, 5, v{t[4]}")
        q(f"v_lshl_add_u32 v{t[4]}, v{c4}, 3, v{t[4]}")
        q(f"s_mul_i32 s4, s{sB}, 320")
        q(f"v_add_u32 v{t[4]}, s4, v{t[4]}")
        q(f"v_lshlrev_b32 v{t[5]}, 6, v{bb}")
        q(f"v_sub_u32 v{t[6]}, 0, v{t[5]}")
        q(f"s_cmp_eq_u32 s{sB}, 0")
        q(f"s_cselect_b64 vcc, -1, 0")
        q(f"v_cndmask_b32 v{t[7]}, v{t[6]}, v{t[5]}, vcc")
        q(f"v_add_u32 v{vWA[0][0]}, v{t[4]}, v{t[7]}")
        q(f"v_sub_u32 v{vWA[0][1]}, v{t[4]}, v{t[7]}")
        if nset > 1:
            q(f"v_add_u32 v{vWA[1][0]}, {3*WSLOT}, v{vWA[0][0]}")
            q(f"v_add_u32 v{vWA[1][1]}, {3*WSLOT}, v{vWA[0][1]}")
    q(f"v_and_b32 v{t[0]}, 31, v{L}")
    q(f"v_bfe_u32 v{t[1]}, v{L}, 2, 2")
    q(f"v_lshrrev_b32 v{t[2]}, 5, v{L}")
    q(f"s_lshl_b32 s5, s{sA}, {12 if ffn else 11}")
    q(f"s_add_u32 s5, s5, {XR}")
    q(f"v_lshlrev_b32 v{t[0]}, 6, v{t[0]}")
    q(f"v_add_u32 v{t[0]}, s5, v{t[0]}")
    q(f"v_xor_b32 v{t[3]}, v{t[2]}, v{t[1]}")
    q(f"v_lshl_add_u32 v{vXB[0]}, v{t[3]}, 4, v{t[0]}")
    q(f"v_xor_b32 v{vXB[1]}, 32, v{vXB[0]}")
    q(f"v_min_u32 v{t[0]}, {NCS-1}, v0")
    q(f"v_lshlrev_b32 v{vGA}, 2, v{t[0]}")
    q(f"v_and_b32 v{t[0]}, 127, v0")
    q(f"v_lshlrev_b32 v{vSTA}, 2, v{t[0]}")
    q(f"v_and_b32 v{t[0]}, 15, v{L}")
    q(f"v_lshlrev_b32 v{vPA}, 4, v{t[0]}")
    q(f"v_and_b32 v{t[0]}, 31, v{L}")
    q(f"v_mov_b32 v{t[1]}, 0x3f803f80")
    q(f"v_cmp_eq_u32 vcc, 0, v{t[0]}")
    q(f"v_cmp_eq_u32 s[4:5], 17, v{t[0]}")
    q("s_nop 1")
    q("s_or_b64 vcc, vcc, s[4:5]")
    q("s_nop 1")
    q(f"v_cndmask_b32 v{vONE}, 0, v{t[1]}, vcc")
    for r in range(1, 4):
        q(f"v_mov_b32 v{vONE+r}, v{vONE}")
    for i in range(NT):
        for r in range(4):
            q(f"v_mov_b32 v{aCS[i]+r}, 0")
    zero = [f"v_mov_b32 v{acc[i][u]+r}, 0" for i in range(NT) for u in range(NU) for r in range(16)]
    setup_all = setup + zero

    def reads_w(slot, p):
        out = []
        for i in range(NT):
            st_, sl = (1, slot - 3) if slot >= 3 else (0, slot)
            if ffn:
                base = vWA[st_][i]
                off = sl * WSLOT + p * 16 * WROW
            else:
                base = vWA[st_][i & 1]
                off = sl * WSLOT + p * 16 * WROW + 64 * i
            a = fA[p][i]
            out.append([f"ds_read_b64_tr_b16 v[{a}:{a+1}], v{base} offset:{off}",
                        f"ds_read_b64_tr_b16 v[{a+2}:{a+3}], v{base} offset:{off+4*WROW}"])
        return out

    def reads_x(slot, p):
        return [f"ds_read_b128 v[{fB[p][u]}:{fB[p][u]+3}], v{vXB[p]} offset:{slot*XSLOT+2048*u}" for u in range(NU)]

    def read_slots(slot, p):
        rw, rx = reads_w(slot, p), reads_x(slot, p)
        if ffn:
            return [rw[0], [rx[0]], [rx[1]], rw[1], rw[2], []]
        return [rw[0] + rx, rw[1], rw[2], rw[3], rw[4]]

    def mfmas(p):
        out = []
        for i in range(NT):
            for u in range(NU):
                a, b, c = fA[p][i], fB[p][u], acc[i][u]
                if cls == "v":
                    a, b = b, a
                out.append(f"v_mfma_f32_32x32x16_bf16 v[{c}:{c+15}], v[{a}:{a+3}], v[{b}:{b+3}], v[{c}:{c+15}]")
        return out

    NS = NT * NU

    def weave(ms, fl):
        out = []
        for i, m in enumerate(ms):
            out.append(m)
            if i < len(fl):
                out.extend(fl[i])
        return out

    def stage(n, slot, var, fifo, last_group, extra0=None, extra1=None, force_vm=None, mid=None, post=None):
        body = []
        G = gsize(var)
        fl = read_slots(slot, 1)
        fl = [list(x) for x in fl]
        if var == 1 and 'nodma' not in EXP:
            gid = None if n is None else n + RR - 2
            if gid is None or gid <= last_group:
                items = dma_group((slot - 2) % RR, var)
                for k_, it in enumerate(items):
                    fl[min(NS - 1, 1 + k_)] += it
                fifo.append((gid, len(items)))
        if extra0:
            fl = merge(fl, extra0)
            fifo.append(("cs", 2))
        body += weave(mfmas(0), fl)
        if mid: body += mid
        if n is None:
            vm = G * (RR - 3)
        else:
            vm = 0
            seen = False
            for gid, cnt in fifo:
                if seen: vm += cnt
                if gid == n + 1: seen = True
            assert seen or n == NSTG - 1
            if force_vm is not None: vm = force_vm
        if n is None or n < NSTG - 1:
            if 'nodma' not in EXP:
                body.append(f"s_waitcnt vmcnt({vm})")
            body.append("s_barrier")
        if post: body += post
        nslot = (slot + 1) % RR
        if n is None or n < NSTG - 1:
            fl = [list(x) for x in read_slots(nslot, 0)]
        else:
            fl = [[] for _ in range(NS)]
        if var == 0 and 'nodma' not in EXP:
            gid = None if n is None else n + RR - 1
            if gid is None or gid <= last_group:
                items = dma_group((slot - 1) % RR, var)
                for k_, it in enumerate(items):
                    fl[min(NS - 1, 1 + k_)] += it
                fifo.append((gid, len(items)))
        if extra1:
            fl = merge(fl, extra1)
        body += weave(mfmas(1), fl)
        return body

    gl_load = [f"v_lshlrev_b32 v{t[1]}, 1, v{vGA}",
               f"v_lshlrev_b32 v{t[2]}, 2, v{vSTA}",
               f"s_mul_i32 s4, s{sROLE}, {384*8}",
               f"s_lshl_b32 s5, s{sTB}, 11",
               f"s_add_u32 s5, s5, {STG_REL}",
               f"buffer_load_dwordx2 v[{vG}:{vG+1}], v{t[1]}, s[{SRDC}:{SRDC+3}], s4 offen sc1",
               f"buffer_load_dwordx4 v[{vST}:{vST+3}], v{t[2]}, s[{SRDC}:{SRDC+3}], s5 offen sc1"]
    gl_test = [f"v_cmp_ne_u32 vcc, s{sNONCE}, v{vG+1}",
               f"v_cmp_ne_u32 s[6:7], s{sNONCE}, v{vST+2}",
               "s_nop 1",
               "s_or_b64 vcc, vcc, s[6:7]"]

    for var in range(2):
        lv = f"{pfx}_{cls}_v{var}"
        if var == 0:
            e(f"s_cmp_ge_u32 s{sW}, 4")
            e(f"s_cbranch_scc1 {pfx}_{cls}_v1")
        else:
            e.lab(lv)
        ngp = RR - 1 if var == 0 else RR - 2
        chunks = [setup_all[k * len(setup_all) // ngp:(k + 1) * len(setup_all) // ngp] for k in range(ngp)]
        fifo = []
        for gi in range(ngp):
            for it in dma_group(gi, var):
                for x in it: e(x)
            fifo.append((gi, gsize(var)))
            for x in chunks[gi]: e(x)
        srd(e, SRDD, S_DBG, 0, 256)
        srd(e, SRDC, S_WS, CSG_OFF, CSG_SZ)
        vm0 = gsize(var) * (ngp - 1)
        e(f"s_waitcnt vmcnt({vm0})")
        e("s_barrier")
        stamp(e, 2)
        pro = []
        rs0 = read_slots(0, 0)
        for x in rs0: pro += x
        pro, pend = autowait(pro, [])
        for x in pro: e(x)
        nit = NSTG // RR - 1
        e(f"s_mov_b32 s{sCNT}, {nit}")
        if var == 1 and 'noprio' not in EXP:
            e("s_setprio 1")
        loop = f"{pfx}_{cls}_loop{var}"
        e.lab(loop)
        body = []
        ff = []
        ool = []
        def cs_block(lab):
            b = [f"{lab}:", "s_waitcnt lgkmcnt(0)"]
            for i in range(NT):
                b += [f"s_bitcmp1_b32 s{sMINE}, {i}", f"s_cbranch_scc0 {lab}_s{i}"]
                for p in range(2):
                    b.append(f"v_mfma_f32_16x16x32_bf16 v[{aCS[i]}:{aCS[i]+3}], v[{vONE}:{vONE+3}], v[{fA[p][i]}:{fA[p][i]+3}], v[{aCS[i]}:{aCS[i]+3}]")
                b.append(f"{lab}_s{i}:")
            b.append(f"s_branch {lab}_back")
            return b
        for st in range(RR):
            mid = post = ex0 = None
            lab = e.newlab("k1cs")
            mid = [f"s_cmp_eq_u32 s{sCNT}, s{sTRIG+st}", f"s_cbranch_scc1 {lab}", f"{lab}_back:"]
            ool += cs_block(lab)
            if st == 2:
                lab = e.newlab("k1nl")
                mid += [f"s_cmp_eq_u32 s{sCNT}, {nit}", f"s_cbranch_scc0 {lab}",
                        f"buffer_load_dword v{vN}, off, s[{SRDD}:{SRDD+3}], 0 sc1", f"{lab}:"]
            if st == 4:
                lab = e.newlab("k1pub")
                post = [f"s_cmp_eq_u32 s{sCNT}, {nit if 'rot4' in EXP else nit-1}", f"s_cbranch_scc1 {lab}", f"{lab}_back:"]
                ool += [f"{lab}:",
                        "s_nop 7",
                        f"s_mov_b32 s4, 200000",
                        f"{lab}_n:",
                        f"v_readfirstlane_b32 s{sNONCE}, v{vN}",
                        f"s_cmp_lg_u32 s{sNONCE}, 0",
                        f"s_cbranch_scc1 {lab}_ok",
                        "s_sleep 2",
                        f"buffer_load_dword v{vN}, off, s[{SRDD}:{SRDD+3}], 0 sc1",
                        "s_waitcnt vmcnt(0)",
                        "s_sub_u32 s4, s4, 1",
                        "s_cmp_lg_u32 s4, 0",
                        f"s_cbranch_scc1 {lab}_n",
                        f"{lab}_ok:",
                        "s_mov_b64 exec, 0xffff"]
                for i in range(NT):
                    ool += [f"s_bitcmp1_b32 s{sMINE}, {i}", f"s_cbranch_scc0 {lab}_s{i}",
                            f"v_mov_b32 v{aCS[i]+2}, s{sNONCE}",
                            f"v_mov_b32 v{aCS[i]+3}, s{sNONCE}",
                            f"buffer_store_dwordx4 v[{aCS[i]}:{aCS[i]+3}], v{vPA}, s[{SRDC}:{SRDC+3}], s{sPOFF} offen offset:{256*i} sc1",
                            f"{lab}_s{i}:"]
                ool += ["s_mov_b64 exec, -1", f"s_branch {lab}_back"]
            body += stage(None, st, var, ff, 99, mid=mid, post=post)
        b1, pend1 = autowait(body, pend)
        b2, pend2 = autowait(body, pend1)
        assert b1 == b2, "loop waits not periodic"
        for x in b1: e(x)
        e(f"s_sub_u32 s{sCNT}, s{sCNT}, 1")
        e(f"s_cmp_lg_u32 s{sCNT}, 0")
        e(f"s_cbranch_scc1 {loop}")
        n0 = NSTG - RR
        hi_g = n0 + RR - 2 if var == 0 else n0 + RR - 3
        ff = [(g_, gsize(var)) for g_ in range(n0 + 1, hi_g + 1)]
        tail = []
        lretry, lback = e.newlab("k1retry"), e.newlab("k1back")
        for st in range(RR):
            n = n0 + st
            ex0 = ex1 = None
            fv = None
            if n == NSTG - 2:
                ex0 = [[] for _ in range(NS)]
                ex0[NS - 1] = gl_load
            if n == NSTG - 1:
                ex1 = [[] for _ in range(NS)]
                ex1[2] = ["s_waitcnt vmcnt(0)"] + gl_test + [
                          (f"s_cbranch_vccnz {lretry}" if 'nowait' not in EXP else "s_nop 0"),
                          f"{lback}:",
                          f"ds_write_b32 v{vGA}, v{vG} offset:{CSL}",
                          f"ds_write_b32 v{vSTA}, v{vST} offset:{RSL}",
                          f"ds_write_b32 v{vSTA}, v{vST+1} offset:{NML}"]
            sb = stage(n, st, var, ff, NSTG - 1, ex0, ex1, fv)
            tail += sb
        tl, pend3 = autowait(tail, pend1)
        for x in tl: e(x)
        e("s_waitcnt lgkmcnt(0)")
        e("s_barrier")
        if var == 0:
            e(f"s_branch {pfx}_{cls}_epi")
        ret = [f"{lretry}:", f"s_mov_b32 s{sCNT}, 200000", f"{lretry}_l:", "s_sleep 2"] + gl_load + [
            "s_waitcnt vmcnt(0)"] + gl_test + [
            f"s_cbranch_vccz {lback}",
            f"s_sub_u32 s{sCNT}, s{sCNT}, 1",
            f"s_cmp_lg_u32 s{sCNT}, 0",
            f"s_cbranch_scc1 {lretry}_l",
            f"s_branch {lback}"]
        if var == 0:
            for x in ret + ool: e(x)
        else:
            e(f"s_branch {pfx}_{cls}_epi")
            for x in ret + ool: e(x)

    e.lab(f"{pfx}_{cls}_epi")
    e("s_setprio 0")
    stamp(e, 3)
    e(f"v_and_b32 v{t[0]}, 31, v{L}")
    e(f"s_lshl_b32 s4, s{sA}, {6 if ffn else 5}")
    e(f"v_add_u32 v{t[0]}, s4, v{t[0]}")
    e(f"v_lshlrev_b32 v{t[0]}, 2, v{t[0]}")
    vNM = [R.a() for _ in range(NU)]
    vRS = [R.a() for _ in range(NU)]
    if cls != "v":
        for u in range(NU):
            e(f"ds_read_b32 v{vNM[u]}, v{t[0]} offset:{128*u+NML}")
            e(f"ds_read_b32 v{vRS[u]}, v{t[0]} offset:{128*u+RSL}")
    h = t[2]
    e(f"v_lshrrev_b32 v{h}, 5, v{L}")
    csa = t[3]
    e(f"s_mul_i32 s4, s{sB}, {NT*128}")
    e(f"v_lshlrev_b32 v{csa}, 4, v{h}")
    e(f"v_add_u32 v{csa}, s4, v{csa}")
    sc = store_sc
    frag0 = fA[0][0]
    nfr = (2 * NT + 2 * NU) * 4 + 4
    assert fS + 4 == frag0 + nfr
    if ffn:
        csr = [frag0, frag0 + 16, R.a(16, 4)]
        assert nfr >= 32
        for i in range(3):
            for a in range(4):
                e(f"ds_read_b128 v[{csr[i]+4*a}:{csr[i]+4*a+3}], v{csa} offset:{CSL+128*i+32*a}")
        srd(e, SRDO, S_WS, ACT_OFF, ACT_SZ)
        e(f"s_lshl_b32 s4, s{sTB}, 3")
        e(f"s_lshl_b32 s5, s{sA}, 2")
        e(f"s_add_u32 s4, s4, s5")
        e(f"s_mul_i32 s4, s4, {ACT_ROW}")
        e(f"s_sub_u32 s5, s{sROLE}, 6")
        e(f"s_mul_i32 s5, s5, 12")
        e(f"s_mul_i32 s6, s{sB}, 3")
        e(f"s_add_u32 s5, s5, s6")
        e(f"s_lshl_b32 s5, s5, 9")
        e(f"s_add_u32 s4, s4, s5")
        e(f"v_bfe_u32 v{t[4]}, v{L}, 4, 1")
        e(f"v_mul_u32_u24 v{t[4]}, {ACT_ROW}, v{t[4]}")
        e(f"v_lshl_add_u32 v{t[4]}, v{h}, 8, v{t[4]}")
        e(f"v_and_b32 v{t[5]}, 15, v{L}")
        e(f"v_lshl_add_u32 v{t[4]}, v{t[5]}, 4, v{t[4]}")
        e(f"v_add_u32 v{t[4]}, s4, v{t[4]}")
        e(f"s_mov_b32 s7, {2*ACT_ROW}")
        body = []
        for u in range(NU):
            body.append(f"v_mul_f32 v{vRS[u]}, v{vRS[u]}, v{vRS[u]}")
        for i in range(3):
            for u in range(2):
                c = acc[i][u]
                tm = csr[i]
                for r in range(16):
                    body.append(f"v_fmac_f32 v{c+r}, v{vNM[u]}, v{tm+r}")
                for r in range(8):
                    body.append(f"v_max_f32 v{c+r}, 0, v{c+r}")
                    body.append(f"v_mul_f32 v{c+8+r}, v{vRS[u]}, v{c+8+r}")
                for r in range(8):
                    body.append(f"v_mul_f32 v{c+r}, v{c+r}, v{c+8+r}")
                p_ = c + 8
                for r in range(4):
                    body.append(f"v_cvt_pk_bf16_f32 v{p_+r}, v{c+2*r}, v{c+2*r+1}")
                so = "0" if u == 0 else "s7"
                body.append(f"buffer_store_dwordx4 v[{p_}:{p_+3}], v{t[4]}, s[{SRDO}:{SRDO+3}], {so} offen offset:{512*i} {sc}")
        pend = [{vNM[0]}, {vRS[0]}, {vNM[1]}, {vRS[1]}] + [set(range(csr[i] + 4 * a, csr[i] + 4 * a + 4)) for i in range(3) for a in range(4)]
        e("s_waitcnt lgkmcnt(12)")
        pend = pend[4:]
        bl, _ = autowait(body, pend)
        for x in bl: e(x)
    elif cls == "qk":
        nbuf = nfr // 16
        tm = [frag0 + 16 * k for k in range(2)]
        for i in range(2):
            for a in range(4):
                e(f"ds_read_b128 v[{tm[i]+4*a}:{tm[i]+4*a+3}], v{csa} offset:{CSL+128*i+32*a}")
        e(f"s_mov_b32 s6, {hex(QB_OFF)}")
        e(f"s_cmp_ge_u32 s{sROLE}, 2")
        e(f"s_cselect_b32 s4, {hex(KB_OFF)}, s6")
        e(f"s_cselect_b32 s5, 1.0, {hex(f2u(20**-0.5*1.4426950408889634))}")
        srd(e, SRDO, S_WS, "s4", QK_SZ)
        e(f"s_mov_b32 s31, s5")
        e(f"s_and_b32 s4, s{sROLE}, 1")
        e(f"s_lshl_b32 s4, s4, 3")
        e(f"s_lshl_b32 s5, s{sB}, 2")
        e(f"s_add_u32 s4, s4, s5")
        e(f"s_lshl_b32 s4, s4, 6")
        e(f"s_lshl_b32 s5, s{sTB}, 2")
        e(f"s_add_u32 s4, s4, s5")
        e(f"s_add_u32 s4, s4, s{sA}")
        e(f"s_mul_i32 s4, s4, 2560")
        e(f"v_lshlrev_b32 v{t[4]}, 4, v{L}")
        e(f"v_add_u32 v{t[4]}, s4, v{t[4]}")
        e(f"v_lshlrev_b32 v{t[5]}, 3, v{L}")
        e(f"v_add_u32 v{t[5]}, s4, v{t[5]}")
        e(f"v_add_u32 v{t[5]}, 2048, v{t[5]}")
        stg = R.a(40, 4)
        def dst(G):
            p, k = divmod(G, 5)
            base = stg + 10 * p
            return {0: base, 1: base + 2, 2: base + 8, 3: base + 4, 4: base + 6}[k]
        body = [f"v_mul_f32 v{vRS[0]}, s31, v{vRS[0]}"]
        for i in range(5):
            c = acc[i][0]
            tmc = tm[i & 1]
            for r in range(16):
                body.append(f"v_fmac_f32 v{c+r}, v{vNM[0]}, v{tmc+r}")
            if i + 2 < 5:
                for a in range(4):
                    body.append(f"ds_read_b128 v[{tmc+4*a}:{tmc+4*a+3}], v{csa} offset:{CSL+128*(i+2)+32*a}")
            for r in range(16):
                body.append(f"v_mul_f32 v{c+r}, v{vRS[0]}, v{c+r}")
            for a in range(4):
                G = 4 * i + a
                d = dst(G)
                body.append(f"v_cvt_pk_bf16_f32 v{d}, v{c+4*a}, v{c+4*a+1}")
                body.append(f"v_cvt_pk_bf16_f32 v{d+1}, v{c+4*a+2}, v{c+4*a+3}")
                p, k = divmod(G, 5)
                if k == 4:
                    base = stg + 10 * p
                    body.append(f"s_mov_b32 s7, {p*64*2560}")
                    body.append(f"buffer_store_dwordx4 v[{base}:{base+3}], v{t[4]}, s[{SRDO}:{SRDO+3}], s7 offen {sc}")
                    body.append(f"buffer_store_dwordx4 v[{base+4}:{base+7}], v{t[4]}, s[{SRDO}:{SRDO+3}], s7 offen offset:1024 {sc}")
                    body.append(f"buffer_store_dwordx2 v[{base+8}:{base+9}], v{t[5]}, s[{SRDO}:{SRDO+3}], s7 offen {sc}")
        pend = [{vNM[0]}, {vRS[0]}] + [set(range(tm[i] + 4 * a, tm[i] + 4 * a + 4)) for i in range(2) for a in range(4)]
        bl, _ = autowait(body, pend)
        for x in bl: e(x)
    else:
        srd(e, SRDO, S_WS, VB_OFF, VB_SZ)
        e(f"s_lshl_b32 s4, s{sA}, 7")
        e(f"v_lshlrev_b32 v{t[4]}, 4, v{h}")
        e(f"v_add_u32 v{t[4]}, s4, v{t[4]}")
        rsq = frag0
        nmq = rsq + 16
        assert nfr >= 32
        for a in range(4):
            e(f"ds_read_b128 v[{rsq+4*a}:{rsq+4*a+3}], v{t[4]} offset:{32*a+RSL}")
            e(f"ds_read_b128 v[{nmq+4*a}:{nmq+4*a+3}], v{t[4]} offset:{32*a+NML}")
        e(f"v_and_b32 v{t[1]}, 31, v{L}")
        e(f"s_mul_i32 s4, s{sB}, {NT*32}")
        e(f"v_add_u32 v{t[1]}, s4, v{t[1]}")
        e(f"v_lshlrev_b32 v{t[1]}, 2, v{t[1]}")
        csl = [R.a() for _ in range(5)]
        for i in range(5):
            e(f"ds_read_b32 v{csl[i]}, v{t[1]} offset:{CSL+128*i}")
        e(f"s_sub_u32 s4, s{sROLE}, 4")
        e(f"s_lshl_b32 s4, s4, 4")
        e(f"s_lshl_b32 s5, s{sB}, 3")
        e(f"s_add_u32 s4, s4, s5")
        e(f"s_lshl_b32 s4, s4, 6")
        e(f"s_lshl_b32 s5, s{sTB}, 2")
        e(f"s_add_u32 s4, s4, s5")
        e(f"s_add_u32 s4, s4, s{sA}")
        e(f"s_mul_i32 s4, s4, 1280")
        e(f"s_mov_b32 s5, 3277")
        e(f"s_mov_b32 s6, {64*1280}")
        va = [R.a() for _ in range(5)]
        for i in range(5):
            e(f"v_and_b32 v{t[5]}, 31, v{L}")
            e(f"v_add_u32 v{t[5]}, {32*i}, v{t[5]}")
            e(f"v_mul_lo_u32 v{t[6]}, v{t[5]}, s5")
            e(f"v_lshrrev_b32 v{t[6]}, 16, v{t[6]}")
            e(f"v_mul_u32_u24 v{t[7]}, 20, v{t[6]}")
            e(f"v_sub_u32 v{t[5]}, v{t[5]}, v{t[7]}")
            e(f"v_mul_lo_u32 v{t[6]}, v{t[6]}, s6")
            e(f"v_lshl_add_u32 v{t[6]}, v{t[5]}, 4, v{t[6]}")
            e(f"v_mul_u32_u24 v{t[7]}, 320, v{h}")
            e(f"v_add3_u32 v{va[i]}, v{t[6]}, v{t[7]}, s4")
        e("s_waitcnt lgkmcnt(0)")
        for i in range(5):
            c = acc[i][0]
            for r in range(16):
                e(f"v_fmac_f32 v{c+r}, v{nmq+r}, v{csl[i]}")
            for r in range(16):
                e(f"v_mul_f32 v{c+r}, v{rsq+r}, v{c+r}")
            for sidx in range(2):
                d = c + 8 * sidx
                for r in range(4):
                    e(f"v_cvt_pk_bf16_f32 v{d+r}, v{d+2*r}, v{d+2*r+1}")
                e(f"buffer_store_dwordx4 v[{d}:{d+3}], v{va[i]}, s[{SRDO}:{SRDO+3}], 0 offen offset:{640*sidx} {sc}")
    stamp(e, 7)
    if finish is None:
        e("s_waitcnt vmcnt(0)")
        stamp(e, 5)
        stamp(e, 6, True)
        stamp_dump(e, 8, 0, sW, S_WS)
        e("s_endpgm")
    else:
        finish(e, cls)
    return R.hi


def helper(e, store_sc="", finish=None, pfx="k1"):
    R = Regs(2, 256, "v")
    t = [R.a() for _ in range(6)]
    vSrc, vRd, vDst, vOff = R.a(), R.a(), R.a(), R.a()
    ac = R.a(8, 4)
    u_ = [R.a() for _ in range(4)]
    fr = [R.a(4, 4) for _ in range(5)]
    L = 1
    SRDA, SRDB, SRDS = 8, 12, 80
    sKS, sSO = 24, 25
    PART = 0
    BUF0 = 32768
    e.lab(f"{pfx}_helper")
    e(f"v_lshlrev_b32 v{vSrc}, 4, v{L}")
    e(f"v_lshrrev_b32 v{t[0]}, 5, v{L}")
    e(f"v_bfe_u32 v{t[1]}, v{L}, 4, 1")
    e(f"v_bfe_u32 v{t[2]}, v{L}, 2, 2")
    e(f"v_lshl_add_u32 v{t[2]}, v{t[1]}, 2, v{t[2]}")
    e(f"v_lshl_add_u32 v{t[2]}, v{t[0]}, 4, v{t[2]}")
    e(f"v_mul_u32_u24 v{t[2]}, 1280, v{t[2]}")
    e(f"v_and_b32 v{t[3]}, 3, v{L}")
    e(f"v_mul_u32_u24 v{t[3]}, 40, v{t[3]}")
    e(f"s_mul_i32 s4, s{sW}, 160")
    e(f"s_add_u32 s4, s4, {BUF0}")
    e(f"v_add3_u32 v{vRd}, v{t[2]}, v{t[3]}, s4")
    e(f"s_mul_i32 s4, s{sW}, {W3_CB}")
    e(f"v_add_u32 v{vDst}, s4, v{vSrc}")
    for r in range(8):
        e(f"v_mov_b32 v{ac+r}, 0")
    e("s_waitcnt lgkmcnt(0)")
    stamp(e, 0, True)
    stamp(e, 1)
    srd(e, SRDA, S_DOWN, 0, WD_SZ)
    srd(e, SRDB, S_WO, 0, WO_SZ)
    srd(e, SRDO, S_WS, W3_OFF, W3_SZ)
    srd(e, SRDD, S_DBG, 0, 256)
    srd(e, SRDC, S_WS, CSG_OFF, CSG_SZ)
    l0 = e.newlab("k1n")
    e(f"s_or_b32 s4, s2, s{sW}")
    e("s_cmp_lg_u32 s4, 0")
    e(f"s_cbranch_scc1 {l0}")
    e("s_memrealtime s[6:7]")
    e("s_waitcnt lgkmcnt(0)")
    e("s_or_b32 s6, s6, 1")
    e(f"v_mov_b32 v{t[0]}, s6")
    e("s_mov_b64 exec, 1")
    e(f"buffer_store_dword v{t[0]}, off, s[{SRDD}:{SRDD+3}], 0 sc1")
    e("s_mov_b64 exec, -1")
    e.lab(l0)

    def w3_dma(j):
        b = BUF0 + (j % 3) * 40960
        lab = e.newlab("w3")
        e(f"s_add_u32 s{sKS}, s{sTB}, {16*j}")
        e(f"s_mul_i32 m0, s{sW}, 5120")
        e(f"s_add_u32 m0, m0, {b}")
        def issue(sr):
            for i in range(4):
                e(f"buffer_load_dwordx4 v{vSrc}, s[{sr}:{sr+3}], s{sSO} offen offset:{1024*i} lds")
            e(f"s_add_u32 s{sSO}, s{sSO}, 4096")
            e(f"s_add_u32 m0, m0, 4096")
            e("s_nop 0")
            e(f"buffer_load_dwordx4 v{vSrc}, s[{sr}:{sr+3}], s{sSO} offen lds")
        if j >= 3:
            e(f"s_cmp_ge_u32 s{sKS}, 54")
            e(f"s_cbranch_scc1 {lab}_o")
        if j <= 3:
            e(f"s_lshl_b32 s4, s{sKS}, 5")
            e(f"s_lshl_b32 s5, s{sW}, 2")
            e(f"s_add_u32 s4, s4, s5")
            e(f"s_mul_i32 s{sSO}, s4, 1280")
            issue(SRDA)
        if j >= 3:
            e(f"s_branch {lab}_go")
            e.lab(f"{lab}_o")
            e(f"s_cmp_ge_u32 s{sKS}, 70")
            e(f"s_cbranch_scc1 {lab}_x")
            e(f"s_sub_u32 s4, s{sKS}, 54")
            e(f"s_mul_i32 s4, s4, 40")
            e(f"s_lshr_b32 s5, s{sW}, 2")
            e(f"s_mul_i32 s5, s5, 20")
            e(f"s_add_u32 s4, s4, s5")
            e(f"s_and_b32 s5, s{sW}, 3")
            e(f"s_lshl_b32 s5, s5, 2")
            e(f"s_add_u32 s4, s4, s5")
            e(f"s_branch {lab}_wo")
            e.lab(f"{lab}_x")
            e(f"s_sub_u32 s4, s{sKS}, 70")
            e(f"s_lshl_b32 s4, s4, 3")
            e(f"s_lshr_b32 s5, s{sW}, 2")
            e(f"s_lshl_b32 s5, s5, 2")
            e(f"s_add_u32 s4, s4, s5")
            e(f"s_and_b32 s5, s{sW}, 1")
            e(f"s_lshl_b32 s5, s5, 1")
            e(f"s_add_u32 s4, s4, s5")
            e(f"s_bfe_u32 s5, s{sW}, 0x10001")
            e(f"s_add_u32 s4, s4, s5")
            e(f"s_mul_i32 s4, s4, 20")
            e(f"s_add_u32 s4, s4, 16")
            e.lab(f"{lab}_wo")
            e(f"s_mul_i32 s{sSO}, s4, 1280")
            issue(SRDB)
            e.lab(f"{lab}_go")

    def repack_rd(j):
        off = (j % 3) * 40960
        e(f"s_mov_b32 s4, {off}")
        e(f"v_add_u32 v{t[0]}, s4, v{vRd}")
        for c5 in range(5):
            e(f"ds_read_b64_tr_b16 v[{fr[c5]}:{fr[c5]+1}], v{t[0]} offset:{8*c5}")
            e(f"ds_read_b64_tr_b16 v[{fr[c5]+2}:{fr[c5]+3}], v{t[0]} offset:{8*c5+8*1280}")
        e("s_waitcnt lgkmcnt(0)")
        e("s_barrier")

    def repack_st(j):
        e(f"s_add_u32 s4, s{sTB}, {16*j}")
        e(f"s_mul_i32 s7, s4, 5120")
        for c5 in range(4):
            e(f"buffer_store_dwordx4 v[{fr[c5]}:{fr[c5]+3}], v{vDst}, s[{SRDO}:{SRDO+3}], s7 offen offset:{1024*c5} {store_sc}")
        e(f"s_add_u32 s7, s7, 4096")
        e(f"buffer_store_dwordx4 v[{fr[4]}:{fr[4]+3}], v{vDst}, s[{SRDO}:{SRDO+3}], s7 offen {store_sc}")

    def repack(j):
        repack_rd(j)
        repack_st(j)

    HS = 'hs' in EXP
    for j in range(1 if HS else 3):
        w3_dma(j)
    xb = R.a(80, 4)
    srd(e, SRDS, S_XP, 0, X_SZ)
    e(f"s_lshl_b32 s4, s{sTB}, 7")
    e(f"s_lshl_b32 s5, s{sW}, 4")
    e(f"s_add_u32 s4, s4, s5")
    e(f"s_mul_i32 s4, s4, 1280")
    e(f"v_lshrrev_b32 v{t[0]}, 2, v{L}")
    e(f"v_mul_u32_u24 v{t[0]}, 1280, v{t[0]}")
    e(f"v_and_b32 v{t[1]}, 3, v{L}")
    e(f"v_lshl_add_u32 v{vOff}, v{t[1]}, 4, v{t[0]}")
    for j in range(20):
        e(f"buffer_load_dwordx4 v[{xb+4*j}:{xb+4*j+3}], v{vOff}, s[{SRDS}:{SRDS+3}], s4 offen offset:{64*j}")
    ln = e.newlab("csn")
    if HS:
        w3_dma(1)
        w3_dma(2)
        e("s_waitcnt vmcnt(30)")
        e("s_barrier")
        e(f"buffer_load_dword v{t[5]}, off, s[{SRDD}:{SRDD+3}], 0 sc1")
        repack(0)
        e("s_waitcnt vmcnt(16)")
        stamp(e, 2)
    else:
        e(f"s_mov_b32 s{sCNT}, 200000")
        e.lab(ln)
        e(f"buffer_load_dword v{t[5]}, off, s[{SRDD}:{SRDD+3}], 0 sc1")
        e("s_waitcnt vmcnt(0)")
        e(f"v_readfirstlane_b32 s{sNONCE}, v{t[5]}")
        e(f"s_cmp_lg_u32 s{sNONCE}, 0")
        e(f"s_cbranch_scc1 {ln}_ok")
        e("s_sleep 2")
        e(f"s_sub_u32 s{sCNT}, s{sCNT}, 1")
        e(f"s_cmp_lg_u32 s{sCNT}, 0")
        e(f"s_cbranch_scc1 {ln}")
        e.lab(f"{ln}_ok")
        stamp(e, 2)
    first = True
    for d in range(80):
        a_, b_ = u_[2 * (d & 1)], u_[2 * (d & 1) + 1]
        e(f"v_lshlrev_b32 v{a_}, 16, v{xb+d}")
        e(f"v_and_b32 v{b_}, s{sMASK}, v{xb+d}")
        k = 2 * (d & 1)
        e(f"v_add_f32 v{ac+k}, v{ac+k}, v{a_}")
        e(f"v_add_f32 v{ac+k+1}, v{ac+k+1}, v{b_}")
        e(f"v_fmac_f32 v{ac+4+k}, v{a_}, v{a_}")
        e(f"v_fmac_f32 v{ac+4+k+1}, v{b_}, v{b_}")
    e(f"v_add_f32 v{ac}, v{ac}, v{ac+1}")
    e(f"v_add_f32 v{ac+2}, v{ac+2}, v{ac+3}")
    e(f"v_add_f32 v{ac+4}, v{ac+4}, v{ac+5}")
    e(f"v_add_f32 v{ac+6}, v{ac+6}, v{ac+7}")
    e(f"v_add_f32 v{ac}, v{ac}, v{ac+2}")
    e(f"v_add_f32 v{ac+4}, v{ac+4}, v{ac+6}")
    e(f"s_mov_b32 s4, {hex(f2u(1.0/640))}")
    e(f"s_mov_b32 s5, {hex(f2u(1e-5))}")
    for qp in ("[1,0,3,2]", "[2,3,0,1]"):
        e("s_nop 1")
        e(f"v_add_f32_dpp v{ac}, v{ac}, v{ac} quad_perm:{qp} row_mask:0xf bank_mask:0xf")
        e(f"v_add_f32_dpp v{ac+4}, v{ac+4}, v{ac+4} quad_perm:{qp} row_mask:0xf bank_mask:0xf")
    e("s_nop 0")
    e(f"v_mul_f32 v{ac+1}, s4, v{ac}")
    e(f"v_mul_f32 v{ac+4}, s4, v{ac+4}")
    e(f"v_fma_f32 v{ac+4}, -v{ac+1}, v{ac+1}, v{ac+4}")
    e(f"v_max_f32 v{ac+4}, 0, v{ac+4}")
    e(f"v_add_f32 v{ac+4}, s5, v{ac+4}")
    e(f"v_rsq_f32 v{ac}, v{ac+4}")
    e(f"v_sub_f32 v{ac+1}, 0, v{ac+1}")
    if HS:
        e(f"s_mov_b32 s{sCNT}, 200000")
        e("s_waitcnt vmcnt(5)")
        e.lab(ln)
        e(f"v_readfirstlane_b32 s{sNONCE}, v{t[5]}")
        e(f"s_cmp_lg_u32 s{sNONCE}, 0")
        e(f"s_cbranch_scc1 {ln}_ok")
        e("s_sleep 2")
        e(f"buffer_load_dword v{t[5]}, off, s[{SRDD}:{SRDD+3}], 0 sc1")
        e("s_waitcnt vmcnt(0)")
        e(f"s_sub_u32 s{sCNT}, s{sCNT}, 1")
        e(f"s_cmp_lg_u32 s{sCNT}, 0")
        e(f"s_cbranch_scc1 {ln}")
        e.lab(f"{ln}_ok")
    e(f"v_mov_b32 v{ac+2}, s{sNONCE}")
    e(f"v_mov_b32 v{ac+3}, s{sNONCE}")
    e(f"v_lshrrev_b32 v{t[0]}, 2, v{L}")
    e(f"v_lshlrev_b32 v{t[0]}, 4, v{t[0]}")
    e(f"s_lshl_b32 s4, s{sTB}, 11")
    e(f"s_lshl_b32 s5, s{sW}, 8")
    e(f"s_add_u32 s4, s4, s5")
    e(f"s_add_u32 s4, s4, {STG_REL}")
    e("s_mov_b32 exec_lo, 0x11111111")
    e("s_mov_b32 exec_hi, 0x11111111")
    e(f"buffer_store_dwordx4 v[{ac}:{ac+3}], v{t[0]}, s[{SRDC}:{SRDC+3}], s4 offen sc1")
    e("s_mov_b64 exec, -1")
    stamp(e, 3)
    e("s_barrier")
    if not HS:
        repack(0)
        w3_dma(3)
    repack(1)
    if HS:
        w3_dma(3)
    l4 = e.newlab("w3s")
    e(f"s_cmp_ge_u32 s{sTB}, 10")
    e(f"s_cbranch_scc1 {l4}")
    w3_dma(4)
    e.lab(l4)
    if HS:
        repack_rd(2)
    else:
        repack(2)
    stamp(e, 4)
    lg = e.newlab("csg")
    lskip = f"{lg}_skip" if HS else f"{lg}_end"
    e(f"s_cmp_eq_u32 s{sTB}, 15")
    e(f"s_cbranch_scc1 {lskip}")
    e(f"s_cmp_ge_u32 s{sW}, 3")
    e(f"s_cbranch_scc1 {lskip}")
    e(f"s_mov_b32 s5, 159")
    e(f"s_cmp_lt_u32 s{sTB}, 6")
    e(f"s_cselect_b32 s4, s5, 191")
    e(f"v_min_u32 v{t[0]}, s4, v0")
    e(f"v_lshlrev_b32 v{t[1]}, 4, v{t[0]}")
    e(f"s_mov_b32 s{sCNT}, 200000")
    def gather():
        e(f"s_mul_i32 s4, s{sTB}, {16*3072}")
        e(f"s_add_u32 s4, s4, {PCS_REL}")
        for u in range(16):
            e(f"buffer_load_dwordx4 v[{xb+4*u}:{xb+4*u+3}], v{t[1]}, s[{SRDC}:{SRDC+3}], s4 offen sc1")
            if u < 15:
                e(f"s_add_u32 s4, s4, 3072")
    if HS:
        gather()
        repack_st(2)
        e("s_waitcnt vmcnt(5)")
        e(f"s_branch {lg}_chk")
    e.lab(lg)
    gather()
    e("s_waitcnt vmcnt(0)")
    e.lab(f"{lg}_chk")
    e(f"v_xor_b32 v{t[2]}, s{sNONCE}, v{xb+2}")
    for u in range(1, 16):
        e(f"v_xor_b32 v{t[3]}, s{sNONCE}, v{xb+4*u+2}")
        e(f"v_or_b32 v{t[2]}, v{t[2]}, v{t[3]}")
    e(f"v_cmp_ne_u32 vcc, 0, v{t[2]}")
    e("s_nop 1")
    e(f"s_cbranch_vccz {lg}_ok")
    e("s_sleep 4")
    e(f"s_sub_u32 s{sCNT}, s{sCNT}, 1")
    e(f"s_cmp_lg_u32 s{sCNT}, 0")
    e(f"s_cbranch_scc1 {lg}")
    e.lab(f"{lg}_ok")
    for u in range(1, 16):
        e(f"v_add_f32 v{xb}, v{xb}, v{xb+4*u}")
        e(f"v_add_f32 v{xb+1}, v{xb+1}, v{xb+4*u+1}")
    e(f"v_mov_b32 v{xb+2}, v{xb+1}")
    e(f"v_mov_b32 v{xb+1}, s{sNONCE}")
    e(f"v_mov_b32 v{xb+3}, s{sNONCE}")
    e(f"v_lshrrev_b32 v{t[2]}, 4, v{t[0]}")
    e(f"v_and_b32 v{t[3]}, 15, v{t[0]}")
    e(f"v_lshlrev_b32 v{t[3]}, 3, v{t[3]}")
    e(f"v_lshl_add_u32 v{t[3]}, v{t[2]}, 8, v{t[3]}")
    e(f"s_mul_i32 s4, s{sTB}, {384*8}")
    e(f"buffer_store_dwordx2 v[{xb}:{xb+1}], v{t[3]}, s[{SRDC}:{SRDC+3}], s4 offen sc1")
    e(f"buffer_store_dwordx2 v[{xb+2}:{xb+3}], v{t[3]}, s[{SRDC}:{SRDC+3}], s4 offen offset:128 sc1")
    if HS:
        e(f"s_branch {lg}_end")
        e.lab(lskip)
        repack_st(2)
    e.lab(f"{lg}_end")
    lend = f"{pfx}_h_end"
    e("s_waitcnt vmcnt(%d)" % (5 if HS else 0))
    e("s_barrier")
    repack(3)
    e(f"s_cmp_ge_u32 s{sTB}, 10")
    e(f"s_cbranch_scc1 {lend}")
    repack(4)
    e.lab(lend)
    stamp(e, 7)
    if finish is None:
        e("s_waitcnt vmcnt(0)")
        stamp(e, 5)
        stamp(e, 6, True)
        stamp_dump(e, 8, 0, sW, S_WS)
        e("s_endpgm")
    else:
        finish(e, "helper")
    return R.hi


def gen_k1(e, name, store_sc=""):
    e.l.append(kernel_header(name))
    prologue(e)
    hi = 0
    hi = max(hi, gemm(e, "qk", store_sc))
    hi = max(hi, gemm(e, "v", store_sc))
    hi = max(hi, gemm(e, "ffn", store_sc))
    hi = max(hi, helper(e, store_sc))
    e.lab("k1_exit")
    e("s_endpgm")
    return hi
```

```python
from common import *
sW, sNONCE, SRDC = 22, 29, 72
sTB3, sCB3 = 65, 66
F1_REL = 0xE0000
FO_REL = 0xE8000
SPIN = 20000


def publish(e, idx_lines, rel, vt):
    lab = e.newlab("pub")
    e(f"s_cmp_lg_u32 s{sW}, 0")
    e(f"s_cbranch_scc1 {lab}")
    for x in idx_lines:
        e(x)
    e("s_lshl_b32 s4, s4, 7")
    e(f"s_add_u32 s4, s4, {hex(rel)}")
    e(f"v_mov_b32 v{vt}, s{sNONCE}")
    e("s_mov_b64 exec, 1")
    e(f"buffer_store_dword v{vt}, off, s[{SRDC}:{SRDC+3}], s4 sc1")
    e("s_mov_b64 exec, -1")
    e.lab(lab)


def poll_load(vF, vP):
    return f"buffer_load_dword v{vP}, v{vF}, s[{SRDC}:{SRDC+3}], 0 offen sc1"


def poll_check(e, vF, vP, sC, wait=None):
    lab = e.newlab("poll")
    if wait:
        e(wait)
    e(f"v_cmp_ne_u32 vcc, s{sNONCE}, v{vP}")
    e("s_nop 0")
    e(f"s_cbranch_vccz {lab}_ok")
    e(f"s_mov_b32 s{sC}, {SPIN}")
    e.lab(lab)
    e("s_sleep 1")
    e(poll_load(vF, vP))
    e("s_waitcnt vmcnt(0)")
    e(f"v_cmp_ne_u32 vcc, s{sNONCE}, v{vP}")
    e("s_nop 0")
    e(f"s_cbranch_vccz {lab}_ok")
    e(f"s_sub_u32 s{sC}, s{sC}, 1")
    e(f"s_cmp_lg_u32 s{sC}, 0")
    e(f"s_cbranch_scc1 {lab}")
    e.lab(f"{lab}_ok")


def addr_qkv(e, vF, t, sP, sQB, L=1):
    e(f"v_min_u32 v{t[0]}, 6, v{L}")
    e(f"v_add_u32 v{t[0]}, 2, v{t[0]}")
    e(f"v_mul_u32_u24 v{t[1]}, 43, v{t[0]}")
    e(f"v_lshrrev_b32 v{t[1]}, 7, v{t[1]}")
    e(f"v_mul_u32_u24 v{t[2]}, 3, v{t[1]}")
    e(f"v_sub_u32 v{t[0]}, v{t[0]}, v{t[2]}")
    e(f"s_sub_u32 s4, s{sQB}, 2")
    e(f"v_add_u32 v{t[0]}, s4, v{t[0]}")
    e(f"v_max_i32 v{t[0]}, 0, v{t[0]}")
    e(f"s_lshr_b32 s4, s{sP}, 3")
    e(f"v_lshl_add_u32 v{t[1]}, v{t[1]}, 1, s4")
    e(f"v_lshl_add_u32 v{t[0]}, v{t[1]}, 4, v{t[0]}")
    e(f"v_lshlrev_b32 v{t[0]}, 7, v{t[0]}")
    e(f"v_add_u32 v{vF}, {hex(F1_REL)}, v{t[0]}")


def addr_hw(e, vF, t, L=1):
    e(f"v_min_u32 v{t[0]}, 24, v{L}")
    e(f"s_lshr_b32 s4, s{sTB3}, 1")
    e(f"s_add_u32 s4, s4, {6*16}")
    e(f"v_lshl_add_u32 v{t[1]}, v{t[0]}, 4, s4")
    e(f"v_add_u32 v{t[2]}, {240-9}, v{t[0]}")
    e(f"v_cmp_gt_u32 vcc, 9, v{t[0]}")
    e("s_nop 1")
    e(f"v_cndmask_b32 v{t[0]}, v{t[2]}, v{t[1]}, vcc")
    e(f"v_lshlrev_b32 v{t[0]}, 7, v{t[0]}")
    e(f"v_add_u32 v{vF}, {hex(F1_REL)}, v{t[0]}")


def addr_o(e, vF, t, L=1):
    e(f"v_and_b32 v{t[0]}, 15, v{L}")
    e(f"s_lshr_b32 s4, s{sTB3}, 1")
    e(f"v_lshl_add_u32 v{t[0]}, v{t[0]}, 4, s4")
    e(f"v_lshlrev_b32 v{t[0]}, 7, v{t[0]}")
    e(f"v_add_u32 v{vF}, {hex(FO_REL)}, v{t[0]}")
```

```python
import sys
from common import *
import p1, flags as F

HDR = open("cdna_kernels/" + KNAME + ".s.ref").read().split("; Override launch")[0]

def build(std=False):
    import importlib
    p2 = importlib.import_module("p2b" if "att2" in p1.EXP else "p2")
    p3 = importlib.import_module("p3b" if "p3b" in p1.EXP else "p3")
    e = E()
    name = KNAME + "_kernel" if std else "mk_kernel"
    e.l.append(kernel_header(name))
    def finish(e, cls):
        e("s_waitcnt vmcnt(0)")
        e("s_barrier")
        F.publish(e, [f"s_lshl_b32 s4, s{p1.sROLE}, 4", f"s_add_u32 s4, s4, s{p1.sTB}"], F.F1_REL, 2)
        stamp(e, 4)
        e("s_branch p2_entry")
    p1.prologue(e)
    hi = 0
    for cls in ("qk", "v", "ffn"):
        hi = max(hi, p1.gemm(e, cls, "sc1", finish))
    hi = max(hi, p1.helper(e, "sc1", finish))
    h2 = p2.gen_p2(e)
    h3 = p3.gen_p3(e)
    e.lab("k1_exit")
    e("s_endpgm")
    hi = max(hi, h2, h3)
    txt = HDR
    if std:
        txt += f"; @launch grid=(256,1,1) block=(512,1,1) lds={p1.P1_LDS}\n"
    else:
        txt += f"; @launch kernel={name} grid=(256,1,1) block=(512,1,1) lds={p1.P1_LDS}\n"
    txt += '.amdgcn_target "amdgcn-amd-amdhsa--gfx950"\n.text\n'
    txt += e.text()
    txt += '.section .rodata,"a"\n'
    txt += ".p2align 6\n" + kernel_desc(name, vgpr=256 if hi > 248 else (hi + 7) // 8 * 8)
    print("vgpr hi:", hi, h2, h3, file=sys.stderr)
    return txt

if __name__ == "__main__":
    import common
    std = False
    if "--prof" in sys.argv:
        sys.argv.remove("--prof"); common.PROF = True
    if "--std" in sys.argv:
        sys.argv.remove("--std"); std = True
    p1.EXP.update(["sc1", "rot4", "hs"])
    for a in list(sys.argv):
        if a.startswith("--exp="):
            sys.argv.remove(a)
            p1.EXP.update(a[6:].split(","))
    out = sys.argv[1]
    open(out, "w").write(build(std))
```

```python
KNAME = "parallel_sum__sliding_block__glu_gated_reglu__prompt"

ACT_OFF = 0x0000000
ACT_ROW = 74 * 1024
ACT_SZ = 128 * ACT_ROW
QB_OFF = 0x0A00000
KB_OFF = 0x0D00000
QK_SZ = 16 * 64 * 2560
VB_OFF = 0x1000000
VB_SZ = 32 * 64 * 1280
W3_OFF = 0x1300000
W3_CB = 74 * 5120
W3_SZ = 8 * W3_CB

X_SZ = 2048 * 1280
WQKV_SZ = 640 * 3840
WG_SZ = 640 * 3456
WD_SZ = 1728 * 1280
WO_SZ = 640 * 1280


class E:
    def __init__(self):
        self.l = []
        self.nlab = 0

    def __call__(self, s=""):
        for x in s.split("\n"):
            self.l.append("    " + x.strip() if x.strip() and not x.strip().endswith(":") else x.strip())

    def lab(self, name):
        self.l.append(name + ":")

    NLAB = [0]
    def newlab(self, p="L"):
        E.NLAB[0] += 1
        return f"{p}_{E.NLAB[0]}"

    def c(self, s):
        self.l.append("    ; " + s)

    def text(self):
        return "\n".join(self.l) + "\n"


class Regs:
    def __init__(self, start, limit, pfx):
        self.n = start
        self.limit = limit
        self.pfx = pfx
        self.hi = start

    def a(self, cnt=1, align=1):
        if cnt >= 2 and align == 1:
            align = 2
        self.n = (self.n + align - 1) // align * align
        r = self.n
        self.n += cnt
        assert self.n <= self.limit, f"out of {self.pfx} regs ({self.n})"
        self.hi = max(self.hi, self.n)
        return r

    def mark(self):
        return self.n

    def reset(self, m):
        self.n = m


def v(i, n=1):
    return f"v{i}" if n == 1 else f"v[{i}:{i+n-1}]"


def s(i, n=1):
    return f"s{i}" if n == 1 else f"s[{i}:{i+n-1}]"


def srd(e, d, base_lo, off, size):
    if off == 0:
        e(f"s_mov_b32 s{d}, s{base_lo}")
        e(f"s_mov_b32 s{d+1}, s{base_lo+1}")
    else:
        o = off if isinstance(off, str) else hex(off)
        e(f"s_add_u32 s{d}, s{base_lo}, {o}")
        e(f"s_addc_u32 s{d+1}, s{base_lo+1}, 0")
    e(f"s_mov_b32 s{d+2}, {size if isinstance(size, str) else hex(size)}")
    e(f"s_mov_b32 s{d+3}, 0x00020000")


def interleave(e, mfmas, fillers):
    for i, m in enumerate(mfmas):
        e(m)
        if i < len(fillers):
            for f in fillers[i]:
                e(f)
    for fl in fillers[len(mfmas):]:
        for f in fl:
            e(f)


def spread(items, nslots, start=0):
    out = [[] for _ in range(nslots)]
    n = len(items)
    k = nslots - start
    for j, it in enumerate(items):
        out[start + min(k - 1, j * k // max(n, 1))].append(it)
    return out


def merge(*lists):
    n = max(len(x) for x in lists)
    out = [[] for _ in range(n)]
    for x in lists:
        for i, y in enumerate(x):
            out[i] += y
    return out


def kernel_header(name):
    return f""".globl {name}
.p2align 8
.type {name},@function
{name}:
"""


def kernel_desc(name, vgpr=256, sgpr=102):
    acc = min(256, (vgpr + 3) // 4 * 4)
    return f""".amdhsa_kernel {name}
  .amdhsa_next_free_vgpr {vgpr}
  .amdhsa_next_free_sgpr {sgpr}
  .amdhsa_accum_offset {acc}
  .amdhsa_group_segment_fixed_size 0
  .amdhsa_kernarg_size 80
  .amdhsa_user_sgpr_count 2
  .amdhsa_user_sgpr_kernarg_segment_ptr 1
  .amdhsa_system_sgpr_workgroup_id_x 1
.end_amdhsa_kernel
"""


PROF = False
PROF_OFF = 0x3000000
PROF_S0 = 84
def stamp(e, idx, real=False):
    if not PROF:
        return
    assert idx < 14
    e(f"{'s_memrealtime' if real else 's_memtime'} s[98:99]")
    e("s_waitcnt lgkmcnt(0)")
    e(f"s_mov_b32 s{PROF_S0+idx}, s98")

def stamp_dump(e, n, kidx, sW, ws_lo, vt=2):
    if not PROF:
        return
    e(f"s_lshl_b32 s98, s2, 3")
    e(f"s_add_u32 s98, s98, s{sW}")
    e(f"s_lshl_b32 s98, s98, 7")
    e(f"s_add_u32 s98, s98, {hex(PROF_OFF + kidx*0x40000)}")
    e(f"s_add_u32 s8, s{ws_lo}, s98")
    e(f"s_addc_u32 s9, s{ws_lo+1}, 0")
    e("s_mov_b32 s10, 128")
    e("s_mov_b32 s11, 0x00020000")
    e("s_mov_b64 exec, 1")
    e(f"v_mov_b32 v{vt+1}, 0")
    for i in range(n):
        e(f"v_mov_b32 v{vt}, s{PROF_S0+i}")
        e(f"buffer_store_dword v{vt}, v{vt+1}, s[8:11], 0 offen offset:{4*i}")
        e("s_nop 1")
    e("s_waitcnt vmcnt(0)")


import re as _re
_VR = _re.compile(r"\bv\[(\d+):(\d+)\]|\bv(\d+)\b")

def vregs(text):
    out = set()
    for m in _VR.finditer(text):
        if m.group(3) is not None:
            out.add(int(m.group(3)))
        else:
            out.update(range(int(m.group(1)), int(m.group(2)) + 1))
    return out

def autowait(lines, pending):
    out = []
    pending = list(pending)
    for ln in lines:
        st = ln.strip()
        op = st.split()[0] if st else ""
        if not st or st.startswith(";") or st.endswith(":"):
            out.append(ln); continue
        if op == "s_waitcnt":
            m = _re.search(r"lgkmcnt\((\d+)\)", st)
            if m:
                n = int(m.group(1))
                pending = pending[len(pending) - n:] if n < len(pending) else pending
            out.append(ln); continue
        if op.startswith("ds_"):
            ops = st[len(op):].split(",")
            if op.startswith("ds_read"):
                dst = vregs(ops[0]); use = vregs(",".join(ops[1:]))
            else:
                dst = set(); use = vregs(st[len(op):])
            need = use
        else:
            dst = None; need = vregs(st[len(op):])
        idx = -1
        for i, p in enumerate(pending):
            if p & need:
                idx = i
        if idx >= 0:
            n = min(15, len(pending) - 1 - idx)
            out.append(f"s_waitcnt lgkmcnt({n})")
            pending = pending[len(pending) - n:] if n else []
        out.append(ln)
        if dst is not None:
            pending.append(dst)
    return out, pending


_TRANS = ("v_exp_f32", "v_log_f32", "v_rcp_f32", "v_rsq_f32", "v_sqrt_f32", "v_sin_f32", "v_cos_f32")

def _split_ops(st):
    op = st.split()[0]
    rest = st[len(op):].split(";")[0]
    return op, [x.strip() for x in rest.split(",")]

def autohaz(lines):
    out = []
    ev = []
    clk = 0
    for ln in lines:
        st = ln.strip()
        if not st or st.startswith(";") or st.endswith(":"):
            out.append(ln); continue
        op, ops = _split_ops(st)
        if op == "s_nop":
            clk += int(ops[0]) + 1
            out.append(ln); continue
        is_mfma = op.startswith("v_mfma")
        is_valu = op.startswith("v_") and not is_mfma
        is_ds = op.startswith("ds_")
        is_vm = op.startswith("buffer_") or op.startswith("global_")
        rd, wr = set(), set()
        srcC = srcAB = set()
        if is_mfma:
            wr = vregs(ops[0]); srcAB = vregs(ops[1]) | vregs(ops[2]); srcC = vregs(ops[3]); rd = srcAB | srcC
        elif is_valu:
            if op.startswith("v_cmp") or op.startswith("v_readfirstlane") or op.startswith("v_readlane"):
                rd = vregs(",".join(ops[1:]))
            elif op.startswith("v_permlane32_swap") or op.startswith("v_permlane16_swap"):
                rd = vregs(",".join(ops)); wr = set(rd)
            else:
                wr = vregs(ops[0]); rd = vregs(",".join(ops[1:]))
                if op.startswith("v_fmac") or op.startswith("v_mac") or "_dpp" in op:
                    rd |= wr
        elif is_ds:
            if op.startswith("ds_read"):
                wr = vregs(ops[0]); rd = vregs(",".join(ops[1:]))
            else:
                rd = vregs(",".join(ops))
        elif is_vm:
            if "load" in op and " lds" not in st:
                wr = vregs(ops[0]); rd = vregs(",".join(ops[1:]))
            else:
                rd = vregs(",".join(ops))
        need = 0
        for (pos, kind, regs, n) in ev:
            d = 0
            if kind == "valu_w":
                if is_mfma and (regs & rd): d = 2
                if op.startswith("v_permlane") and (regs & rd): d = 2
                if op.startswith("v_readfirstlane") and (regs & rd): d = 1
            elif kind == "trans_w":
                if (is_valu or is_mfma or is_ds or is_vm) and (regs & rd): d = max(1, 2 if is_mfma else 1)
            elif kind == "mfma_w":
                lat = 12 if n == 8 else 8
                if is_mfma:
                    if regs & srcAB: d = lat
                    elif (regs & srcC) and not (regs == srcC and regs == wr): d = lat
                    elif (regs & wr) and regs != wr: d = lat
                elif (is_valu or is_ds or is_vm) and (regs & (rd | wr)): d = lat
            elif kind == "mfma_c":
                if is_valu and (regs & wr): d = 7 if n == 8 else 3
            elif kind == "store_d":
                if is_valu and (regs & wr): d = 2
            if d:
                need = max(need, pos + d + 1 - (clk + 1) + 0)
        need = 0
        for (pos, kind, regs, n) in ev:
            d = 0
            if kind == "valu_w":
                if is_mfma and (regs & rd): d = 2
                if op.startswith("v_permlane") and (regs & rd): d = 2
                if op.startswith("v_readfirstlane") and (regs & rd): d = 1
            elif kind == "trans_w":
                if (is_valu or is_ds or is_vm) and (regs & rd): d = 1
                if is_mfma and (regs & rd): d = 2
            elif kind == "mfma_w":
                lat = 12 if n == 8 else 8
                if is_mfma:
                    if regs & srcAB: d = lat
                    elif (regs & srcC) and not (regs == srcC and regs == wr): d = lat
                    elif (regs & wr) and regs != wr: d = lat
                elif (is_valu or is_ds or is_vm) and (regs & (rd | wr)): d = lat
            elif kind == "mfma_c":
                if is_valu and (regs & wr): d = 7 if n == 8 else 3
            elif kind == "store_d":
                if is_valu and (regs & wr): d = 2
            if d:
                need = max(need, d - (clk - pos - 1))
        while need > 0:
            k = min(need, 16)
            out.append(f"s_nop {k-1}")
            clk += k; need -= k
        out.append(ln)
        if is_mfma:
            n = 8 if "32x32" in op else 4
            ev.append((clk, "mfma_w", wr, n))
            if srcC and srcC != wr: ev.append((clk, "mfma_c", srcC, n))
        elif is_valu and wr:
            ev.append((clk, "trans_w" if op in _TRANS else "valu_w", wr, 0))
        elif is_vm and "store" in op and ("x4" in op or "x3" in op):
            ev.append((clk, "store_d", vregs(ops[0]), 0))
        elif is_ds and op.startswith("ds_write") and ("b128" in op or "b96" in op):
            ev.append((clk, "store_d", vregs(ops[1]), 0))
        clk += 1
        ev = [x for x in ev if clk - x[0] < 24]
    return out
```

```python
from common import *
sW, sNONCE, SRDC = 22, 29, 72
sTB3, sCB3 = 65, 66
F1_REL = 0xE0000
FO_REL = 0xE8000
SPIN = 20000


def publish(e, idx_lines, rel, vt):
    lab = e.newlab("pub")
    e(f"s_cmp_lg_u32 s{sW}, 0")
    e(f"s_cbranch_scc1 {lab}")
    for x in idx_lines:
        e(x)
    e("s_lshl_b32 s4, s4, 7")
    e(f"s_add_u32 s4, s4, {hex(rel)}")
    e(f"v_mov_b32 v{vt}, s{sNONCE}")
    e("s_mov_b64 exec, 1")
    e(f"buffer_store_dword v{vt}, off, s[{SRDC}:{SRDC+3}], s4 sc1")
    e("s_mov_b64 exec, -1")
    e.lab(lab)


def poll_load(vF, vP):
    return f"buffer_load_dword v{vP}, v{vF}, s[{SRDC}:{SRDC+3}], 0 offen sc1"


def poll_check(e, vF, vP, sC, wait=None):
    lab = e.newlab("poll")
    if wait:
        e(wait)
    e(f"v_cmp_ne_u32 vcc, s{sNONCE}, v{vP}")
    e("s_nop 0")
    e(f"s_cbranch_vccz {lab}_ok")
    e(f"s_mov_b32 s{sC}, {SPIN}")
    e.lab(lab)
    e("s_sleep 1")
    e(poll_load(vF, vP))
    e("s_waitcnt vmcnt(0)")
    e(f"v_cmp_ne_u32 vcc, s{sNONCE}, v{vP}")
    e("s_nop 0")
    e(f"s_cbranch_vccz {lab}_ok")
    e(f"s_sub_u32 s{sC}, s{sC}, 1")
    e(f"s_cmp_lg_u32 s{sC}, 0")
    e(f"s_cbranch_scc1 {lab}")
    e.lab(f"{lab}_ok")


def addr_qkv(e, vF, t, sP, sQB, L=1):
    e(f"v_min_u32 v{t[0]}, 6, v{L}")
    e(f"v_add_u32 v{t[0]}, 2, v{t[0]}")
    e(f"v_mul_u32_u24 v{t[1]}, 43, v{t[0]}")
    e(f"v_lshrrev_b32 v{t[1]}, 7, v{t[1]}")
    e(f"v_mul_u32_u24 v{t[2]}, 3, v{t[1]}")
    e(f"v_sub_u32 v{t[0]}, v{t[0]}, v{t[2]}")
    e(f"s_sub_u32 s4, s{sQB}, 2")
    e(f"v_add_u32 v{t[0]}, s4, v{t[0]}")
    e(f"v_max_i32 v{t[0]}, 0, v{t[0]}")
    e(f"s_lshr_b32 s4, s{sP}, 3")
    e(f"v_lshl_add_u32 v{t[1]}, v{t[1]}, 1, s4")
    e(f"v_lshl_add_u32 v{t[0]}, v{t[1]}, 4, v{t[0]}")
    e(f"v_lshlrev_b32 v{t[0]}, 7, v{t[0]}")
    e(f"v_add_u32 v{vF}, {hex(F1_REL)}, v{t[0]}")


def addr_hw(e, vF, t, L=1):
    e(f"v_min_u32 v{t[0]}, 24, v{L}")
    e(f"s_lshr_b32 s4, s{sTB3}, 1")
    e(f"s_add_u32 s4, s4, {6*16}")
    e(f"v_lshl_add_u32 v{t[1]}, v{t[0]}, 4, s4")
    e(f"v_add_u32 v{t[2]}, {240-9}, v{t[0]}")
    e(f"v_cmp_gt_u32 vcc, 9, v{t[0]}")
    e("s_nop 1")
    e(f"v_cndmask_b32 v{t[0]}, v{t[2]}, v{t[1]}, vcc")
    e(f"v_lshlrev_b32 v{t[0]}, 7, v{t[0]}")
    e(f"v_add_u32 v{vF}, {hex(F1_REL)}, v{t[0]}")


def addr_o(e, vF, t, L=1):
    e(f"v_and_b32 v{t[0]}, 15, v{L}")
    e(f"s_lshr_b32 s4, s{sTB3}, 1")
    e(f"v_lshl_add_u32 v{t[0]}, v{t[0]}, 4, s4")
    e(f"v_lshlrev_b32 v{t[0]}, 7, v{t[0]}")
    e(f"v_add_u32 v{vF}, {hex(FO_REL)}, v{t[0]}")


def addr_qkvw(e, vF, t, sP, sQB, L=1):
    addr_qkv(e, vF, t, sP, sQB, L)
    e(f"v_min_u32 v{t[0]}, 22, v{L}")
    e(f"v_add_u32 v{t[0]}, {240-7}, v{t[0]}")
    e(f"v_lshlrev_b32 v{t[0]}, 7, v{t[0]}")
    e(f"v_add_u32 v{t[0]}, {hex(F1_REL)}, v{t[0]}")
    e(f"v_cmp_lt_u32 vcc, 6, v{L}")
    e("s_nop 1")
    e(f"v_cndmask_b32 v{vF}, v{vF}, v{t[0]}, vcc")


def addr_h(e, vF, t, L=1):
    e(f"v_min_u32 v{t[0]}, 8, v{L}")
    e(f"s_lshr_b32 s4, s{sTB3}, 1")
    e(f"s_add_u32 s4, s4, {6*16}")
    e(f"v_lshl_add_u32 v{t[0]}, v{t[0]}, 4, s4")
    e(f"v_lshlrev_b32 v{t[0]}, 7, v{t[0]}")
    e(f"v_add_u32 v{vF}, {hex(F1_REL)}, v{t[0]}")
```

```python
from common import *
import struct

def f2u(x):
    return struct.unpack("<I", struct.pack("<f", x))[0]

R_RING = 5
XSLOT = 8192
XR = 122880
P1_LDS = XR + R_RING * XSLOT
CSL = 0
RSL = 1536
NML = 2048

CSG_OFF = 0x1800000
STG_REL = 0x10000
PCS_REL = 0x20000
CSG_SZ = 0x100000

S_XP, S_WQKV, S_WO, S_GATE, S_UP, S_DOWN, S_OUT, S_DBG, S_WS = 40, 42, 44, 48, 50, 52, 54, 56, 58
SRDX, SRDW, SRDO = 8, 12, 16
sTB, sROLE, sW, sCNT, sWso, sXso, sWM0, sXM0 = 20, 21, 22, 23, 24, 25, 27, 28
sNONCE = 29
sT0, sT1, sT2, sT3 = 32, 33, 34, 35
sA, sB = 36, 37
sMASK = 39
sTRIG = 60
sMINE, sPOFF = 26, 30
SRDC, SRDD = 72, 76
EXP = set()
DEFER = []


def load_ptrs(e):
    e("s_load_dwordx16 s[40:55], s[0:1], 0")
    e("s_load_dwordx4 s[56:59], s[0:1], 64")


def prologue(e, pfx="k1"):
    e("s_cmp_ge_u32 s2, 256")
    e(f"s_cbranch_scc1 {pfx}_exit")
    load_ptrs(e)
    e("v_and_b32 v1, 63, v0")
    e("v_lshrrev_b32 v2, 6, v0")
    e("s_and_b32 s3, s2, 7")
    e("s_lshr_b32 s4, s2, 3")
    e(f"v_readfirstlane_b32 s{sW}, v2")
    e("s_and_b32 s5, s3, 1")
    e("s_lshl_b32 s5, s5, 3")
    e("s_and_b32 s6, s4, 7")
    e(f"s_add_u32 s{sTB}, s5, s6")
    e("s_lshr_b32 s5, s3, 1")
    e("s_lshl_b32 s5, s5, 2")
    e("s_lshr_b32 s6, s4, 3")
    e(f"s_add_u32 s{sROLE}, s5, s6")
    e(f"s_add_u32 s{sROLE}, s{sROLE}, 15")
    e(f"s_and_b32 s{sROLE}, s{sROLE}, 15")
    e(f"s_mov_b32 s{sMASK}, 0xffff0000")
    e(f"s_cmp_eq_u32 s{sROLE}, 15")
    e(f"s_cbranch_scc1 {pfx}_helper")
    e(f"s_cmp_ge_u32 s{sROLE}, 6")
    e(f"s_cbranch_scc1 {pfx}_ffn")
    e(f"s_cmp_ge_u32 s{sROLE}, 4")
    e(f"s_cbranch_scc1 {pfx}_v")
    e(f"s_branch {pfx}_qk")


def gemm(e, cls, store_sc="", finish=None, pfx="k1"):
    ffn = cls == "ffn"
    RR = R_RING
    NSTG = 20
    NT = 3 if ffn else 5
    NU = 2 if ffn else 1
    WSLOT = 24576 if ffn else 20480
    WROW = 384 if ffn else 640
    GROW = 3456 if ffn else 3840
    NCS = 384 if ffn else 320
    R = Regs(2, 256, "v")
    t = [R.a() for _ in range(8)]
    vWs = [R.a() for _ in range(3)]
    vXs = R.a()
    nset = 2 if RR > 3 else 1
    NWB = 3 if ffn else 2
    vWA = [[R.a() for i in range(NWB)] for st in range(nset)]
    vXB = [R.a() for _ in range(2)]
    vG = R.a(2, 2)
    vN = R.a()
    vGA = R.a()
    vSTA = R.a()
    vPA = R.a()
    vST = R.a(4, 4)
    vONE = R.a(4, 4)
    aCS = [R.a(4, 4) for i in range(NT)]
    fA = [[R.a(4, 4) for i in range(NT)] for b in range(2)]
    fB = [[R.a(4, 4) for u in range(NU)] for b in range(2)]
    fS = R.a(4, 4)
    acc = [[R.a(16, 4) for u in range(NU)] for i in range(NT)]
    L = 1

    e.lab(f"{pfx}_{cls}")
    e.c(f"---------------- setup {cls} ----------------")
    if ffn:
        e(f"s_and_b32 s{sA}, s{sW}, 1")
        e(f"s_lshr_b32 s{sB}, s{sW}, 1")
    else:
        e(f"s_and_b32 s{sA}, s{sW}, 3")
        e(f"s_lshr_b32 s{sB}, s{sW}, 2")
    if ffn:
        e(f"s_and_b32 s{sT0}, s{sW}, 3")
        e(f"s_lshr_b32 s{sT1}, s{sW}, 2")
        e(f"s_sub_u32 s{sT2}, s{sROLE}, 6")
        e(f"s_mul_i32 s{sT2}, s{sT2}, 384")
        e(f"s_mul_i32 s{sT3}, s{sT0}, {8*GROW}")
        e(f"s_add_u32 s{sT2}, s{sT2}, s{sT3}")
        e(f"s_lshl_b32 s{sT3}, s{sT1}, 2")
        e(f"s_mul_i32 s4, s{sT0}, 3072")
        e(f"s_mul_i32 s5, s{sT1}, 12288")
        e(f"s_add_u32 s{sWM0}, s4, s5")
        nper, magic = 24, 2731
        e(f"v_mov_b32 v{t[4]}, v{L}")
    else:
        e(f"s_mul_i32 s4, s{sW}, 3")
        e(f"s_lshl_b32 s5, s{sW}, 1")
        e(f"s_add_u32 s5, s5, 4")
        e(f"s_cmp_ge_u32 s{sW}, 4")
        e(f"s_cselect_b32 s4, s5, s4")
        e(f"s_lshl_b32 s{sWM0}, s4, 10")
        e(f"s_lshl_b32 s4, s4, 6")
        e(f"s_mul_i32 s{sT2}, s{sROLE}, 640")
        nper, magic = 40, 1639
        e(f"v_add_u32 v{t[4]}, s4, v{L}")
    e(f"s_mov_b32 s4, {magic}")
    e(f"s_mov_b32 s5, {GROW}")
    for i in range(3):
        e(f"v_add_u32 v{t[0]}, {64*i}, v{t[4]}")
        e(f"v_mul_lo_u32 v{t[1]}, v{t[0]}, s4")
        e(f"v_lshrrev_b32 v{t[1]}, 16, v{t[1]}")
        e(f"v_mul_u32_u24 v{t[2]}, {nper}, v{t[1]}")
        e(f"v_sub_u32 v{t[2]}, v{t[0]}, v{t[2]}")
        e(f"v_bfe_u32 v{t[3]}, v{t[1]}, 1, 1")
        if ffn:
            e(f"v_lshl_or_b32 v{t[3]}, v{t[3]}, 1, s{sT3}")
        else:
            e(f"v_lshlrev_b32 v{t[3]}, 2, v{t[3]}")
        e(f"v_xor_b32 v{t[2]}, v{t[2]}, v{t[3]}")
        e(f"v_mul_lo_u32 v{t[1]}, v{t[1]}, s5")
        e(f"v_lshl_add_u32 v{t[1]}, v{t[2]}, 4, v{t[1]}")
        e(f"v_add_u32 v{t[1]}, s{sT2}, v{t[1]}")
        e(f"v_subrev_u32 v{vWs[i]}, {1024*i}, v{t[1]}")
    e(f"s_lshl_b32 s4, s{sTB}, 7")
    e(f"s_lshl_b32 s5, s{sW}, 4")
    e(f"s_add_u32 s4, s4, s5")
    e(f"s_mul_i32 s4, s4, 1280")
    e(f"v_lshrrev_b32 v{t[0]}, 2, v{L}")
    e(f"v_bfe_u32 v{t[1]}, v{L}, 4, 2")
    e(f"v_and_b32 v{t[2]}, 3, v{L}")
    e(f"v_xor_b32 v{t[2]}, v{t[2]}, v{t[1]}")
    e(f"v_mul_u32_u24 v{t[0]}, 1280, v{t[0]}")
    e(f"v_lshl_add_u32 v{t[0]}, v{t[2]}, 4, v{t[0]}")
    e(f"v_add_u32 v{vXs}, s4, v{t[0]}")
    e(f"s_lshl_b32 s{sXM0}, s{sW}, 10")
    e(f"s_add_u32 s{sXM0}, s{sXM0}, {XR}")
    ROT = 4 if 'rot4' in EXP else 2
    if ROT == 2:
        e(f"s_lshr_b32 s6, s{sTB}, 3")
        e(f"s_mul_i32 s6, s6, 10")
        e(f"s_and_b32 s4, s{sTB}, 7")
        e(f"s_add_u32 s5, s4, 8")
        e(f"s_cmp_lt_u32 s4, 2")
        e(f"s_cselect_b32 s5, s5, 99")
    else:
        e(f"s_lshr_b32 s6, s{sTB}, 2")
        e(f"s_mul_i32 s6, s6, 5")
        e(f"s_and_b32 s4, s{sTB}, 3")
        e(f"s_cmp_eq_u32 s4, 0")
        e(f"s_cselect_b32 s5, 4, 99")
    e(f"s_mul_i32 s{sWso}, s6, {32*GROW}")
    e(f"s_lshl_b32 s{sXso}, s6, 6")
    nit0 = NSTG // RR - 1
    for sl in range(RR):
        e(f"s_mov_b32 s{sTRIG+sl}, 99")
        for pr in (4, 5):
            e(f"s_cmp_eq_u32 s{pr}, {sl}")
            e(f"s_cselect_b32 s{sTRIG+sl}, {nit0}, s{sTRIG+sl}")
            e(f"s_cmp_eq_u32 s{pr}, {sl+5}")
            e(f"s_cselect_b32 s{sTRIG+sl}, {nit0-1}, s{sTRIG+sl}")
    e(f"s_lshl_b32 s5, s{sROLE}, 4")
    e(f"s_add_u32 s4, s{sTB}, s5")
    e(f"s_mul_i32 s4, s4, 12")
    e(f"s_mul_i32 s5, s{sB}, {NT}")
    e(f"s_add_u32 s4, s4, s5")
    e(f"s_lshl_b32 s4, s4, 8")
    e(f"s_add_u32 s{sPOFF}, s4, {PCS_REL}")
    if ffn:
        e(f"s_cmp_eq_u32 s{sA}, 0")
        e(f"s_cselect_b32 s{sMINE}, 3, 4")
    else:
        e(f"s_lshl_b32 s{sMINE}, 1, s{sA}")
        e(f"s_cmp_eq_u32 s{sA}, 0")
        e(f"s_cselect_b32 s{sMINE}, 17, s{sMINE}")
    e("s_waitcnt lgkmcnt(0)")
    stamp(e, 0, True)
    stamp(e, 1)
    srd(e, SRDX, S_XP, 0, X_SZ)
    if ffn:
        e(f"s_cmp_ge_u32 s{sW}, 4")
        e(f"s_cselect_b32 s{SRDW}, s{S_UP}, s{S_GATE}")
        e(f"s_cselect_b32 s{SRDW+1}, s{S_UP+1}, s{S_GATE+1}")
        e(f"s_mov_b32 s{SRDW+2}, {hex(WG_SZ)}")
        e(f"s_mov_b32 s{SRDW+3}, 0x00020000")
    else:
        srd(e, SRDW, S_WQKV, 0, WQKV_SZ)

    def dma_group(slot, var):
        nw = 3 if (ffn or var == 0) else 2
        hot = 'hot' in EXP
        it = [[f"s_add_u32 m0, s{sXM0}, {slot*XSLOT}", "s_nop 0",
               f"buffer_load_dwordx4 v{vXs}, s[{SRDX}:{SRDX+3}], s{sXso} offen lds"]]
        it.append([f"s_add_u32 m0, s{sWM0}, {slot*WSLOT}", f"s_add_u32 s{sXso}, s{sXso}, {0 if hot else 64}",
                   f"buffer_load_dwordx4 v{vWs[0]}, s[{SRDW}:{SRDW+3}], s{sWso} offen lds"])
        for i in range(1, nw):
            it.append([f"buffer_load_dwordx4 v{vWs[i]}, s[{SRDW}:{SRDW+3}], s{sWso} offen offset:{1024*i} lds"])
        it[-1] += [f"s_add_u32 s{sWso}, s{sWso}, {0 if hot else 32*GROW}",
                   f"s_cmp_eq_u32 s{sXso}, 1280",
                   f"s_cselect_b32 s{sXso}, 0, s{sXso}",
                   f"s_cselect_b32 s{sWso}, 0, s{sWso}"]
        return it

    def gsize(var):
        return 4 if (ffn or var == 0) else 3

    setup = []
    q = setup.append
    g, r4, c4, bb = t[0], t[1], t[2], t[3]
    q(f"v_lshrrev_b32 v{g}, 4, v{L}")
    q(f"v_bfe_u32 v{r4}, v{L}, 2, 2")
    q(f"v_and_b32 v{c4}, 3, v{L}")
    q(f"v_bfe_u32 v{bb}, v{L}, 3, 1")
    q(f"v_lshrrev_b32 v{t[4]}, 1, v{g}")
    q(f"v_lshl_add_u32 v{t[4]}, v{t[4]}, 3, v{r4}")
    q(f"v_mul_u32_u24 v{t[4]}, {WROW}, v{t[4]}")
    q(f"v_and_b32 v{t[5]}, 1, v{g}")
    if ffn:
        q(f"v_mul_u32_u24 v{t[6]}, 12288, v{t[5]}")
        q(f"v_add_u32 v{t[4]}, v{t[4]}, v{t[6]}")
        q(f"v_and_b32 v{t[6]}, 1, v{c4}")
        q(f"v_lshl_add_u32 v{t[4]}, v{t[6]}, 3, v{t[4]}")
        q(f"v_lshlrev_b32 v{t[5]}, 2, v{t[5]}")
        q(f"v_lshl_add_u32 v{t[5]}, v{bb}, 1, v{t[5]}")
        q(f"v_lshrrev_b32 v{t[6]}, 1, v{c4}")
        q(f"s_mul_i32 s4, s{sB}, 6")
        for i in range(3):
            q(f"v_add3_u32 v{t[7]}, v{t[6]}, s4, {2*i}")
            q(f"v_xor_b32 v{t[7]}, v{t[7]}, v{t[5]}")
            q(f"v_lshl_add_u32 v{vWA[0][i]}, v{t[7]}, 4, v{t[4]}")
            if nset > 1:
                q(f"v_add_u32 v{vWA[1][i]}, {3*WSLOT}, v{vWA[0][i]}")
    else:
        q(f"v_lshl_add_u32 v{t[4]}, v{t[5]}, 5, v{t[4]}")
        q(f"v_lshl_add_u32 v{t[4]}, v{c4}, 3, v{t[4]}")
        q(f"s_mul_i32 s4, s{sB}, 320")
        q(f"v_add_u32 v{t[4]}, s4, v{t[4]}")
        q(f"v_lshlrev_b32 v{t[5]}, 6, v{bb}")
        q(f"v_sub_u32 v{t[6]}, 0, v{t[5]}")
        q(f"s_cmp_eq_u32 s{sB}, 0")
        q(f"s_cselect_b64 vcc, -1, 0")
        q(f"v_cndmask_b32 v{t[7]}, v{t[6]}, v{t[5]}, vcc")
        q(f"v_add_u32 v{vWA[0][0]}, v{t[4]}, v{t[7]}")
        q(f"v_sub_u32 v{vWA[0][1]}, v{t[4]}, v{t[7]}")
        if nset > 1:
            q(f"v_add_u32 v{vWA[1][0]}, {3*WSLOT}, v{vWA[0][0]}")
            q(f"v_add_u32 v{vWA[1][1]}, {3*WSLOT}, v{vWA[0][1]}")
    q(f"v_and_b32 v{t[0]}, 31, v{L}")
    q(f"v_bfe_u32 v{t[1]}, v{L}, 2, 2")
    q(f"v_lshrrev_b32 v{t[2]}, 5, v{L}")
    q(f"s_lshl_b32 s5, s{sA}, {12 if ffn else 11}")
    q(f"s_add_u32 s5, s5, {XR}")
    q(f"v_lshlrev_b32 v{t[0]}, 6, v{t[0]}")
    q(f"v_add_u32 v{t[0]}, s5, v{t[0]}")
    q(f"v_xor_b32 v{t[3]}, v{t[2]}, v{t[1]}")
    q(f"v_lshl_add_u32 v{vXB[0]}, v{t[3]}, 4, v{t[0]}")
    q(f"v_xor_b32 v{vXB[1]}, 32, v{vXB[0]}")
    q(f"v_min_u32 v{t[0]}, {NCS-1}, v0")
    q(f"v_lshlrev_b32 v{vGA}, 2, v{t[0]}")
    q(f"v_and_b32 v{t[0]}, 127, v0")
    q(f"v_lshlrev_b32 v{vSTA}, 2, v{t[0]}")
    q(f"v_and_b32 v{t[0]}, 15, v{L}")
    q(f"v_lshlrev_b32 v{vPA}, 4, v{t[0]}")
    q(f"v_and_b32 v{t[0]}, 31, v{L}")
    q(f"v_mov_b32 v{t[1]}, 0x3f803f80")
    q(f"v_cmp_eq_u32 vcc, 0, v{t[0]}")
    q(f"v_cmp_eq_u32 s[4:5], 17, v{t[0]}")
    q("s_nop 1")
    q("s_or_b64 vcc, vcc, s[4:5]")
    q("s_nop 1")
    q(f"v_cndmask_b32 v{vONE}, 0, v{t[1]}, vcc")
    for r in range(1, 4):
        q(f"v_mov_b32 v{vONE+r}, v{vONE}")
    for i in range(NT):
        for r in range(4):
            q(f"v_mov_b32 v{aCS[i]+r}, 0")
    zero = [f"v_mov_b32 v{acc[i][u]+r}, 0" for i in range(NT) for u in range(NU) for r in range(16)]
    setup_all = setup + zero

    def reads_w(slot, p):
        out = []
        for i in range(NT):
            st_, sl = (1, slot - 3) if slot >= 3 else (0, slot)
            if ffn:
                base = vWA[st_][i]
                off = sl * WSLOT + p * 16 * WROW
            else:
                base = vWA[st_][i & 1]
                off = sl * WSLOT + p * 16 * WROW + 64 * i
            a = fA[p][i]
            out.append([f"ds_read_b64_tr_b16 v[{a}:{a+1}], v{base} offset:{off}",
                        f"ds_read_b64_tr_b16 v[{a+2}:{a+3}], v{base} offset:{off+4*WROW}"])
        return out

    def reads_x(slot, p):
        return [f"ds_read_b128 v[{fB[p][u]}:{fB[p][u]+3}], v{vXB[p]} offset:{slot*XSLOT+2048*u}" for u in range(NU)]

    def read_slots(slot, p):
        rw, rx = reads_w(slot, p), reads_x(slot, p)
        if ffn:
            return [rw[0], [rx[0]], [rx[1]], rw[1], rw[2], []]
        return [rw[0] + rx, rw[1], rw[2], rw[3], rw[4]]

    def mfmas(p):
        out = []
        for i in range(NT):
            for u in range(NU):
                a, b, c = fA[p][i], fB[p][u], acc[i][u]
                if cls == "v":
                    a, b = b, a
                out.append(f"v_mfma_f32_32x32x16_bf16 v[{c}:{c+15}], v[{a}:{a+3}], v[{b}:{b+3}], v[{c}:{c+15}]")
        return out

    NS = NT * NU

    def weave(ms, fl):
        out = []
        for i, m in enumerate(ms):
            out.append(m)
            if i < len(fl):
                out.extend(fl[i])
        return out

    def stage(n, slot, var, fifo, last_group, extra0=None, extra1=None, force_vm=None, mid=None, post=None):
        body = []
        G = gsize(var)
        fl = read_slots(slot, 1)
        fl = [list(x) for x in fl]
        if var == 1 and 'nodma' not in EXP:
            gid = None if n is None else n + RR - 2
            if gid is None or gid <= last_group:
                items = dma_group((slot - 2) % RR, var)
                for k_, it in enumerate(items):
                    fl[min(NS - 1, 1 + k_)] += it
                fifo.append((gid, len(items)))
        if extra0:
            fl = merge(fl, extra0)
            fifo.append(("cs", 2))
        body += weave(mfmas(0), fl)
        if mid: body += mid
        if n is None:
            vm = G * (RR - 3)
        else:
            vm = 0
            seen = False
            for gid, cnt in fifo:
                if seen: vm += cnt
                if gid == n + 1: seen = True
            assert seen or n == NSTG - 1
            if force_vm is not None: vm = force_vm
        if n is None or n < NSTG - 1:
            if 'nodma' not in EXP:
                body.append(f"s_waitcnt vmcnt({vm})")
            body.append("s_barrier")
        if post: body += post
        nslot = (slot + 1) % RR
        if n is None or n < NSTG - 1:
            fl = [list(x) for x in read_slots(nslot, 0)]
        else:
            fl = [[] for _ in range(NS)]
        if var == 0 and 'nodma' not in EXP:
            gid = None if n is None else n + RR - 1
            if gid is None or gid <= last_group:
                items = dma_group((slot - 1) % RR, var)
                for k_, it in enumerate(items):
                    fl[min(NS - 1, 1 + k_)] += it
                fifo.append((gid, len(items)))
        if extra1:
            fl = merge(fl, extra1)
        body += weave(mfmas(1), fl)
        return body

    gl_load = [f"v_lshlrev_b32 v{t[1]}, 1, v{vGA}",
               f"v_lshlrev_b32 v{t[2]}, 2, v{vSTA}",
               f"s_mul_i32 s4, s{sROLE}, {384*8}",
               f"s_lshl_b32 s5, s{sTB}, 11",
               f"s_add_u32 s5, s5, {STG_REL}",
               f"buffer_load_dwordx2 v[{vG}:{vG+1}], v{t[1]}, s[{SRDC}:{SRDC+3}], s4 offen sc1",
               f"buffer_load_dwordx4 v[{vST}:{vST+3}], v{t[2]}, s[{SRDC}:{SRDC+3}], s5 offen sc1"]
    gl_test = [f"v_cmp_ne_u32 vcc, s{sNONCE}, v{vG+1}",
               f"v_cmp_ne_u32 s[6:7], s{sNONCE}, v{vST+2}",
               "s_nop 1",
               "s_or_b64 vcc, vcc, s[6:7]"]

    for var in range(2):
        lv = f"{pfx}_{cls}_v{var}"
        if var == 0:
            e(f"s_cmp_ge_u32 s{sW}, 4")
            e(f"s_cbranch_scc1 {pfx}_{cls}_v1")
        else:
            e.lab(lv)
        ngp = RR - 1 if var == 0 else RR - 2
        chunks = [setup_all[k * len(setup_all) // ngp:(k + 1) * len(setup_all) // ngp] for k in range(ngp)]
        fifo = []
        for gi in range(ngp):
            for it in dma_group(gi, var):
                for x in it: e(x)
            fifo.append((gi, gsize(var)))
            for x in chunks[gi]: e(x)
        srd(e, SRDD, S_DBG, 0, 256)
        srd(e, SRDC, S_WS, CSG_OFF, CSG_SZ)
        vm0 = gsize(var) * (ngp - 1)
        e(f"s_waitcnt vmcnt({vm0})")
        e("s_barrier")
        stamp(e, 2)
        pro = []
        rs0 = read_slots(0, 0)
        for x in rs0: pro += x
        pro, pend = autowait(pro, [])
        for x in pro: e(x)
        nit = NSTG // RR - 1
        e(f"s_mov_b32 s{sCNT}, {nit}")
        if var == 1 and 'noprio' not in EXP:
            e("s_setprio 1")
        loop = f"{pfx}_{cls}_loop{var}"
        e.lab(loop)
        body = []
        ff = []
        ool = []
        def cs_block(lab):
            b = [f"{lab}:", "s_waitcnt lgkmcnt(0)"]
            for i in range(NT):
                b += [f"s_bitcmp1_b32 s{sMINE}, {i}", f"s_cbranch_scc0 {lab}_s{i}"]
                for p in range(2):
                    b.append(f"v_mfma_f32_16x16x32_bf16 v[{aCS[i]}:{aCS[i]+3}], v[{vONE}:{vONE+3}], v[{fA[p][i]}:{fA[p][i]+3}], v[{aCS[i]}:{aCS[i]+3}]")
                b.append(f"{lab}_s{i}:")
            b.append(f"s_branch {lab}_back")
            return b
        for st in range(RR):
            mid = post = ex0 = None
            lab = e.newlab("k1cs")
            mid = [f"s_cmp_eq_u32 s{sCNT}, s{sTRIG+st}", f"s_cbranch_scc1 {lab}", f"{lab}_back:"]
            ool += cs_block(lab)
            if st == 2:
                lab = e.newlab("k1nl")
                mid += [f"s_cmp_eq_u32 s{sCNT}, {nit}", f"s_cbranch_scc0 {lab}",
                        f"buffer_load_dword v{vN}, off, s[{SRDD}:{SRDD+3}], 0 sc1", f"{lab}:"]
            if st == 4:
                lab = e.newlab("k1pub")
                post = [f"s_cmp_eq_u32 s{sCNT}, {nit if 'rot4' in EXP else nit-1}", f"s_cbranch_scc1 {lab}", f"{lab}_back:"]
                ool += [f"{lab}:",
                        "s_nop 7",
                        f"s_mov_b32 s4, 200000",
                        f"{lab}_n:",
                        f"v_readfirstlane_b32 s{sNONCE}, v{vN}",
                        f"s_cmp_lg_u32 s{sNONCE}, 0",
                        f"s_cbranch_scc1 {lab}_ok",
                        "s_sleep 2",
                        f"buffer_load_dword v{vN}, off, s[{SRDD}:{SRDD+3}], 0 sc1",
                        "s_waitcnt vmcnt(0)",
                        "s_sub_u32 s4, s4, 1",
                        "s_cmp_lg_u32 s4, 0",
                        f"s_cbranch_scc1 {lab}_n",
                        f"{lab}_ok:",
                        "s_mov_b64 exec, 0xffff"]
                for i in range(NT):
                    ool += [f"s_bitcmp1_b32 s{sMINE}, {i}", f"s_cbranch_scc0 {lab}_s{i}",
                            f"v_mov_b32 v{aCS[i]+2}, s{sNONCE}",
                            f"v_mov_b32 v{aCS[i]+3}, s{sNONCE}",
                            f"buffer_store_dwordx4 v[{aCS[i]}:{aCS[i]+3}], v{vPA}, s[{SRDC}:{SRDC+3}], s{sPOFF} offen offset:{256*i} sc1",
                            f"{lab}_s{i}:"]
                ool += ["s_mov_b64 exec, -1", f"s_branch {lab}_back"]
            body += stage(None, st, var, ff, 99, mid=mid, post=post)
        b1, pend1 = autowait(body, pend)
        b2, pend2 = autowait(body, pend1)
        assert b1 == b2, "loop waits not periodic"
        for x in b1: e(x)
        e(f"s_sub_u32 s{sCNT}, s{sCNT}, 1")
        e(f"s_cmp_lg_u32 s{sCNT}, 0")
        e(f"s_cbranch_scc1 {loop}")
        n0 = NSTG - RR
        hi_g = n0 + RR - 2 if var == 0 else n0 + RR - 3
        ff = [(g_, gsize(var)) for g_ in range(n0 + 1, hi_g + 1)]
        tail = []
        lretry, lback = e.newlab("k1retry"), e.newlab("k1back")
        for st in range(RR):
            n = n0 + st
            ex0 = ex1 = None
            fv = None
            if n == NSTG - 2:
                ex0 = [[] for _ in range(NS)]
                ex0[NS - 1] = gl_load
            if n == NSTG - 1:
                ex1 = [[] for _ in range(NS)]
                ex1[2] = ["s_waitcnt vmcnt(0)"] + gl_test + [
                          (f"s_cbranch_vccnz {lretry}" if 'nowait' not in EXP else "s_nop 0"),
                          f"{lback}:",
                          f"ds_write_b32 v{vGA}, v{vG} offset:{CSL}",
                          f"ds_write_b32 v{vSTA}, v{vST} offset:{RSL}",
                          f"ds_write_b32 v{vSTA}, v{vST+1} offset:{NML}"]
            sb = stage(n, st, var, ff, NSTG - 1, ex0, ex1, fv)
            tail += sb
        tl, pend3 = autowait(tail, pend1)
        for x in tl: e(x)
        e("s_waitcnt lgkmcnt(0)")
        e("s_barrier")
        if var == 0:
            e(f"s_branch {pfx}_{cls}_epi")
        ret = [f"{lretry}:", f"s_mov_b32 s{sCNT}, 200000", f"{lretry}_l:", "s_sleep 2"] + gl_load + [
            "s_waitcnt vmcnt(0)"] + gl_test + [
            f"s_cbranch_vccz {lback}",
            f"s_sub_u32 s{sCNT}, s{sCNT}, 1",
            f"s_cmp_lg_u32 s{sCNT}, 0",
            f"s_cbranch_scc1 {lretry}_l",
            f"s_branch {lback}"]
        if var == 0:
            for x in ret + ool: e(x)
        else:
            e(f"s_branch {pfx}_{cls}_epi")
            for x in ret + ool: e(x)

    e.lab(f"{pfx}_{cls}_epi")
    e("s_setprio 0")
    stamp(e, 3)
    e(f"v_and_b32 v{t[0]}, 31, v{L}")
    e(f"s_lshl_b32 s4, s{sA}, {6 if ffn else 5}")
    e(f"v_add_u32 v{t[0]}, s4, v{t[0]}")
    e(f"v_lshlrev_b32 v{t[0]}, 2, v{t[0]}")
    vNM = [R.a() for _ in range(NU)]
    vRS = [R.a() for _ in range(NU)]
    if cls != "v":
        for u in range(NU):
            e(f"ds_read_b32 v{vNM[u]}, v{t[0]} offset:{128*u+NML}")
            e(f"ds_read_b32 v{vRS[u]}, v{t[0]} offset:{128*u+RSL}")
    h = t[2]
    e(f"v_lshrrev_b32 v{h}, 5, v{L}")
    csa = t[3]
    e(f"s_mul_i32 s4, s{sB}, {NT*128}")
    e(f"v_lshlrev_b32 v{csa}, 4, v{h}")
    e(f"v_add_u32 v{csa}, s4, v{csa}")
    sc = store_sc
    frag0 = fA[0][0]
    nfr = (2 * NT + 2 * NU) * 4 + 4
    assert fS + 4 == frag0 + nfr
    if ffn:
        csr = [frag0, frag0 + 16, R.a(16, 4)]
        assert nfr >= 32
        for i in range(3):
            for a in range(4):
                e(f"ds_read_b128 v[{csr[i]+4*a}:{csr[i]+4*a+3}], v{csa} offset:{CSL+128*i+32*a}")
        srd(e, SRDO, S_WS, ACT_OFF, ACT_SZ)
        e(f"s_lshl_b32 s4, s{sTB}, 3")
        e(f"s_lshl_b32 s5, s{sA}, 2")
        e(f"s_add_u32 s4, s4, s5")
        e(f"s_mul_i32 s4, s4, {ACT_ROW}")
        e(f"s_sub_u32 s5, s{sROLE}, 6")
        e(f"s_mul_i32 s5, s5, 12")
        e(f"s_mul_i32 s6, s{sB}, 3")
        e(f"s_add_u32 s5, s5, s6")
        e(f"s_lshl_b32 s5, s5, 9")
        e(f"s_add_u32 s4, s4, s5")
        e(f"v_bfe_u32 v{t[4]}, v{L}, 4, 1")
        e(f"v_mul_u32_u24 v{t[4]}, {ACT_ROW}, v{t[4]}")
        e(f"v_lshl_add_u32 v{t[4]}, v{h}, 8, v{t[4]}")
        e(f"v_and_b32 v{t[5]}, 15, v{L}")
        e(f"v_lshl_add_u32 v{t[4]}, v{t[5]}, 4, v{t[4]}")
        e(f"v_add_u32 v{t[4]}, s4, v{t[4]}")
        e(f"s_mov_b32 s7, {2*ACT_ROW}")
        body = []
        for u in range(NU):
            body.append(f"v_mul_f32 v{vRS[u]}, v{vRS[u]}, v{vRS[u]}")
        for i in range(3):
            for u in range(2):
                c = acc[i][u]
                tm = csr[i]
                for r in range(16):
                    body.append(f"v_fmac_f32 v{c+r}, v{vNM[u]}, v{tm+r}")
                for r in range(8):
                    body.append(f"v_max_f32 v{c+r}, 0, v{c+r}")
                    body.append(f"v_mul_f32 v{c+8+r}, v{vRS[u]}, v{c+8+r}")
                for r in range(8):
                    body.append(f"v_mul_f32 v{c+r}, v{c+r}, v{c+8+r}")
                p_ = c + 8
                for r in range(4):
                    body.append(f"v_cvt_pk_bf16_f32 v{p_+r}, v{c+2*r}, v{c+2*r+1}")
                so = "0" if u == 0 else "s7"
                st_ = f"buffer_store_dwordx4 v[{p_}:{p_+3}], v{t[4]}, s[{SRDO}:{SRDO+3}], {so} offen offset:{512*i} {sc}"
                if "ek" in EXP:
                    lab = e.newlab("k1ds")
                    body += [f"s_cbranch_scc1 {lab}", st_, f"{lab}:"]
                    DEFER.append(st_)
                else:
                    body.append(st_)
        pend = [{vNM[0]}, {vRS[0]}, {vNM[1]}, {vRS[1]}] + [set(range(csr[i] + 4 * a, csr[i] + 4 * a + 4)) for i in range(3) for a in range(4)]
        e("s_waitcnt lgkmcnt(12)")
        pend = pend[4:]
        bl, _ = autowait(body, pend)
        if "ek" in EXP:
            e(f"s_cmp_eq_u32 s{sW}, 7")
        for x in bl: e(x)
    elif cls == "qk":
        nbuf = nfr // 16
        tm = [frag0 + 16 * k for k in range(2)]
        for i in range(2):
            for a in range(4):
                e(f"ds_read_b128 v[{tm[i]+4*a}:{tm[i]+4*a+3}], v{csa} offset:{CSL+128*i+32*a}")
        e(f"s_mov_b32 s6, {hex(QB_OFF)}")
        e(f"s_cmp_ge_u32 s{sROLE}, 2")
        e(f"s_cselect_b32 s4, {hex(KB_OFF)}, s6")
        e(f"s_cselect_b32 s5, 1.0, {hex(f2u(20**-0.5*1.4426950408889634))}")
        srd(e, SRDO, S_WS, "s4", QK_SZ)
        e(f"s_mov_b32 s31, s5")
        e(f"s_and_b32 s4, s{sROLE}, 1")
        e(f"s_lshl_b32 s4, s4, 3")
        e(f"s_lshl_b32 s5, s{sB}, 2")
        e(f"s_add_u32 s4, s4, s5")
        e(f"s_lshl_b32 s4, s4, 6")
        e(f"s_lshl_b32 s5, s{sTB}, 2")
        e(f"s_add_u32 s4, s4, s5")
        e(f"s_add_u32 s4, s4, s{sA}")
        e(f"s_mul_i32 s4, s4, 2560")
        e(f"v_lshlrev_b32 v{t[4]}, 4, v{L}")
        e(f"v_add_u32 v{t[4]}, s4, v{t[4]}")
        e(f"v_lshlrev_b32 v{t[5]}, 3, v{L}")
        e(f"v_add_u32 v{t[5]}, s4, v{t[5]}")
        e(f"v_add_u32 v{t[5]}, 2048, v{t[5]}")
        stg = R.a(40, 4)
        def dst(G):
            p, k = divmod(G, 5)
            base = stg + 10 * p
            return {0: base, 1: base + 2, 2: base + 8, 3: base + 4, 4: base + 6}[k]
        body = [f"v_mul_f32 v{vRS[0]}, s31, v{vRS[0]}"]
        for i in range(5):
            c = acc[i][0]
            tmc = tm[i & 1]
            for r in range(16):
                body.append(f"v_fmac_f32 v{c+r}, v{vNM[0]}, v{tmc+r}")
            if i + 2 < 5:
                for a in range(4):
                    body.append(f"ds_read_b128 v[{tmc+4*a}:{tmc+4*a+3}], v{csa} offset:{CSL+128*(i+2)+32*a}")
            for r in range(16):
                body.append(f"v_mul_f32 v{c+r}, v{vRS[0]}, v{c+r}")
            for a in range(4):
                G = 4 * i + a
                d = dst(G)
                body.append(f"v_cvt_pk_bf16_f32 v{d}, v{c+4*a}, v{c+4*a+1}")
                body.append(f"v_cvt_pk_bf16_f32 v{d+1}, v{c+4*a+2}, v{c+4*a+3}")
                p, k = divmod(G, 5)
                if k == 4:
                    base = stg + 10 * p
                    body.append(f"s_mov_b32 s7, {p*64*2560}")
                    body.append(f"buffer_store_dwordx4 v[{base}:{base+3}], v{t[4]}, s[{SRDO}:{SRDO+3}], s7 offen {sc}")
                    body.append(f"buffer_store_dwordx4 v[{base+4}:{base+7}], v{t[4]}, s[{SRDO}:{SRDO+3}], s7 offen offset:1024 {sc}")
                    body.append(f"buffer_store_dwordx2 v[{base+8}:{base+9}], v{t[5]}, s[{SRDO}:{SRDO+3}], s7 offen {sc}")
        pend = [{vNM[0]}, {vRS[0]}] + [set(range(tm[i] + 4 * a, tm[i] + 4 * a + 4)) for i in range(2) for a in range(4)]
        bl, _ = autowait(body, pend)
        for x in bl: e(x)
    else:
        srd(e, SRDO, S_WS, VB_OFF, VB_SZ)
        e(f"s_lshl_b32 s4, s{sA}, 7")
        e(f"v_lshlrev_b32 v{t[4]}, 4, v{h}")
        e(f"v_add_u32 v{t[4]}, s4, v{t[4]}")
        rsq = frag0
        nmq = rsq + 16
        assert nfr >= 32
        for a in range(4):
            e(f"ds_read_b128 v[{rsq+4*a}:{rsq+4*a+3}], v{t[4]} offset:{32*a+RSL}")
            e(f"ds_read_b128 v[{nmq+4*a}:{nmq+4*a+3}], v{t[4]} offset:{32*a+NML}")
        e(f"v_and_b32 v{t[1]}, 31, v{L}")
        e(f"s_mul_i32 s4, s{sB}, {NT*32}")
        e(f"v_add_u32 v{t[1]}, s4, v{t[1]}")
        e(f"v_lshlrev_b32 v{t[1]}, 2, v{t[1]}")
        csl = [R.a() for _ in range(5)]
        for i in range(5):
            e(f"ds_read_b32 v{csl[i]}, v{t[1]} offset:{CSL+128*i}")
        e(f"s_sub_u32 s4, s{sROLE}, 4")
        e(f"s_lshl_b32 s4, s4, 4")
        e(f"s_lshl_b32 s5, s{sB}, 3")
        e(f"s_add_u32 s4, s4, s5")
        e(f"s_lshl_b32 s4, s4, 6")
        e(f"s_lshl_b32 s5, s{sTB}, 2")
        e(f"s_add_u32 s4, s4, s5")
        e(f"s_add_u32 s4, s4, s{sA}")
        e(f"s_mul_i32 s4, s4, 1280")
        e(f"s_mov_b32 s5, 3277")
        e(f"s_mov_b32 s6, {64*1280}")
        va = [R.a() for _ in range(5)]
        for i in range(5):
            e(f"v_and_b32 v{t[5]}, 31, v{L}")
            e(f"v_add_u32 v{t[5]}, {32*i}, v{t[5]}")
            e(f"v_mul_lo_u32 v{t[6]}, v{t[5]}, s5")
            e(f"v_lshrrev_b32 v{t[6]}, 16, v{t[6]}")
            e(f"v_mul_u32_u24 v{t[7]}, 20, v{t[6]}")
            e(f"v_sub_u32 v{t[5]}, v{t[5]}, v{t[7]}")
            e(f"v_mul_lo_u32 v{t[6]}, v{t[6]}, s6")
            e(f"v_lshl_add_u32 v{t[6]}, v{t[5]}, 4, v{t[6]}")
            e(f"v_mul_u32_u24 v{t[7]}, 320, v{h}")
            e(f"v_add3_u32 v{va[i]}, v{t[6]}, v{t[7]}, s4")
        e("s_waitcnt lgkmcnt(0)")
        for i in range(5):
            c = acc[i][0]
            for r in range(16):
                e(f"v_fmac_f32 v{c+r}, v{nmq+r}, v{csl[i]}")
            for r in range(16):
                e(f"v_mul_f32 v{c+r}, v{rsq+r}, v{c+r}")
            for sidx in range(2):
                d = c + 8 * sidx
                for r in range(4):
                    e(f"v_cvt_pk_bf16_f32 v{d+r}, v{d+2*r}, v{d+2*r+1}")
                e(f"buffer_store_dwordx4 v[{d}:{d+3}], v{va[i]}, s[{SRDO}:{SRDO+3}], 0 offen offset:{640*sidx} {sc}")
    stamp(e, 7)
    if finish is None:
        e("s_waitcnt vmcnt(0)")
        stamp(e, 5)
        stamp(e, 6, True)
        stamp_dump(e, 8, 0, sW, S_WS)
        e("s_endpgm")
    else:
        finish(e, cls)
    return R.hi


def helper(e, store_sc="", finish=None, pfx="k1"):
    R = Regs(2, 256, "v")
    t = [R.a() for _ in range(6)]
    vSrc, vRd, vDst, vOff = R.a(), R.a(), R.a(), R.a()
    ac = R.a(8, 4)
    u_ = [R.a() for _ in range(4)]
    fr = [R.a(4, 4) for _ in range(5)]
    L = 1
    SRDA, SRDB, SRDS = 8, 12, 80
    sKS, sSO = 24, 25
    PART = 0
    BUF0 = 32768
    e.lab(f"{pfx}_helper")
    e(f"v_lshlrev_b32 v{vSrc}, 4, v{L}")
    e(f"v_lshrrev_b32 v{t[0]}, 5, v{L}")
    e(f"v_bfe_u32 v{t[1]}, v{L}, 4, 1")
    e(f"v_bfe_u32 v{t[2]}, v{L}, 2, 2")
    e(f"v_lshl_add_u32 v{t[2]}, v{t[1]}, 2, v{t[2]}")
    e(f"v_lshl_add_u32 v{t[2]}, v{t[0]}, 4, v{t[2]}")
    e(f"v_mul_u32_u24 v{t[2]}, 1280, v{t[2]}")
    e(f"v_and_b32 v{t[3]}, 3, v{L}")
    e(f"v_mul_u32_u24 v{t[3]}, 40, v{t[3]}")
    e(f"s_mul_i32 s4, s{sW}, 160")
    e(f"s_add_u32 s4, s4, {BUF0}")
    e(f"v_add3_u32 v{vRd}, v{t[2]}, v{t[3]}, s4")
    e(f"s_mul_i32 s4, s{sW}, {W3_CB}")
    e(f"v_add_u32 v{vDst}, s4, v{vSrc}")
    for r in range(8):
        e(f"v_mov_b32 v{ac+r}, 0")
    e("s_waitcnt lgkmcnt(0)")
    stamp(e, 0, True)
    stamp(e, 1)
    srd(e, SRDA, S_DOWN, 0, WD_SZ)
    srd(e, SRDB, S_WO, 0, WO_SZ)
    srd(e, SRDO, S_WS, W3_OFF, W3_SZ)
    srd(e, SRDD, S_DBG, 0, 256)
    srd(e, SRDC, S_WS, CSG_OFF, CSG_SZ)
    l0 = e.newlab("k1n")
    e(f"s_or_b32 s4, s2, s{sW}")
    e("s_cmp_lg_u32 s4, 0")
    e(f"s_cbranch_scc1 {l0}")
    e("s_memrealtime s[6:7]")
    e("s_waitcnt lgkmcnt(0)")
    e("s_or_b32 s6, s6, 1")
    e(f"v_mov_b32 v{t[0]}, s6")
    e("s_mov_b64 exec, 1")
    e(f"buffer_store_dword v{t[0]}, off, s[{SRDD}:{SRDD+3}], 0 sc1")
    e("s_mov_b64 exec, -1")
    e.lab(l0)

    def w3_dma(j):
        b = BUF0 + (j % 3) * 40960
        lab = e.newlab("w3")
        e(f"s_add_u32 s{sKS}, s{sTB}, {16*j}")
        e(f"s_mul_i32 m0, s{sW}, 5120")
        e(f"s_add_u32 m0, m0, {b}")
        def issue(sr):
            for i in range(4):
                e(f"buffer_load_dwordx4 v{vSrc}, s[{sr}:{sr+3}], s{sSO} offen offset:{1024*i} lds")
            e(f"s_add_u32 s{sSO}, s{sSO}, 4096")
            e(f"s_add_u32 m0, m0, 4096")
            e("s_nop 0")
            e(f"buffer_load_dwordx4 v{vSrc}, s[{sr}:{sr+3}], s{sSO} offen lds")
        if j >= 3:
            e(f"s_cmp_ge_u32 s{sKS}, 54")
            e(f"s_cbranch_scc1 {lab}_o")
        if j <= 3:
            e(f"s_lshl_b32 s4, s{sKS}, 5")
            e(f"s_lshl_b32 s5, s{sW}, 2")
            e(f"s_add_u32 s4, s4, s5")
            e(f"s_mul_i32 s{sSO}, s4, 1280")
            issue(SRDA)
        if j >= 3:
            e(f"s_branch {lab}_go")
            e.lab(f"{lab}_o")
            e(f"s_cmp_ge_u32 s{sKS}, 70")
            e(f"s_cbranch_scc1 {lab}_x")
            e(f"s_sub_u32 s4, s{sKS}, 54")
            e(f"s_mul_i32 s4, s4, 40")
            e(f"s_lshr_b32 s5, s{sW}, 2")
            e(f"s_mul_i32 s5, s5, 20")
            e(f"s_add_u32 s4, s4, s5")
            e(f"s_and_b32 s5, s{sW}, 3")
            e(f"s_lshl_b32 s5, s5, 2")
            e(f"s_add_u32 s4, s4, s5")
            e(f"s_branch {lab}_wo")
            e.lab(f"{lab}_x")
            e(f"s_sub_u32 s4, s{sKS}, 70")
            e(f"s_lshl_b32 s4, s4, 3")
            e(f"s_lshr_b32 s5, s{sW}, 2")
            e(f"s_lshl_b32 s5, s5, 2")
            e(f"s_add_u32 s4, s4, s5")
            e(f"s_and_b32 s5, s{sW}, 1")
            e(f"s_lshl_b32 s5, s5, 1")
            e(f"s_add_u32 s4, s4, s5")
            e(f"s_bfe_u32 s5, s{sW}, 0x10001")
            e(f"s_add_u32 s4, s4, s5")
            e(f"s_mul_i32 s4, s4, 20")
            e(f"s_add_u32 s4, s4, 16")
            e.lab(f"{lab}_wo")
            e(f"s_mul_i32 s{sSO}, s4, 1280")
            issue(SRDB)
            e.lab(f"{lab}_go")

    def repack_rd(j):
        off = (j % 3) * 40960
        e(f"s_mov_b32 s4, {off}")
        e(f"v_add_u32 v{t[0]}, s4, v{vRd}")
        for c5 in range(5):
            e(f"ds_read_b64_tr_b16 v[{fr[c5]}:{fr[c5]+1}], v{t[0]} offset:{8*c5}")
            e(f"ds_read_b64_tr_b16 v[{fr[c5]+2}:{fr[c5]+3}], v{t[0]} offset:{8*c5+8*1280}")
        e("s_waitcnt lgkmcnt(0)")
        e("s_barrier")

    def repack_st(j):
        e(f"s_add_u32 s4, s{sTB}, {16*j}")
        e(f"s_mul_i32 s7, s4, 5120")
        for c5 in range(4):
            e(f"buffer_store_dwordx4 v[{fr[c5]}:{fr[c5]+3}], v{vDst}, s[{SRDO}:{SRDO+3}], s7 offen offset:{1024*c5} {store_sc}")
        e(f"s_add_u32 s7, s7, 4096")
        e(f"buffer_store_dwordx4 v[{fr[4]}:{fr[4]+3}], v{vDst}, s[{SRDO}:{SRDO+3}], s7 offen {store_sc}")

    def repack(j):
        repack_rd(j)
        repack_st(j)

    HS = 'hs' in EXP
    for j in range(1 if HS else 3):
        w3_dma(j)
    xb = R.a(80, 4)
    srd(e, SRDS, S_XP, 0, X_SZ)
    e(f"s_lshl_b32 s4, s{sTB}, 7")
    e(f"s_lshl_b32 s5, s{sW}, 4")
    e(f"s_add_u32 s4, s4, s5")
    e(f"s_mul_i32 s4, s4, 1280")
    e(f"v_lshrrev_b32 v{t[0]}, 2, v{L}")
    e(f"v_mul_u32_u24 v{t[0]}, 1280, v{t[0]}")
    e(f"v_and_b32 v{t[1]}, 3, v{L}")
    e(f"v_lshl_add_u32 v{vOff}, v{t[1]}, 4, v{t[0]}")
    for j in range(20):
        e(f"buffer_load_dwordx4 v[{xb+4*j}:{xb+4*j+3}], v{vOff}, s[{SRDS}:{SRDS+3}], s4 offen offset:{64*j}")
    ln = e.newlab("csn")
    if HS:
        w3_dma(1)
        w3_dma(2)
        e("s_waitcnt vmcnt(30)")
        e("s_barrier")
        e(f"buffer_load_dword v{t[5]}, off, s[{SRDD}:{SRDD+3}], 0 sc1")
        repack(0)
        e("s_waitcnt vmcnt(16)")
        stamp(e, 2)
    else:
        e(f"s_mov_b32 s{sCNT}, 200000")
        e.lab(ln)
        e(f"buffer_load_dword v{t[5]}, off, s[{SRDD}:{SRDD+3}], 0 sc1")
        e("s_waitcnt vmcnt(0)")
        e(f"v_readfirstlane_b32 s{sNONCE}, v{t[5]}")
        e(f"s_cmp_lg_u32 s{sNONCE}, 0")
        e(f"s_cbranch_scc1 {ln}_ok")
        e("s_sleep 2")
        e(f"s_sub_u32 s{sCNT}, s{sCNT}, 1")
        e(f"s_cmp_lg_u32 s{sCNT}, 0")
        e(f"s_cbranch_scc1 {ln}")
        e.lab(f"{ln}_ok")
        stamp(e, 2)
    first = True
    for d in range(80):
        a_, b_ = u_[2 * (d & 1)], u_[2 * (d & 1) + 1]
        e(f"v_lshlrev_b32 v{a_}, 16, v{xb+d}")
        e(f"v_and_b32 v{b_}, s{sMASK}, v{xb+d}")
        k = 2 * (d & 1)
        e(f"v_add_f32 v{ac+k}, v{ac+k}, v{a_}")
        e(f"v_add_f32 v{ac+k+1}, v{ac+k+1}, v{b_}")
        e(f"v_fmac_f32 v{ac+4+k}, v{a_}, v{a_}")
        e(f"v_fmac_f32 v{ac+4+k+1}, v{b_}, v{b_}")
    e(f"v_add_f32 v{ac}, v{ac}, v{ac+1}")
    e(f"v_add_f32 v{ac+2}, v{ac+2}, v{ac+3}")
    e(f"v_add_f32 v{ac+4}, v{ac+4}, v{ac+5}")
    e(f"v_add_f32 v{ac+6}, v{ac+6}, v{ac+7}")
    e(f"v_add_f32 v{ac}, v{ac}, v{ac+2}")
    e(f"v_add_f32 v{ac+4}, v{ac+4}, v{ac+6}")
    e(f"s_mov_b32 s4, {hex(f2u(1.0/640))}")
    e(f"s_mov_b32 s5, {hex(f2u(1e-5))}")
    for qp in ("[1,0,3,2]", "[2,3,0,1]"):
        e("s_nop 1")
        e(f"v_add_f32_dpp v{ac}, v{ac}, v{ac} quad_perm:{qp} row_mask:0xf bank_mask:0xf")
        e(f"v_add_f32_dpp v{ac+4}, v{ac+4}, v{ac+4} quad_perm:{qp} row_mask:0xf bank_mask:0xf")
    e("s_nop 0")
    e(f"v_mul_f32 v{ac+1}, s4, v{ac}")
    e(f"v_mul_f32 v{ac+4}, s4, v{ac+4}")
    e(f"v_fma_f32 v{ac+4}, -v{ac+1}, v{ac+1}, v{ac+4}")
    e(f"v_max_f32 v{ac+4}, 0, v{ac+4}")
    e(f"v_add_f32 v{ac+4}, s5, v{ac+4}")
    e(f"v_rsq_f32 v{ac}, v{ac+4}")
    e(f"v_sub_f32 v{ac+1}, 0, v{ac+1}")
    if HS:
        e(f"s_mov_b32 s{sCNT}, 200000")
        e("s_waitcnt vmcnt(5)")
        e.lab(ln)
        e(f"v_readfirstlane_b32 s{sNONCE}, v{t[5]}")
        e(f"s_cmp_lg_u32 s{sNONCE}, 0")
        e(f"s_cbranch_scc1 {ln}_ok")
        e("s_sleep 2")
        e(f"buffer_load_dword v{t[5]}, off, s[{SRDD}:{SRDD+3}], 0 sc1")
        e("s_waitcnt vmcnt(0)")
        e(f"s_sub_u32 s{sCNT}, s{sCNT}, 1")
        e(f"s_cmp_lg_u32 s{sCNT}, 0")
        e(f"s_cbranch_scc1 {ln}")
        e.lab(f"{ln}_ok")
    e(f"v_mov_b32 v{ac+2}, s{sNONCE}")
    e(f"v_mov_b32 v{ac+3}, s{sNONCE}")
    e(f"v_lshrrev_b32 v{t[0]}, 2, v{L}")
    e(f"v_lshlrev_b32 v{t[0]}, 4, v{t[0]}")
    e(f"s_lshl_b32 s4, s{sTB}, 11")
    e(f"s_lshl_b32 s5, s{sW}, 8")
    e(f"s_add_u32 s4, s4, s5")
    e(f"s_add_u32 s4, s4, {STG_REL}")
    e("s_mov_b32 exec_lo, 0x11111111")
    e("s_mov_b32 exec_hi, 0x11111111")
    e(f"buffer_store_dwordx4 v[{ac}:{ac+3}], v{t[0]}, s[{SRDC}:{SRDC+3}], s4 offen sc1")
    e("s_mov_b64 exec, -1")
    stamp(e, 3)
    e("s_barrier")
    if not HS:
        repack(0)
        w3_dma(3)
    repack(1)
    if HS:
        w3_dma(3)
    l4 = e.newlab("w3s")
    e(f"s_cmp_ge_u32 s{sTB}, 10")
    e(f"s_cbranch_scc1 {l4}")
    w3_dma(4)
    e.lab(l4)
    if HS:
        repack_rd(2)
    else:
        repack(2)
    stamp(e, 4)
    lg = e.newlab("csg")
    lskip = f"{lg}_skip" if HS else f"{lg}_end"
    e(f"s_cmp_eq_u32 s{sTB}, 15")
    e(f"s_cbranch_scc1 {lskip}")
    e(f"s_cmp_ge_u32 s{sW}, 3")
    e(f"s_cbranch_scc1 {lskip}")
    e(f"s_mov_b32 s5, 159")
    e(f"s_cmp_lt_u32 s{sTB}, 6")
    e(f"s_cselect_b32 s4, s5, 191")
    e(f"v_min_u32 v{t[0]}, s4, v0")
    e(f"v_lshlrev_b32 v{t[1]}, 4, v{t[0]}")
    e(f"s_mov_b32 s{sCNT}, 200000")
    def gather():
        e(f"s_mul_i32 s4, s{sTB}, {16*3072}")
        e(f"s_add_u32 s4, s4, {PCS_REL}")
        for u in range(16):
            e(f"buffer_load_dwordx4 v[{xb+4*u}:{xb+4*u+3}], v{t[1]}, s[{SRDC}:{SRDC+3}], s4 offen sc1")
            if u < 15:
                e(f"s_add_u32 s4, s4, 3072")
    if HS:
        gather()
        repack_st(2)
        e("s_waitcnt vmcnt(5)")
        e(f"s_branch {lg}_chk")
    e.lab(lg)
    gather()
    e("s_waitcnt vmcnt(0)")
    e.lab(f"{lg}_chk")
    e(f"v_xor_b32 v{t[2]}, s{sNONCE}, v{xb+2}")
    for u in range(1, 16):
        e(f"v_xor_b32 v{t[3]}, s{sNONCE}, v{xb+4*u+2}")
        e(f"v_or_b32 v{t[2]}, v{t[2]}, v{t[3]}")
    e(f"v_cmp_ne_u32 vcc, 0, v{t[2]}")
    e("s_nop 1")
    e(f"s_cbranch_vccz {lg}_ok")
    e("s_sleep 4")
    e(f"s_sub_u32 s{sCNT}, s{sCNT}, 1")
    e(f"s_cmp_lg_u32 s{sCNT}, 0")
    e(f"s_cbranch_scc1 {lg}")
    e.lab(f"{lg}_ok")
    for u in range(1, 16):
        e(f"v_add_f32 v{xb}, v{xb}, v{xb+4*u}")
        e(f"v_add_f32 v{xb+1}, v{xb+1}, v{xb+4*u+1}")
    e(f"v_mov_b32 v{xb+2}, v{xb+1}")
    e(f"v_mov_b32 v{xb+1}, s{sNONCE}")
    e(f"v_mov_b32 v{xb+3}, s{sNONCE}")
    e(f"v_lshrrev_b32 v{t[2]}, 4, v{t[0]}")
    e(f"v_and_b32 v{t[3]}, 15, v{t[0]}")
    e(f"v_lshlrev_b32 v{t[3]}, 3, v{t[3]}")
    e(f"v_lshl_add_u32 v{t[3]}, v{t[2]}, 8, v{t[3]}")
    e(f"s_mul_i32 s4, s{sTB}, {384*8}")
    e(f"buffer_store_dwordx2 v[{xb}:{xb+1}], v{t[3]}, s[{SRDC}:{SRDC+3}], s4 offen sc1")
    e(f"buffer_store_dwordx2 v[{xb+2}:{xb+3}], v{t[3]}, s[{SRDC}:{SRDC+3}], s4 offen offset:128 sc1")
    if HS:
        e(f"s_branch {lg}_end")
        e.lab(lskip)
        repack_st(2)
    e.lab(f"{lg}_end")
    lend = f"{pfx}_h_end"
    e("s_waitcnt vmcnt(%d)" % (5 if HS else 0))
    e("s_barrier")
    repack(3)
    e(f"s_cmp_ge_u32 s{sTB}, 10")
    e(f"s_cbranch_scc1 {lend}")
    repack(4)
    e.lab(lend)
    stamp(e, 7)
    if finish is None:
        e("s_waitcnt vmcnt(0)")
        stamp(e, 5)
        stamp(e, 6, True)
        stamp_dump(e, 8, 0, sW, S_WS)
        e("s_endpgm")
    else:
        finish(e, "helper")
    return R.hi


def gen_k1(e, name, store_sc=""):
    e.l.append(kernel_header(name))
    prologue(e)
    hi = 0
    hi = max(hi, gemm(e, "qk", store_sc))
    hi = max(hi, gemm(e, "v", store_sc))
    hi = max(hi, gemm(e, "ffn", store_sc))
    hi = max(hi, helper(e, store_sc))
    e.lab("k1_exit")
    e("s_endpgm")
    return hi
```

```python
import sys
from common import *
import p1, flags as F

HDR = open("cdna_kernels/" + KNAME + ".s.ref").read().split("; Override launch")[0]

def build(std=False):
    import importlib
    p2 = importlib.import_module("p2c" if "ek" in p1.EXP else "p2b" if "att2" in p1.EXP else "p2")
    p3 = importlib.import_module("p3b" if "p3b" in p1.EXP else "p3")
    e = E()
    name = KNAME + "_kernel" if std else "mk_kernel"
    e.l.append(kernel_header(name))
    def finish(e, cls):
        e("s_waitcnt vmcnt(0)")
        e("s_barrier")
        F.publish(e, [f"s_lshl_b32 s4, s{p1.sROLE}, 4", f"s_add_u32 s4, s4, s{p1.sTB}"], F.F1_REL, 2)
        stamp(e, 4)
        e("s_branch p2_entry")
    def mapping(e, pub):
        sP, sQB = 20, 21
        e(f"s_lshl_b32 s34, s{p1.sROLE}, 4")
        e(f"s_add_u32 s34, s34, s{p1.sTB}")
        e("s_mov_b32 s35, " + ("s34" if pub else "-1"))
        e("s_and_b32 s3, s2, 7")
        e("s_lshr_b32 s4, s2, 3")
        e("s_lshl_b32 s5, s3, 1")
        e("s_lshr_b32 s6, s4, 4")
        e(f"s_add_u32 s{sP}, s5, s6")
        e(f"s_and_b32 s{sQB}, s4, 15")
        e("s_lshr_b32 s5, s3, 1")
        e("s_lshl_b32 s5, s5, 3")
        e("s_and_b32 s6, s4, 7")
        e(f"s_add_u32 s{F.sTB3}, s5, s6")
        e("s_and_b32 s5, s3, 1")
        e("s_lshl_b32 s5, s5, 2")
        e("s_lshr_b32 s6, s4, 3")
        e(f"s_add_u32 s{F.sCB3}, s5, s6")
    def finish_ek(e, cls):
        vF, vPo, t = 11, 12, [2, 3, 4]
        ffn = cls == "ffn"
        mapping(e, ffn)
        l7 = e.newlab("ek7")
        e(f"s_cmp_lg_u32 s{p1.sW}, 7")
        e(f"s_cbranch_scc1 {l7}")
        F.addr_qkvw(e, vF, t, 20, 21)
        e(F.poll_load(vF, vPo))
        if ffn:
            F.poll_check(e, vF, vPo, 31, "s_waitcnt vmcnt(0)")
        e.lab(l7)
        stamp(e, 7)
        if not ffn:
            e("s_waitcnt vmcnt(0)")
            e("s_barrier")
            F.publish(e, ["s_mov_b32 s4, s34"], F.F1_REL, 2)
            stamp(e, 4)
            l8 = e.newlab("ek8")
            e(f"s_cmp_lg_u32 s{p1.sW}, 7")
            e(f"s_cbranch_scc1 {l8}")
            F.poll_check(e, vF, vPo, 31)
            e.lab(l8)
            e("s_barrier")
        else:
            e("s_barrier")
            l8 = e.newlab("ek8")
            e(f"s_cmp_lg_u32 s{p1.sW}, 7")
            e(f"s_cbranch_scc1 {l8}")
            for x in p1.DEFER: e(x)
            e.lab(l8)
        e("s_branch p2_entry")
    if "ek" in p1.EXP: finish = finish_ek
    p1.prologue(e)
    hi = 0
    for cls in ("qk", "v", "ffn"):
        hi = max(hi, p1.gemm(e, cls, "sc1", finish))
    hi = max(hi, p1.helper(e, "sc1", finish))
    h2 = p2.gen_p2(e)
    h3 = 256 if 'att2' in p1.EXP else p3.gen_p3(e)
    e.lab("k1_exit")
    e("s_endpgm")
    hi = max(hi, h2, h3)
    txt = HDR
    if std:
        txt += f"; @launch grid=(256,1,1) block=(512,1,1) lds={p1.P1_LDS}\n"
    else:
        txt += f"; @launch kernel={name} grid=(256,1,1) block=(512,1,1) lds={p1.P1_LDS}\n"
    txt += '.amdgcn_target "amdgcn-amd-amdhsa--gfx950"\n.text\n'
    txt += e.text()
    txt += '.section .rodata,"a"\n'
    txt += ".p2align 6\n" + kernel_desc(name, vgpr=256 if hi > 248 else (hi + 7) // 8 * 8)
    print("vgpr hi:", hi, h2, h3, file=sys.stderr)
    return txt

if __name__ == "__main__":
    import common
    std = False
    if "--prof" in sys.argv:
        sys.argv.remove("--prof"); common.PROF = True
    for a_ in list(sys.argv):
        if a_.startswith("--p2="):
            sys.argv.remove(a_); common.PROF2 = [int(x) for x in a_[5:].split(",")]
        if a_.startswith("--pclk="):
            sys.argv.remove(a_); common.PCLK = [int(x) for x in a_[7:].split(",")]; common.PROF2 = [10, 12, 11]; common.NOSTAMP.update([10, 11, 12, 13])
    if "--std" in sys.argv:
        sys.argv.remove("--std"); std = True
    p1.EXP.update(["sc1", "rot4", "hs"])
    for a in list(sys.argv):
        if a.startswith("--exp="):
            sys.argv.remove(a)
            p1.EXP.update(a[6:].split(","))
    if 'ps' in p1.EXP or 'ps2' in p1.EXP: common.NOSTAMP.update([8, 9, 10, 11, 12, 13])
    out = sys.argv[1]
    open(out, "w").write(build(std))
```

```python
from common import *
import struct

def f2u(x):
    return struct.unpack("<I", struct.pack("<f", x))[0]

R_RING = 5
XSLOT = 8192
XR = 122880
P1_LDS = XR + R_RING * XSLOT
CSL = 0
RSL = 1536
NML = 2048

CSG_OFF = 0x1800000
STG_REL = 0x10000
PCS_REL = 0x20000
CSG_SZ = 0x100000

S_XP, S_WQKV, S_WO, S_GATE, S_UP, S_DOWN, S_OUT, S_DBG, S_WS = 40, 42, 44, 48, 50, 52, 54, 56, 58
SRDX, SRDW, SRDO = 8, 12, 16
sTB, sROLE, sW, sCNT, sWso, sXso, sWM0, sXM0 = 20, 21, 22, 23, 24, 25, 27, 28
sNONCE = 29
sT0, sT1, sT2, sT3 = 32, 33, 34, 35
sA, sB = 36, 37
sMASK = 39
sTRIG = 60
sMINE, sPOFF = 26, 30
SRDC, SRDD = 72, 76
EXP = set()
DEFER = []


def load_ptrs(e):
    e("s_load_dwordx16 s[40:55], s[0:1], 0")
    e("s_load_dwordx4 s[56:59], s[0:1], 64")


def prologue(e, pfx="k1"):
    import common
    if common.PROF and 'es' in EXP:
        e("s_memrealtime s[100:101]")
        e("s_waitcnt lgkmcnt(0)")
        e("s_mov_b32 s86, s100")
    e("s_cmp_ge_u32 s2, 256")
    e(f"s_cbranch_scc1 {pfx}_exit")
    load_ptrs(e)
    e("v_and_b32 v1, 63, v0")
    e("v_lshrrev_b32 v2, 6, v0")
    e("s_and_b32 s3, s2, 7")
    e("s_lshr_b32 s4, s2, 3")
    e(f"v_readfirstlane_b32 s{sW}, v2")
    e("s_and_b32 s5, s3, 1")
    e("s_lshl_b32 s5, s5, 3")
    e("s_and_b32 s6, s4, 7")
    e(f"s_add_u32 s{sTB}, s5, s6")
    e("s_lshr_b32 s5, s3, 1")
    e("s_lshl_b32 s5, s5, 2")
    e("s_lshr_b32 s6, s4, 3")
    e(f"s_add_u32 s{sROLE}, s5, s6")
    e(f"s_add_u32 s{sROLE}, s{sROLE}, 15")
    e(f"s_and_b32 s{sROLE}, s{sROLE}, 15")
    e(f"s_mov_b32 s{sMASK}, 0xffff0000")
    e(f"s_cmp_eq_u32 s{sROLE}, 15")
    e(f"s_cbranch_scc1 {pfx}_helper")
    e(f"s_cmp_ge_u32 s{sROLE}, 6")
    e(f"s_cbranch_scc1 {pfx}_ffn")
    e(f"s_cmp_ge_u32 s{sROLE}, 4")
    e(f"s_cbranch_scc1 {pfx}_v")
    e(f"s_branch {pfx}_qk")


def gemm(e, cls, store_sc="", finish=None, pfx="k1"):
    ffn = cls == "ffn"
    RR = R_RING
    NSTG = 20
    NT = 3 if ffn else 5
    NU = 2 if ffn else 1
    WSLOT = 24576 if ffn else 20480
    WROW = 384 if ffn else 640
    GROW = 3456 if ffn else 3840
    NCS = 384 if ffn else 320
    R = Regs(2, 256, "v")
    t = [R.a() for _ in range(8)]
    vWs = [R.a() for _ in range(3)]
    vXs = R.a()
    nset = 2 if RR > 3 else 1
    NWB = 3 if ffn else 2
    vWA = [[R.a() for i in range(NWB)] for st in range(nset)]
    vXB = [R.a() for _ in range(2)]
    vG = R.a(2, 2)
    vN = R.a()
    vGA = R.a()
    vSTA = R.a()
    vPA = R.a()
    vST = R.a(4, 4)
    vONE = R.a(4, 4)
    aCS = [R.a(4, 4) for i in range(NT)]
    fA = [[R.a(4, 4) for i in range(NT)] for b in range(2)]
    fB = [[R.a(4, 4) for u in range(NU)] for b in range(2)]
    fS = R.a(4, 4)
    acc = [[R.a(16, 4) for u in range(NU)] for i in range(NT)]
    L = 1

    e.lab(f"{pfx}_{cls}")
    e.c(f"---------------- setup {cls} ----------------")
    if ffn:
        e(f"s_and_b32 s{sA}, s{sW}, 1")
        e(f"s_lshr_b32 s{sB}, s{sW}, 1")
    else:
        e(f"s_and_b32 s{sA}, s{sW}, 3")
        e(f"s_lshr_b32 s{sB}, s{sW}, 2")
    if ffn:
        e(f"s_and_b32 s{sT0}, s{sW}, 3")
        e(f"s_lshr_b32 s{sT1}, s{sW}, 2")
        e(f"s_sub_u32 s{sT2}, s{sROLE}, 6")
        e(f"s_mul_i32 s{sT2}, s{sT2}, 384")
        e(f"s_mul_i32 s{sT3}, s{sT0}, {8*GROW}")
        e(f"s_add_u32 s{sT2}, s{sT2}, s{sT3}")
        e(f"s_lshl_b32 s{sT3}, s{sT1}, 2")
        e(f"s_mul_i32 s4, s{sT0}, 3072")
        e(f"s_mul_i32 s5, s{sT1}, 12288")
        e(f"s_add_u32 s{sWM0}, s4, s5")
        nper, magic = 24, 2731
        e(f"v_mov_b32 v{t[4]}, v{L}")
    else:
        e(f"s_mul_i32 s4, s{sW}, 3")
        e(f"s_lshl_b32 s5, s{sW}, 1")
        e(f"s_add_u32 s5, s5, 4")
        e(f"s_cmp_ge_u32 s{sW}, 4")
        e(f"s_cselect_b32 s4, s5, s4")
        e(f"s_lshl_b32 s{sWM0}, s4, 10")
        e(f"s_lshl_b32 s4, s4, 6")
        e(f"s_mul_i32 s{sT2}, s{sROLE}, 640")
        nper, magic = 40, 1639
        e(f"v_add_u32 v{t[4]}, s4, v{L}")
    e(f"s_mov_b32 s4, {magic}")
    e(f"s_mov_b32 s5, {GROW}")
    for i in range(3):
        e(f"v_add_u32 v{t[0]}, {64*i}, v{t[4]}")
        e(f"v_mul_lo_u32 v{t[1]}, v{t[0]}, s4")
        e(f"v_lshrrev_b32 v{t[1]}, 16, v{t[1]}")
        e(f"v_mul_u32_u24 v{t[2]}, {nper}, v{t[1]}")
        e(f"v_sub_u32 v{t[2]}, v{t[0]}, v{t[2]}")
        e(f"v_bfe_u32 v{t[3]}, v{t[1]}, 1, 1")
        if ffn:
            e(f"v_lshl_or_b32 v{t[3]}, v{t[3]}, 1, s{sT3}")
        else:
            e(f"v_lshlrev_b32 v{t[3]}, 2, v{t[3]}")
        e(f"v_xor_b32 v{t[2]}, v{t[2]}, v{t[3]}")
        e(f"v_mul_lo_u32 v{t[1]}, v{t[1]}, s5")
        e(f"v_lshl_add_u32 v{t[1]}, v{t[2]}, 4, v{t[1]}")
        e(f"v_add_u32 v{t[1]}, s{sT2}, v{t[1]}")
        e(f"v_subrev_u32 v{vWs[i]}, {1024*i}, v{t[1]}")
    e(f"s_lshl_b32 s4, s{sTB}, 7")
    e(f"s_lshl_b32 s5, s{sW}, 4")
    e(f"s_add_u32 s4, s4, s5")
    e(f"s_mul_i32 s4, s4, 1280")
    e(f"v_lshrrev_b32 v{t[0]}, 2, v{L}")
    e(f"v_bfe_u32 v{t[1]}, v{L}, 4, 2")
    e(f"v_and_b32 v{t[2]}, 3, v{L}")
    e(f"v_xor_b32 v{t[2]}, v{t[2]}, v{t[1]}")
    e(f"v_mul_u32_u24 v{t[0]}, 1280, v{t[0]}")
    e(f"v_lshl_add_u32 v{t[0]}, v{t[2]}, 4, v{t[0]}")
    e(f"v_add_u32 v{vXs}, s4, v{t[0]}")
    e(f"s_lshl_b32 s{sXM0}, s{sW}, 10")
    e(f"s_add_u32 s{sXM0}, s{sXM0}, {XR}")
    ROT = 4 if 'rot4' in EXP else 2
    if ROT == 2:
        e(f"s_lshr_b32 s6, s{sTB}, 3")
        e(f"s_mul_i32 s6, s6, 10")
        e(f"s_and_b32 s4, s{sTB}, 7")
        e(f"s_add_u32 s5, s4, 8")
        e(f"s_cmp_lt_u32 s4, 2")
        e(f"s_cselect_b32 s5, s5, 99")
    else:
        e(f"s_lshr_b32 s6, s{sTB}, 2")
        e(f"s_mul_i32 s6, s6, 5")
        e(f"s_and_b32 s4, s{sTB}, 3")
        e(f"s_cmp_eq_u32 s4, 0")
        e(f"s_cselect_b32 s5, 4, 99")
    e(f"s_mul_i32 s{sWso}, s6, {32*GROW}")
    e(f"s_lshl_b32 s{sXso}, s6, 6")
    nit0 = NSTG // RR - 1
    for sl in range(RR):
        e(f"s_mov_b32 s{sTRIG+sl}, 99")
        for pr in (4, 5):
            e(f"s_cmp_eq_u32 s{pr}, {sl}")
            e(f"s_cselect_b32 s{sTRIG+sl}, {nit0}, s{sTRIG+sl}")
            e(f"s_cmp_eq_u32 s{pr}, {sl+5}")
            e(f"s_cselect_b32 s{sTRIG+sl}, {nit0-1}, s{sTRIG+sl}")
    e(f"s_lshl_b32 s5, s{sROLE}, 4")
    e(f"s_add_u32 s4, s{sTB}, s5")
    e(f"s_mul_i32 s4, s4, 12")
    e(f"s_mul_i32 s5, s{sB}, {NT}")
    e(f"s_add_u32 s4, s4, s5")
    e(f"s_lshl_b32 s4, s4, 8")
    e(f"s_add_u32 s{sPOFF}, s4, {PCS_REL}")
    if ffn:
        e(f"s_cmp_eq_u32 s{sA}, 0")
        e(f"s_cselect_b32 s{sMINE}, 3, 4")
    else:
        e(f"s_lshl_b32 s{sMINE}, 1, s{sA}")
        e(f"s_cmp_eq_u32 s{sA}, 0")
        e(f"s_cselect_b32 s{sMINE}, 17, s{sMINE}")
    e("s_waitcnt lgkmcnt(0)")
    stamp(e, 0, True)
    stamp(e, 1)
    srd(e, SRDX, S_XP, 0, X_SZ)
    if ffn:
        e(f"s_cmp_ge_u32 s{sW}, 4")
        e(f"s_cselect_b32 s{SRDW}, s{S_UP}, s{S_GATE}")
        e(f"s_cselect_b32 s{SRDW+1}, s{S_UP+1}, s{S_GATE+1}")
        e(f"s_mov_b32 s{SRDW+2}, {hex(WG_SZ)}")
        e(f"s_mov_b32 s{SRDW+3}, 0x00020000")
    else:
        srd(e, SRDW, S_WQKV, 0, WQKV_SZ)

    def dma_group(slot, var):
        nw = 3 if (ffn or var == 0) else 2
        hot = 'hot' in EXP
        it = [[f"s_add_u32 m0, s{sXM0}, {slot*XSLOT}", "s_nop 0",
               f"buffer_load_dwordx4 v{vXs}, s[{SRDX}:{SRDX+3}], s{sXso} offen lds"]]
        it.append([f"s_add_u32 m0, s{sWM0}, {slot*WSLOT}", f"s_add_u32 s{sXso}, s{sXso}, {0 if hot else 64}",
                   f"buffer_load_dwordx4 v{vWs[0]}, s[{SRDW}:{SRDW+3}], s{sWso} offen lds"])
        for i in range(1, nw):
            it.append([f"buffer_load_dwordx4 v{vWs[i]}, s[{SRDW}:{SRDW+3}], s{sWso} offen offset:{1024*i} lds"])
        it[-1] += [f"s_add_u32 s{sWso}, s{sWso}, {0 if hot else 32*GROW}",
                   f"s_cmp_eq_u32 s{sXso}, 1280",
                   f"s_cselect_b32 s{sXso}, 0, s{sXso}",
                   f"s_cselect_b32 s{sWso}, 0, s{sWso}"]
        return it

    def gsize(var):
        return 4 if (ffn or var == 0) else 3

    setup = []
    q = setup.append
    g, r4, c4, bb = t[0], t[1], t[2], t[3]
    q(f"v_lshrrev_b32 v{g}, 4, v{L}")
    q(f"v_bfe_u32 v{r4}, v{L}, 2, 2")
    q(f"v_and_b32 v{c4}, 3, v{L}")
    q(f"v_bfe_u32 v{bb}, v{L}, 3, 1")
    q(f"v_lshrrev_b32 v{t[4]}, 1, v{g}")
    q(f"v_lshl_add_u32 v{t[4]}, v{t[4]}, 3, v{r4}")
    q(f"v_mul_u32_u24 v{t[4]}, {WROW}, v{t[4]}")
    q(f"v_and_b32 v{t[5]}, 1, v{g}")
    if ffn:
        q(f"v_mul_u32_u24 v{t[6]}, 12288, v{t[5]}")
        q(f"v_add_u32 v{t[4]}, v{t[4]}, v{t[6]}")
        q(f"v_and_b32 v{t[6]}, 1, v{c4}")
        q(f"v_lshl_add_u32 v{t[4]}, v{t[6]}, 3, v{t[4]}")
        q(f"v_lshlrev_b32 v{t[5]}, 2, v{t[5]}")
        q(f"v_lshl_add_u32 v{t[5]}, v{bb}, 1, v{t[5]}")
        q(f"v_lshrrev_b32 v{t[6]}, 1, v{c4}")
        q(f"s_mul_i32 s4, s{sB}, 6")
        for i in range(3):
            q(f"v_add3_u32 v{t[7]}, v{t[6]}, s4, {2*i}")
            q(f"v_xor_b32 v{t[7]}, v{t[7]}, v{t[5]}")
            q(f"v_lshl_add_u32 v{vWA[0][i]}, v{t[7]}, 4, v{t[4]}")
            if nset > 1:
                q(f"v_add_u32 v{vWA[1][i]}, {3*WSLOT}, v{vWA[0][i]}")
    else:
        q(f"v_lshl_add_u32 v{t[4]}, v{t[5]}, 5, v{t[4]}")
        q(f"v_lshl_add_u32 v{t[4]}, v{c4}, 3, v{t[4]}")
        q(f"s_mul_i32 s4, s{sB}, 320")
        q(f"v_add_u32 v{t[4]}, s4, v{t[4]}")
        q(f"v_lshlrev_b32 v{t[5]}, 6, v{bb}")
        q(f"v_sub_u32 v{t[6]}, 0, v{t[5]}")
        q(f"s_cmp_eq_u32 s{sB}, 0")
        q(f"s_cselect_b64 vcc, -1, 0")
        q(f"v_cndmask_b32 v{t[7]}, v{t[6]}, v{t[5]}, vcc")
        q(f"v_add_u32 v{vWA[0][0]}, v{t[4]}, v{t[7]}")
        q(f"v_sub_u32 v{vWA[0][1]}, v{t[4]}, v{t[7]}")
        if nset > 1:
            q(f"v_add_u32 v{vWA[1][0]}, {3*WSLOT}, v{vWA[0][0]}")
            q(f"v_add_u32 v{vWA[1][1]}, {3*WSLOT}, v{vWA[0][1]}")
    q(f"v_and_b32 v{t[0]}, 31, v{L}")
    q(f"v_bfe_u32 v{t[1]}, v{L}, 2, 2")
    q(f"v_lshrrev_b32 v{t[2]}, 5, v{L}")
    q(f"s_lshl_b32 s5, s{sA}, {12 if ffn else 11}")
    q(f"s_add_u32 s5, s5, {XR}")
    q(f"v_lshlrev_b32 v{t[0]}, 6, v{t[0]}")
    q(f"v_add_u32 v{t[0]}, s5, v{t[0]}")
    q(f"v_xor_b32 v{t[3]}, v{t[2]}, v{t[1]}")
    q(f"v_lshl_add_u32 v{vXB[0]}, v{t[3]}, 4, v{t[0]}")
    q(f"v_xor_b32 v{vXB[1]}, 32, v{vXB[0]}")
    q(f"v_min_u32 v{t[0]}, {NCS-1}, v0")
    q(f"v_lshlrev_b32 v{vGA}, 2, v{t[0]}")
    q(f"v_and_b32 v{t[0]}, 127, v0")
    q(f"v_lshlrev_b32 v{vSTA}, 2, v{t[0]}")
    q(f"v_and_b32 v{t[0]}, 15, v{L}")
    q(f"v_lshlrev_b32 v{vPA}, 4, v{t[0]}")
    q(f"v_and_b32 v{t[0]}, 31, v{L}")
    q(f"v_mov_b32 v{t[1]}, 0x3f803f80")
    q(f"v_cmp_eq_u32 vcc, 0, v{t[0]}")
    q(f"v_cmp_eq_u32 s[4:5], 17, v{t[0]}")
    q("s_nop 1")
    q("s_or_b64 vcc, vcc, s[4:5]")
    q("s_nop 1")
    q(f"v_cndmask_b32 v{vONE}, 0, v{t[1]}, vcc")
    for r in range(1, 4):
        q(f"v_mov_b32 v{vONE+r}, v{vONE}")
    for i in range(NT):
        for r in range(4):
            q(f"v_mov_b32 v{aCS[i]+r}, 0")
    zero = [f"v_mov_b32 v{acc[i][u]+r}, 0" for i in range(NT) for u in range(NU) for r in range(16)]
    setup_all = setup + zero

    def reads_w(slot, p):
        out = []
        for i in range(NT):
            st_, sl = (1, slot - 3) if slot >= 3 else (0, slot)
            if ffn:
                base = vWA[st_][i]
                off = sl * WSLOT + p * 16 * WROW
            else:
                base = vWA[st_][i & 1]
                off = sl * WSLOT + p * 16 * WROW + 64 * i
            a = fA[p][i]
            out.append([f"ds_read_b64_tr_b16 v[{a}:{a+1}], v{base} offset:{off}",
                        f"ds_read_b64_tr_b16 v[{a+2}:{a+3}], v{base} offset:{off+4*WROW}"])
        return out

    def reads_x(slot, p):
        return [f"ds_read_b128 v[{fB[p][u]}:{fB[p][u]+3}], v{vXB[p]} offset:{slot*XSLOT+2048*u}" for u in range(NU)]

    def read_slots(slot, p):
        rw, rx = reads_w(slot, p), reads_x(slot, p)
        if ffn:
            return [rw[0], [rx[0]], [rx[1]], rw[1], rw[2], []]
        return [rw[0] + rx, rw[1], rw[2], rw[3], rw[4]]

    def mfmas(p):
        out = []
        for i in range(NT):
            for u in range(NU):
                a, b, c = fA[p][i], fB[p][u], acc[i][u]
                if cls == "v":
                    a, b = b, a
                out.append(f"v_mfma_f32_32x32x16_bf16 v[{c}:{c+15}], v[{a}:{a+3}], v[{b}:{b+3}], v[{c}:{c+15}]")
        return out

    NS = NT * NU

    def weave(ms, fl):
        out = []
        for i, m in enumerate(ms):
            out.append(m)
            if i < len(fl):
                out.extend(fl[i])
        return out

    def stage(n, slot, var, fifo, last_group, extra0=None, extra1=None, force_vm=None, mid=None, post=None):
        body = []
        G = gsize(var)
        fl = read_slots(slot, 1)
        fl = [list(x) for x in fl]
        if var == 1 and 'nodma' not in EXP:
            gid = None if n is None else n + RR - 2
            if gid is None or gid <= last_group:
                items = dma_group((slot - 2) % RR, var)
                for k_, it in enumerate(items):
                    fl[min(NS - 1, 1 + k_)] += it
                fifo.append((gid, len(items)))
        if extra0:
            fl = merge(fl, extra0)
            fifo.append(("cs", 2))
        body += weave(mfmas(0), fl)
        if mid: body += mid
        if n is None:
            vm = G * (RR - 3)
        else:
            vm = 0
            seen = False
            for gid, cnt in fifo:
                if seen: vm += cnt
                if gid == n + 1: seen = True
            assert seen or n == NSTG - 1
            if force_vm is not None: vm = force_vm
        if n is None or n < NSTG - 1:
            if 'nodma' not in EXP:
                body.append(f"s_waitcnt vmcnt({vm})")
            body.append("s_barrier")
        if post: body += post
        nslot = (slot + 1) % RR
        if n is None or n < NSTG - 1:
            fl = [list(x) for x in read_slots(nslot, 0)]
        else:
            fl = [[] for _ in range(NS)]
        if var == 0 and 'nodma' not in EXP:
            gid = None if n is None else n + RR - 1
            if gid is None or gid <= last_group:
                items = dma_group((slot - 1) % RR, var)
                for k_, it in enumerate(items):
                    fl[min(NS - 1, 1 + k_)] += it
                fifo.append((gid, len(items)))
        if extra1:
            fl = merge(fl, extra1)
        body += weave(mfmas(1), fl)
        return body

    gl_load = [f"v_lshlrev_b32 v{t[1]}, 1, v{vGA}",
               f"v_lshlrev_b32 v{t[2]}, 2, v{vSTA}",
               f"s_mul_i32 s4, s{sROLE}, {384*8}",
               f"s_lshl_b32 s5, s{sTB}, 11",
               f"s_add_u32 s5, s5, {STG_REL}",
               f"buffer_load_dwordx2 v[{vG}:{vG+1}], v{t[1]}, s[{SRDC}:{SRDC+3}], s4 offen sc1",
               f"buffer_load_dwordx4 v[{vST}:{vST+3}], v{t[2]}, s[{SRDC}:{SRDC+3}], s5 offen sc1"]
    gl_test = [f"v_cmp_ne_u32 vcc, s{sNONCE}, v{vG+1}",
               f"v_cmp_ne_u32 s[6:7], s{sNONCE}, v{vST+2}",
               "s_nop 1",
               "s_or_b64 vcc, vcc, s[6:7]"]

    for var in range(2):
        lv = f"{pfx}_{cls}_v{var}"
        if var == 0:
            e(f"s_cmp_ge_u32 s{sW}, 4")
            e(f"s_cbranch_scc1 {pfx}_{cls}_v1")
        else:
            e.lab(lv)
        ngp = RR - 1 if var == 0 else RR - 2
        chunks = [setup_all[k * len(setup_all) // ngp:(k + 1) * len(setup_all) // ngp] for k in range(ngp)]
        fifo = []
        for gi in range(ngp):
            for it in dma_group(gi, var):
                for x in it: e(x)
            fifo.append((gi, gsize(var)))
            for x in chunks[gi]: e(x)
        srd(e, SRDD, S_DBG, 0, 256)
        srd(e, SRDC, S_WS, CSG_OFF, CSG_SZ)
        vm0 = gsize(var) * (ngp - 1)
        e(f"s_waitcnt vmcnt({vm0})")
        e("s_barrier")
        if 'es' not in EXP: stamp(e, 2)
        pro = []
        rs0 = read_slots(0, 0)
        for x in rs0: pro += x
        pro, pend = autowait(pro, [])
        for x in pro: e(x)
        nit = NSTG // RR - 1
        e(f"s_mov_b32 s{sCNT}, {nit}")
        if var == 1 and 'noprio' not in EXP:
            e("s_setprio 1")
        loop = f"{pfx}_{cls}_loop{var}"
        e.lab(loop)
        body = []
        ff = []
        ool = []
        def cs_block(lab):
            b = [f"{lab}:", "s_waitcnt lgkmcnt(0)"]
            for i in range(NT):
                b += [f"s_bitcmp1_b32 s{sMINE}, {i}", f"s_cbranch_scc0 {lab}_s{i}"]
                for p in range(2):
                    b.append(f"v_mfma_f32_16x16x32_bf16 v[{aCS[i]}:{aCS[i]+3}], v[{vONE}:{vONE+3}], v[{fA[p][i]}:{fA[p][i]+3}], v[{aCS[i]}:{aCS[i]+3}]")
                b.append(f"{lab}_s{i}:")
            b.append(f"s_branch {lab}_back")
            return b
        for st in range(RR):
            mid = post = ex0 = None
            lab = e.newlab("k1cs")
            mid = [f"s_cmp_eq_u32 s{sCNT}, s{sTRIG+st}", f"s_cbranch_scc1 {lab}", f"{lab}_back:"]
            ool += cs_block(lab)
            if st == 2:
                lab = e.newlab("k1nl")
                mid += [f"s_cmp_eq_u32 s{sCNT}, {nit}", f"s_cbranch_scc0 {lab}",
                        f"buffer_load_dword v{vN}, off, s[{SRDD}:{SRDD+3}], 0 sc1", f"{lab}:"]
            if st == 4:
                lab = e.newlab("k1pub")
                post = [f"s_cmp_eq_u32 s{sCNT}, {nit if 'rot4' in EXP else nit-1}", f"s_cbranch_scc1 {lab}", f"{lab}_back:"]
                ool += [f"{lab}:",
                        "s_nop 7",
                        f"s_mov_b32 s4, 200000",
                        f"{lab}_n:",
                        f"v_readfirstlane_b32 s{sNONCE}, v{vN}",
                        f"s_cmp_lg_u32 s{sNONCE}, 0",
                        f"s_cbranch_scc1 {lab}_ok",
                        "s_sleep 2",
                        f"buffer_load_dword v{vN}, off, s[{SRDD}:{SRDD+3}], 0 sc1",
                        "s_waitcnt vmcnt(0)",
                        "s_sub_u32 s4, s4, 1",
                        "s_cmp_lg_u32 s4, 0",
                        f"s_cbranch_scc1 {lab}_n",
                        f"{lab}_ok:",
                        "s_mov_b64 exec, 0xffff"]
                for i in range(NT):
                    ool += [f"s_bitcmp1_b32 s{sMINE}, {i}", f"s_cbranch_scc0 {lab}_s{i}",
                            f"v_mov_b32 v{aCS[i]+2}, s{sNONCE}",
                            f"v_mov_b32 v{aCS[i]+3}, s{sNONCE}",
                            f"buffer_store_dwordx4 v[{aCS[i]}:{aCS[i]+3}], v{vPA}, s[{SRDC}:{SRDC+3}], s{sPOFF} offen offset:{256*i} sc1",
                            f"{lab}_s{i}:"]
                ool += ["s_mov_b64 exec, -1", f"s_branch {lab}_back"]
            body += stage(None, st, var, ff, 99, mid=mid, post=post)
        b1, pend1 = autowait(body, pend)
        b2, pend2 = autowait(body, pend1)
        assert b1 == b2, "loop waits not periodic"
        for x in b1: e(x)
        e(f"s_sub_u32 s{sCNT}, s{sCNT}, 1")
        e(f"s_cmp_lg_u32 s{sCNT}, 0")
        e(f"s_cbranch_scc1 {loop}")
        n0 = NSTG - RR
        hi_g = n0 + RR - 2 if var == 0 else n0 + RR - 3
        ff = [(g_, gsize(var)) for g_ in range(n0 + 1, hi_g + 1)]
        tail = []
        lretry, lback = e.newlab("k1retry"), e.newlab("k1back")
        for st in range(RR):
            n = n0 + st
            ex0 = ex1 = None
            fv = None
            if n == NSTG - 2:
                ex0 = [[] for _ in range(NS)]
                ex0[NS - 1] = gl_load
            if n == NSTG - 1:
                ex1 = [[] for _ in range(NS)]
                ex1[2] = ["s_waitcnt vmcnt(0)"] + gl_test + [
                          (f"s_cbranch_vccnz {lretry}" if 'nowait' not in EXP else "s_nop 0"),
                          f"{lback}:",
                          f"ds_write_b32 v{vGA}, v{vG} offset:{CSL}",
                          f"ds_write_b32 v{vSTA}, v{vST} offset:{RSL}",
                          f"ds_write_b32 v{vSTA}, v{vST+1} offset:{NML}"]
            sb = stage(n, st, var, ff, NSTG - 1, ex0, ex1, fv)
            tail += sb
        tl, pend3 = autowait(tail, pend1)
        for x in tl: e(x)
        e("s_waitcnt lgkmcnt(0)")
        e("s_barrier")
        if var == 0:
            e(f"s_branch {pfx}_{cls}_epi")
        ret = [f"{lretry}:", f"s_mov_b32 s{sCNT}, 200000", f"{lretry}_l:", "s_sleep 2"] + gl_load + [
            "s_waitcnt vmcnt(0)"] + gl_test + [
            f"s_cbranch_vccz {lback}",
            f"s_sub_u32 s{sCNT}, s{sCNT}, 1",
            f"s_cmp_lg_u32 s{sCNT}, 0",
            f"s_cbranch_scc1 {lretry}_l",
            f"s_branch {lback}"]
        if var == 0:
            for x in ret + ool: e(x)
        else:
            e(f"s_branch {pfx}_{cls}_epi")
            for x in ret + ool: e(x)

    e.lab(f"{pfx}_{cls}_epi")
    e("s_setprio 0")
    stamp(e, 3)
    e(f"v_and_b32 v{t[0]}, 31, v{L}")
    e(f"s_lshl_b32 s4, s{sA}, {6 if ffn else 5}")
    e(f"v_add_u32 v{t[0]}, s4, v{t[0]}")
    e(f"v_lshlrev_b32 v{t[0]}, 2, v{t[0]}")
    vNM = [R.a() for _ in range(NU)]
    vRS = [R.a() for _ in range(NU)]
    if cls != "v":
        for u in range(NU):
            e(f"ds_read_b32 v{vNM[u]}, v{t[0]} offset:{128*u+NML}")
            e(f"ds_read_b32 v{vRS[u]}, v{t[0]} offset:{128*u+RSL}")
    h = t[2]
    e(f"v_lshrrev_b32 v{h}, 5, v{L}")
    csa = t[3]
    e(f"s_mul_i32 s4, s{sB}, {NT*128}")
    e(f"v_lshlrev_b32 v{csa}, 4, v{h}")
    e(f"v_add_u32 v{csa}, s4, v{csa}")
    sc = store_sc
    frag0 = fA[0][0]
    nfr = (2 * NT + 2 * NU) * 4 + 4
    assert fS + 4 == frag0 + nfr
    if ffn:
        csr = [frag0, frag0 + 16, R.a(16, 4)]
        assert nfr >= 32
        for i in range(3):
            for a in range(4):
                e(f"ds_read_b128 v[{csr[i]+4*a}:{csr[i]+4*a+3}], v{csa} offset:{CSL+128*i+32*a}")
        srd(e, SRDO, S_WS, ACT_OFF, ACT_SZ)
        e(f"s_lshl_b32 s4, s{sTB}, 3")
        e(f"s_lshl_b32 s5, s{sA}, 2")
        e(f"s_add_u32 s4, s4, s5")
        e(f"s_mul_i32 s4, s4, {ACT_ROW}")
        e(f"s_sub_u32 s5, s{sROLE}, 6")
        e(f"s_mul_i32 s5, s5, 12")
        e(f"s_mul_i32 s6, s{sB}, 3")
        e(f"s_add_u32 s5, s5, s6")
        e(f"s_lshl_b32 s5, s5, 9")
        e(f"s_add_u32 s4, s4, s5")
        e(f"v_bfe_u32 v{t[4]}, v{L}, 4, 1")
        e(f"v_mul_u32_u24 v{t[4]}, {ACT_ROW}, v{t[4]}")
        e(f"v_lshl_add_u32 v{t[4]}, v{h}, 8, v{t[4]}")
        e(f"v_and_b32 v{t[5]}, 15, v{L}")
        e(f"v_lshl_add_u32 v{t[4]}, v{t[5]}, 4, v{t[4]}")
        e(f"v_add_u32 v{t[4]}, s4, v{t[4]}")
        e(f"s_mov_b32 s7, {2*ACT_ROW}")
        body = []
        for u in range(NU):
            body.append(f"v_mul_f32 v{vRS[u]}, v{vRS[u]}, v{vRS[u]}")
        for i in range(3):
            for u in range(2):
                c = acc[i][u]
                tm = csr[i]
                for r in range(16):
                    body.append(f"v_fmac_f32 v{c+r}, v{vNM[u]}, v{tm+r}")
                for r in range(8):
                    body.append(f"v_max_f32 v{c+r}, 0, v{c+r}")
                    body.append(f"v_mul_f32 v{c+8+r}, v{vRS[u]}, v{c+8+r}")
                for r in range(8):
                    body.append(f"v_mul_f32 v{c+r}, v{c+r}, v{c+8+r}")
                p_ = c + 8
                for r in range(4):
                    body.append(f"v_cvt_pk_bf16_f32 v{p_+r}, v{c+2*r}, v{c+2*r+1}")
                so = "0" if u == 0 else "s7"
                st_ = f"buffer_store_dwordx4 v[{p_}:{p_+3}], v{t[4]}, s[{SRDO}:{SRDO+3}], {so} offen offset:{512*i} {sc}"
                if "ek" in EXP:
                    lab = e.newlab("k1ds")
                    body += [f"s_cbranch_scc1 {lab}", st_, f"{lab}:"]
                    DEFER.append(st_)
                else:
                    body.append(st_)
        pend = [{vNM[0]}, {vRS[0]}, {vNM[1]}, {vRS[1]}] + [set(range(csr[i] + 4 * a, csr[i] + 4 * a + 4)) for i in range(3) for a in range(4)]
        e("s_waitcnt lgkmcnt(12)")
        pend = pend[4:]
        bl, _ = autowait(body, pend)
        if "ek" in EXP:
            e(f"s_cmp_eq_u32 s{sW}, 7")
        for x in bl: e(x)
    elif cls == "qk":
        nbuf = nfr // 16
        tm = [frag0 + 16 * k for k in range(2)]
        for i in range(2):
            for a in range(4):
                e(f"ds_read_b128 v[{tm[i]+4*a}:{tm[i]+4*a+3}], v{csa} offset:{CSL+128*i+32*a}")
        e(f"s_mov_b32 s6, {hex(QB_OFF)}")
        e(f"s_cmp_ge_u32 s{sROLE}, 2")
        e(f"s_cselect_b32 s4, {hex(KB_OFF)}, s6")
        e(f"s_cselect_b32 s5, 1.0, {hex(f2u(20**-0.5*1.4426950408889634))}")
        srd(e, SRDO, S_WS, "s4", QK_SZ)
        e(f"s_mov_b32 s31, s5")
        e(f"s_and_b32 s4, s{sROLE}, 1")
        e(f"s_lshl_b32 s4, s4, 3")
        e(f"s_lshl_b32 s5, s{sB}, 2")
        e(f"s_add_u32 s4, s4, s5")
        e(f"s_lshl_b32 s4, s4, 6")
        e(f"s_lshl_b32 s5, s{sTB}, 2")
        e(f"s_add_u32 s4, s4, s5")
        e(f"s_add_u32 s4, s4, s{sA}")
        e(f"s_mul_i32 s4, s4, 2560")
        e(f"v_lshlrev_b32 v{t[4]}, 4, v{L}")
        e(f"v_add_u32 v{t[4]}, s4, v{t[4]}")
        e(f"v_lshlrev_b32 v{t[5]}, 3, v{L}")
        e(f"v_add_u32 v{t[5]}, s4, v{t[5]}")
        e(f"v_add_u32 v{t[5]}, 2048, v{t[5]}")
        stg = R.a(40, 4)
        def dst(G):
            p, k = divmod(G, 5)
            base = stg + 10 * p
            return {0: base, 1: base + 2, 2: base + 8, 3: base + 4, 4: base + 6}[k]
        body = [f"v_mul_f32 v{vRS[0]}, s31, v{vRS[0]}"]
        for i in range(5):
            c = acc[i][0]
            tmc = tm[i & 1]
            for r in range(16):
                body.append(f"v_fmac_f32 v{c+r}, v{vNM[0]}, v{tmc+r}")
            if i + 2 < 5:
                for a in range(4):
                    body.append(f"ds_read_b128 v[{tmc+4*a}:{tmc+4*a+3}], v{csa} offset:{CSL+128*(i+2)+32*a}")
            for r in range(16):
                body.append(f"v_mul_f32 v{c+r}, v{vRS[0]}, v{c+r}")
            for a in range(4):
                G = 4 * i + a
                d = dst(G)
                body.append(f"v_cvt_pk_bf16_f32 v{d}, v{c+4*a}, v{c+4*a+1}")
                body.append(f"v_cvt_pk_bf16_f32 v{d+1}, v{c+4*a+2}, v{c+4*a+3}")
                p, k = divmod(G, 5)
                if k == 4:
                    base = stg + 10 * p
                    body.append(f"s_mov_b32 s7, {p*64*2560}")
                    body.append(f"buffer_store_dwordx4 v[{base}:{base+3}], v{t[4]}, s[{SRDO}:{SRDO+3}], s7 offen {sc}")
                    body.append(f"buffer_store_dwordx4 v[{base+4}:{base+7}], v{t[4]}, s[{SRDO}:{SRDO+3}], s7 offen offset:1024 {sc}")
                    body.append(f"buffer_store_dwordx2 v[{base+8}:{base+9}], v{t[5]}, s[{SRDO}:{SRDO+3}], s7 offen {sc}")
        pend = [{vNM[0]}, {vRS[0]}] + [set(range(tm[i] + 4 * a, tm[i] + 4 * a + 4)) for i in range(2) for a in range(4)]
        bl, _ = autowait(body, pend)
        for x in bl: e(x)
    else:
        srd(e, SRDO, S_WS, VB_OFF, VB_SZ)
        e(f"s_lshl_b32 s4, s{sA}, 7")
        e(f"v_lshlrev_b32 v{t[4]}, 4, v{h}")
        e(f"v_add_u32 v{t[4]}, s4, v{t[4]}")
        rsq = frag0
        nmq = rsq + 16
        assert nfr >= 32
        for a in range(4):
            e(f"ds_read_b128 v[{rsq+4*a}:{rsq+4*a+3}], v{t[4]} offset:{32*a+RSL}")
            e(f"ds_read_b128 v[{nmq+4*a}:{nmq+4*a+3}], v{t[4]} offset:{32*a+NML}")
        e(f"v_and_b32 v{t[1]}, 31, v{L}")
        e(f"s_mul_i32 s4, s{sB}, {NT*32}")
        e(f"v_add_u32 v{t[1]}, s4, v{t[1]}")
        e(f"v_lshlrev_b32 v{t[1]}, 2, v{t[1]}")
        csl = [R.a() for _ in range(5)]
        for i in range(5):
            e(f"ds_read_b32 v{csl[i]}, v{t[1]} offset:{CSL+128*i}")
        e(f"s_sub_u32 s4, s{sROLE}, 4")
        e(f"s_lshl_b32 s4, s4, 4")
        e(f"s_lshl_b32 s5, s{sB}, 3")
        e(f"s_add_u32 s4, s4, s5")
        e(f"s_lshl_b32 s4, s4, 6")
        e(f"s_lshl_b32 s5, s{sTB}, 2")
        e(f"s_add_u32 s4, s4, s5")
        e(f"s_add_u32 s4, s4, s{sA}")
        e(f"s_mul_i32 s4, s4, 1280")
        e(f"s_mov_b32 s5, 3277")
        e(f"s_mov_b32 s6, {64*1280}")
        va = [R.a() for _ in range(5)]
        for i in range(5):
            e(f"v_and_b32 v{t[5]}, 31, v{L}")
            e(f"v_add_u32 v{t[5]}, {32*i}, v{t[5]}")
            e(f"v_mul_lo_u32 v{t[6]}, v{t[5]}, s5")
            e(f"v_lshrrev_b32 v{t[6]}, 16, v{t[6]}")
            e(f"v_mul_u32_u24 v{t[7]}, 20, v{t[6]}")
            e(f"v_sub_u32 v{t[5]}, v{t[5]}, v{t[7]}")
            e(f"v_mul_lo_u32 v{t[6]}, v{t[6]}, s6")
            e(f"v_lshl_add_u32 v{t[6]}, v{t[5]}, 4, v{t[6]}")
            e(f"v_mul_u32_u24 v{t[7]}, 320, v{h}")
            e(f"v_add3_u32 v{va[i]}, v{t[6]}, v{t[7]}, s4")
        e("s_waitcnt lgkmcnt(0)")
        for i in range(5):
            c = acc[i][0]
            for r in range(16):
                e(f"v_fmac_f32 v{c+r}, v{nmq+r}, v{csl[i]}")
            for r in range(16):
                e(f"v_mul_f32 v{c+r}, v{rsq+r}, v{c+r}")
            for sidx in range(2):
                d = c + 8 * sidx
                for r in range(4):
                    e(f"v_cvt_pk_bf16_f32 v{d+r}, v{d+2*r}, v{d+2*r+1}")
                e(f"buffer_store_dwordx4 v[{d}:{d+3}], v{va[i]}, s[{SRDO}:{SRDO+3}], 0 offen offset:{640*sidx} {sc}")
    stamp(e, 7)
    if finish is None:
        e("s_waitcnt vmcnt(0)")
        stamp(e, 5)
        stamp(e, 6, True)
        stamp_dump(e, 8, 0, sW, S_WS)
        e("s_endpgm")
    else:
        finish(e, cls)
    return R.hi


def helper(e, store_sc="", finish=None, pfx="k1"):
    R = Regs(2, 256, "v")
    t = [R.a() for _ in range(6)]
    vSrc, vRd, vDst, vOff = R.a(), R.a(), R.a(), R.a()
    ac = R.a(8, 4)
    u_ = [R.a() for _ in range(4)]
    fr = [R.a(4, 4) for _ in range(5)]
    L = 1
    SRDA, SRDB, SRDS = 8, 12, 80
    sKS, sSO = 24, 25
    PART = 0
    BUF0 = 32768
    e.lab(f"{pfx}_helper")
    e(f"v_lshlrev_b32 v{vSrc}, 4, v{L}")
    e(f"v_lshrrev_b32 v{t[0]}, 5, v{L}")
    e(f"v_bfe_u32 v{t[1]}, v{L}, 4, 1")
    e(f"v_bfe_u32 v{t[2]}, v{L}, 2, 2")
    e(f"v_lshl_add_u32 v{t[2]}, v{t[1]}, 2, v{t[2]}")
    e(f"v_lshl_add_u32 v{t[2]}, v{t[0]}, 4, v{t[2]}")
    e(f"v_mul_u32_u24 v{t[2]}, 1280, v{t[2]}")
    e(f"v_and_b32 v{t[3]}, 3, v{L}")
    e(f"v_mul_u32_u24 v{t[3]}, 40, v{t[3]}")
    e(f"s_mul_i32 s4, s{sW}, 160")
    e(f"s_add_u32 s4, s4, {BUF0}")
    e(f"v_add3_u32 v{vRd}, v{t[2]}, v{t[3]}, s4")
    e(f"s_mul_i32 s4, s{sW}, {W3_CB}")
    e(f"v_add_u32 v{vDst}, s4, v{vSrc}")
    for r in range(8):
        e(f"v_mov_b32 v{ac+r}, 0")
    e("s_waitcnt lgkmcnt(0)")
    stamp(e, 0, True)
    stamp(e, 1)
    srd(e, SRDA, S_DOWN, 0, WD_SZ)
    srd(e, SRDB, S_WO, 0, WO_SZ)
    srd(e, SRDO, S_WS, W3_OFF, W3_SZ)
    srd(e, SRDD, S_DBG, 0, 256)
    srd(e, SRDC, S_WS, CSG_OFF, CSG_SZ)
    l0 = e.newlab("k1n")
    e(f"s_or_b32 s4, s2, s{sW}")
    e("s_cmp_lg_u32 s4, 0")
    e(f"s_cbranch_scc1 {l0}")
    e("s_memrealtime s[6:7]")
    e("s_waitcnt lgkmcnt(0)")
    e("s_or_b32 s6, s6, 1")
    e(f"v_mov_b32 v{t[0]}, s6")
    e("s_mov_b64 exec, 1")
    e(f"buffer_store_dword v{t[0]}, off, s[{SRDD}:{SRDD+3}], 0 sc1")
    e("s_mov_b64 exec, -1")
    e.lab(l0)

    def w3_dma(j):
        b = BUF0 + (j % 3) * 40960
        lab = e.newlab("w3")
        e(f"s_add_u32 s{sKS}, s{sTB}, {16*j}")
        e(f"s_mul_i32 m0, s{sW}, 5120")
        e(f"s_add_u32 m0, m0, {b}")
        def issue(sr):
            for i in range(4):
                e(f"buffer_load_dwordx4 v{vSrc}, s[{sr}:{sr+3}], s{sSO} offen offset:{1024*i} lds")
            e(f"s_add_u32 s{sSO}, s{sSO}, 4096")
            e(f"s_add_u32 m0, m0, 4096")
            e("s_nop 0")
            e(f"buffer_load_dwordx4 v{vSrc}, s[{sr}:{sr+3}], s{sSO} offen lds")
        if j >= 3:
            e(f"s_cmp_ge_u32 s{sKS}, 54")
            e(f"s_cbranch_scc1 {lab}_o")
        if j <= 3:
            e(f"s_lshl_b32 s4, s{sKS}, 5")
            e(f"s_lshl_b32 s5, s{sW}, 2")
            e(f"s_add_u32 s4, s4, s5")
            e(f"s_mul_i32 s{sSO}, s4, 1280")
            issue(SRDA)
        if j >= 3:
            e(f"s_branch {lab}_go")
            e.lab(f"{lab}_o")
            e(f"s_cmp_ge_u32 s{sKS}, 70")
            e(f"s_cbranch_scc1 {lab}_x")
            e(f"s_sub_u32 s4, s{sKS}, 54")
            e(f"s_mul_i32 s4, s4, 40")
            e(f"s_lshr_b32 s5, s{sW}, 2")
            e(f"s_mul_i32 s5, s5, 20")
            e(f"s_add_u32 s4, s4, s5")
            e(f"s_and_b32 s5, s{sW}, 3")
            e(f"s_lshl_b32 s5, s5, 2")
            e(f"s_add_u32 s4, s4, s5")
            e(f"s_branch {lab}_wo")
            e.lab(f"{lab}_x")
            e(f"s_sub_u32 s4, s{sKS}, 70")
            e(f"s_lshl_b32 s4, s4, 3")
            e(f"s_lshr_b32 s5, s{sW}, 2")
            e(f"s_lshl_b32 s5, s5, 2")
            e(f"s_add_u32 s4, s4, s5")
            e(f"s_and_b32 s5, s{sW}, 1")
            e(f"s_lshl_b32 s5, s5, 1")
            e(f"s_add_u32 s4, s4, s5")
            e(f"s_bfe_u32 s5, s{sW}, 0x10001")
            e(f"s_add_u32 s4, s4, s5")
            e(f"s_mul_i32 s4, s4, 20")
            e(f"s_add_u32 s4, s4, 16")
            e.lab(f"{lab}_wo")
            e(f"s_mul_i32 s{sSO}, s4, 1280")
            issue(SRDB)
            e.lab(f"{lab}_go")

    def repack_rd(j):
        off = (j % 3) * 40960
        e(f"s_mov_b32 s4, {off}")
        e(f"v_add_u32 v{t[0]}, s4, v{vRd}")
        for c5 in range(5):
            e(f"ds_read_b64_tr_b16 v[{fr[c5]}:{fr[c5]+1}], v{t[0]} offset:{8*c5}")
            e(f"ds_read_b64_tr_b16 v[{fr[c5]+2}:{fr[c5]+3}], v{t[0]} offset:{8*c5+8*1280}")
        e("s_waitcnt lgkmcnt(0)")
        e("s_barrier")

    def repack_st(j):
        e(f"s_add_u32 s4, s{sTB}, {16*j}")
        e(f"s_mul_i32 s7, s4, 5120")
        for c5 in range(4):
            e(f"buffer_store_dwordx4 v[{fr[c5]}:{fr[c5]+3}], v{vDst}, s[{SRDO}:{SRDO+3}], s7 offen offset:{1024*c5} {store_sc}")
        e(f"s_add_u32 s7, s7, 4096")
        e(f"buffer_store_dwordx4 v[{fr[4]}:{fr[4]+3}], v{vDst}, s[{SRDO}:{SRDO+3}], s7 offen {store_sc}")

    def repack(j):
        repack_rd(j)
        repack_st(j)

    HS = 'hs' in EXP
    for j in range(1 if HS else 3):
        w3_dma(j)
    xb = R.a(80, 4)
    srd(e, SRDS, S_XP, 0, X_SZ)
    e(f"s_lshl_b32 s4, s{sTB}, 7")
    e(f"s_lshl_b32 s5, s{sW}, 4")
    e(f"s_add_u32 s4, s4, s5")
    e(f"s_mul_i32 s4, s4, 1280")
    e(f"v_lshrrev_b32 v{t[0]}, 2, v{L}")
    e(f"v_mul_u32_u24 v{t[0]}, 1280, v{t[0]}")
    e(f"v_and_b32 v{t[1]}, 3, v{L}")
    e(f"v_lshl_add_u32 v{vOff}, v{t[1]}, 4, v{t[0]}")
    for j in range(20):
        e(f"buffer_load_dwordx4 v[{xb+4*j}:{xb+4*j+3}], v{vOff}, s[{SRDS}:{SRDS+3}], s4 offen offset:{64*j}")
    ln = e.newlab("csn")
    if HS:
        w3_dma(1)
        w3_dma(2)
        e("s_waitcnt vmcnt(30)")
        e("s_barrier")
        e(f"buffer_load_dword v{t[5]}, off, s[{SRDD}:{SRDD+3}], 0 sc1")
        repack(0)
        e("s_waitcnt vmcnt(16)")
        if "es" not in EXP: stamp(e, 2)
    else:
        e(f"s_mov_b32 s{sCNT}, 200000")
        e.lab(ln)
        e(f"buffer_load_dword v{t[5]}, off, s[{SRDD}:{SRDD+3}], 0 sc1")
        e("s_waitcnt vmcnt(0)")
        e(f"v_readfirstlane_b32 s{sNONCE}, v{t[5]}")
        e(f"s_cmp_lg_u32 s{sNONCE}, 0")
        e(f"s_cbranch_scc1 {ln}_ok")
        e("s_sleep 2")
        e(f"s_sub_u32 s{sCNT}, s{sCNT}, 1")
        e(f"s_cmp_lg_u32 s{sCNT}, 0")
        e(f"s_cbranch_scc1 {ln}")
        e.lab(f"{ln}_ok")
        if "es" not in EXP: stamp(e, 2)
    first = True
    for d in range(80):
        a_, b_ = u_[2 * (d & 1)], u_[2 * (d & 1) + 1]
        e(f"v_lshlrev_b32 v{a_}, 16, v{xb+d}")
        e(f"v_and_b32 v{b_}, s{sMASK}, v{xb+d}")
        k = 2 * (d & 1)
        e(f"v_add_f32 v{ac+k}, v{ac+k}, v{a_}")
        e(f"v_add_f32 v{ac+k+1}, v{ac+k+1}, v{b_}")
        e(f"v_fmac_f32 v{ac+4+k}, v{a_}, v{a_}")
        e(f"v_fmac_f32 v{ac+4+k+1}, v{b_}, v{b_}")
    e(f"v_add_f32 v{ac}, v{ac}, v{ac+1}")
    e(f"v_add_f32 v{ac+2}, v{ac+2}, v{ac+3}")
    e(f"v_add_f32 v{ac+4}, v{ac+4}, v{ac+5}")
    e(f"v_add_f32 v{ac+6}, v{ac+6}, v{ac+7}")
    e(f"v_add_f32 v{ac}, v{ac}, v{ac+2}")
    e(f"v_add_f32 v{ac+4}, v{ac+4}, v{ac+6}")
    e(f"s_mov_b32 s4, {hex(f2u(1.0/640))}")
    e(f"s_mov_b32 s5, {hex(f2u(1e-5))}")
    for qp in ("[1,0,3,2]", "[2,3,0,1]"):
        e("s_nop 1")
        e(f"v_add_f32_dpp v{ac}, v{ac}, v{ac} quad_perm:{qp} row_mask:0xf bank_mask:0xf")
        e(f"v_add_f32_dpp v{ac+4}, v{ac+4}, v{ac+4} quad_perm:{qp} row_mask:0xf bank_mask:0xf")
    e("s_nop 0")
    e(f"v_mul_f32 v{ac+1}, s4, v{ac}")
    e(f"v_mul_f32 v{ac+4}, s4, v{ac+4}")
    e(f"v_fma_f32 v{ac+4}, -v{ac+1}, v{ac+1}, v{ac+4}")
    e(f"v_max_f32 v{ac+4}, 0, v{ac+4}")
    e(f"v_add_f32 v{ac+4}, s5, v{ac+4}")
    e(f"v_rsq_f32 v{ac}, v{ac+4}")
    e(f"v_sub_f32 v{ac+1}, 0, v{ac+1}")
    if HS:
        e(f"s_mov_b32 s{sCNT}, 200000")
        e("s_waitcnt vmcnt(5)")
        e.lab(ln)
        e(f"v_readfirstlane_b32 s{sNONCE}, v{t[5]}")
        e(f"s_cmp_lg_u32 s{sNONCE}, 0")
        e(f"s_cbranch_scc1 {ln}_ok")
        e("s_sleep 2")
        e(f"buffer_load_dword v{t[5]}, off, s[{SRDD}:{SRDD+3}], 0 sc1")
        e("s_waitcnt vmcnt(0)")
        e(f"s_sub_u32 s{sCNT}, s{sCNT}, 1")
        e(f"s_cmp_lg_u32 s{sCNT}, 0")
        e(f"s_cbranch_scc1 {ln}")
        e.lab(f"{ln}_ok")
    e(f"v_mov_b32 v{ac+2}, s{sNONCE}")
    e(f"v_mov_b32 v{ac+3}, s{sNONCE}")
    e(f"v_lshrrev_b32 v{t[0]}, 2, v{L}")
    e(f"v_lshlrev_b32 v{t[0]}, 4, v{t[0]}")
    e(f"s_lshl_b32 s4, s{sTB}, 11")
    e(f"s_lshl_b32 s5, s{sW}, 8")
    e(f"s_add_u32 s4, s4, s5")
    e(f"s_add_u32 s4, s4, {STG_REL}")
    e("s_mov_b32 exec_lo, 0x11111111")
    e("s_mov_b32 exec_hi, 0x11111111")
    e(f"buffer_store_dwordx4 v[{ac}:{ac+3}], v{t[0]}, s[{SRDC}:{SRDC+3}], s4 offen sc1")
    e("s_mov_b64 exec, -1")
    stamp(e, 3)
    e("s_barrier")
    if not HS:
        repack(0)
        w3_dma(3)
    repack(1)
    if HS:
        w3_dma(3)
    l4 = e.newlab("w3s")
    e(f"s_cmp_ge_u32 s{sTB}, 10")
    e(f"s_cbranch_scc1 {l4}")
    w3_dma(4)
    e.lab(l4)
    if HS:
        repack_rd(2)
    else:
        repack(2)
    stamp(e, 4)
    lg = e.newlab("csg")
    lskip = f"{lg}_skip" if HS else f"{lg}_end"
    e(f"s_cmp_eq_u32 s{sTB}, 15")
    e(f"s_cbranch_scc1 {lskip}")
    e(f"s_cmp_ge_u32 s{sW}, 3")
    e(f"s_cbranch_scc1 {lskip}")
    e(f"s_mov_b32 s5, 159")
    e(f"s_cmp_lt_u32 s{sTB}, 6")
    e(f"s_cselect_b32 s4, s5, 191")
    e(f"v_min_u32 v{t[0]}, s4, v0")
    e(f"v_lshlrev_b32 v{t[1]}, 4, v{t[0]}")
    e(f"s_mov_b32 s{sCNT}, 200000")
    def gather():
        e(f"s_mul_i32 s4, s{sTB}, {16*3072}")
        e(f"s_add_u32 s4, s4, {PCS_REL}")
        for u in range(16):
            e(f"buffer_load_dwordx4 v[{xb+4*u}:{xb+4*u+3}], v{t[1]}, s[{SRDC}:{SRDC+3}], s4 offen sc1")
            if u < 15:
                e(f"s_add_u32 s4, s4, 3072")
    if HS:
        gather()
        repack_st(2)
        e("s_waitcnt vmcnt(5)")
        e(f"s_branch {lg}_chk")
    e.lab(lg)
    gather()
    e("s_waitcnt vmcnt(0)")
    e.lab(f"{lg}_chk")
    e(f"v_xor_b32 v{t[2]}, s{sNONCE}, v{xb+2}")
    for u in range(1, 16):
        e(f"v_xor_b32 v{t[3]}, s{sNONCE}, v{xb+4*u+2}")
        e(f"v_or_b32 v{t[2]}, v{t[2]}, v{t[3]}")
    e(f"v_cmp_ne_u32 vcc, 0, v{t[2]}")
    e("s_nop 1")
    e(f"s_cbranch_vccz {lg}_ok")
    e("s_sleep 4")
    e(f"s_sub_u32 s{sCNT}, s{sCNT}, 1")
    e(f"s_cmp_lg_u32 s{sCNT}, 0")
    e(f"s_cbranch_scc1 {lg}")
    e.lab(f"{lg}_ok")
    for u in range(1, 16):
        e(f"v_add_f32 v{xb}, v{xb}, v{xb+4*u}")
        e(f"v_add_f32 v{xb+1}, v{xb+1}, v{xb+4*u+1}")
    e(f"v_mov_b32 v{xb+2}, v{xb+1}")
    e(f"v_mov_b32 v{xb+1}, s{sNONCE}")
    e(f"v_mov_b32 v{xb+3}, s{sNONCE}")
    e(f"v_lshrrev_b32 v{t[2]}, 4, v{t[0]}")
    e(f"v_and_b32 v{t[3]}, 15, v{t[0]}")
    e(f"v_lshlrev_b32 v{t[3]}, 3, v{t[3]}")
    e(f"v_lshl_add_u32 v{t[3]}, v{t[2]}, 8, v{t[3]}")
    e(f"s_mul_i32 s4, s{sTB}, {384*8}")
    e(f"buffer_store_dwordx2 v[{xb}:{xb+1}], v{t[3]}, s[{SRDC}:{SRDC+3}], s4 offen sc1")
    e(f"buffer_store_dwordx2 v[{xb+2}:{xb+3}], v{t[3]}, s[{SRDC}:{SRDC+3}], s4 offen offset:128 sc1")
    if HS:
        e(f"s_branch {lg}_end")
        e.lab(lskip)
        repack_st(2)
    e.lab(f"{lg}_end")
    lend = f"{pfx}_h_end"
    e("s_waitcnt vmcnt(%d)" % (5 if HS else 0))
    e("s_barrier")
    repack(3)
    e(f"s_cmp_ge_u32 s{sTB}, 10")
    e(f"s_cbranch_scc1 {lend}")
    repack(4)
    e.lab(lend)
    stamp(e, 7)
    if finish is None:
        e("s_waitcnt vmcnt(0)")
        stamp(e, 5)
        stamp(e, 6, True)
        stamp_dump(e, 8, 0, sW, S_WS)
        e("s_endpgm")
    else:
        finish(e, "helper")
    return R.hi


def gen_k1(e, name, store_sc=""):
    e.l.append(kernel_header(name))
    prologue(e)
    hi = 0
    hi = max(hi, gemm(e, "qk", store_sc))
    hi = max(hi, gemm(e, "v", store_sc))
    hi = max(hi, gemm(e, "ffn", store_sc))
    hi = max(hi, helper(e, store_sc))
    e.lab("k1_exit")
    e("s_endpgm")
    return hi
```

```python
from common import *
sW, sNONCE, SRDC = 22, 29, 72
sTB3, sCB3 = 65, 66
F1_REL = 0xE0000
FO_REL = 0xE8000
SPIN = 20000


def publish(e, idx_lines, rel, vt):
    lab = e.newlab("pub")
    e(f"s_cmp_lg_u32 s{sW}, 0")
    e(f"s_cbranch_scc1 {lab}")
    for x in idx_lines:
        e(x)
    e("s_lshl_b32 s4, s4, 7")
    e(f"s_add_u32 s4, s4, {hex(rel)}")
    e(f"v_mov_b32 v{vt}, s{sNONCE}")
    e("s_mov_b64 exec, 1")
    e(f"buffer_store_dword v{vt}, off, s[{SRDC}:{SRDC+3}], s4 sc1")
    e("s_mov_b64 exec, -1")
    e.lab(lab)


def poll_load(vF, vP):
    import p1
    fl = "sc1"
    for x in p1.EXP:
        if x.startswith("pl="): fl = x[3:].replace("+", " ")
    return f"buffer_load_dword v{vP}, v{vF}, s[{SRDC}:{SRDC+3}], 0 offen {fl}"


def poll_check(e, vF, vP, sC, wait=None):
    lab = e.newlab("poll")
    if wait:
        e(wait)
    e(f"v_cmp_ne_u32 vcc, s{sNONCE}, v{vP}")
    e("s_nop 0")
    e(f"s_cbranch_vccz {lab}_ok")
    e(f"s_mov_b32 s{sC}, {SPIN}")
    e.lab(lab)
    import p1
    slp = 1
    for x in p1.EXP:
        if x.startswith("slp="): slp = int(x[4:])
    e(f"s_sleep {slp}")
    e(poll_load(vF, vP))
    e("s_waitcnt vmcnt(0)")
    e(f"v_cmp_ne_u32 vcc, s{sNONCE}, v{vP}")
    e("s_nop 0")
    e(f"s_cbranch_vccz {lab}_ok")
    e(f"s_sub_u32 s{sC}, s{sC}, 1")
    e(f"s_cmp_lg_u32 s{sC}, 0")
    e(f"s_cbranch_scc1 {lab}")
    e.lab(f"{lab}_ok")


def addr_qkv(e, vF, t, sP, sQB, L=1):
    e(f"v_min_u32 v{t[0]}, 6, v{L}")
    e(f"v_add_u32 v{t[0]}, 2, v{t[0]}")
    e(f"v_mul_u32_u24 v{t[1]}, 43, v{t[0]}")
    e(f"v_lshrrev_b32 v{t[1]}, 7, v{t[1]}")
    e(f"v_mul_u32_u24 v{t[2]}, 3, v{t[1]}")
    e(f"v_sub_u32 v{t[0]}, v{t[0]}, v{t[2]}")
    e(f"s_sub_u32 s4, s{sQB}, 2")
    e(f"v_add_u32 v{t[0]}, s4, v{t[0]}")
    e(f"v_max_i32 v{t[0]}, 0, v{t[0]}")
    e(f"s_lshr_b32 s4, s{sP}, 3")
    e(f"v_lshl_add_u32 v{t[1]}, v{t[1]}, 1, s4")
    e(f"v_lshl_add_u32 v{t[0]}, v{t[1]}, 4, v{t[0]}")
    e(f"v_lshlrev_b32 v{t[0]}, 7, v{t[0]}")
    e(f"v_add_u32 v{vF}, {hex(F1_REL)}, v{t[0]}")


def addr_hw(e, vF, t, L=1):
    e(f"v_min_u32 v{t[0]}, 24, v{L}")
    e(f"s_lshr_b32 s4, s{sTB3}, 1")
    e(f"s_add_u32 s4, s4, {6*16}")
    e(f"v_lshl_add_u32 v{t[1]}, v{t[0]}, 4, s4")
    e(f"v_add_u32 v{t[2]}, {240-9}, v{t[0]}")
    e(f"v_cmp_gt_u32 vcc, 9, v{t[0]}")
    e("s_nop 1")
    e(f"v_cndmask_b32 v{t[0]}, v{t[2]}, v{t[1]}, vcc")
    e(f"v_lshlrev_b32 v{t[0]}, 7, v{t[0]}")
    e(f"v_add_u32 v{vF}, {hex(F1_REL)}, v{t[0]}")


def addr_o(e, vF, t, L=1):
    e(f"v_and_b32 v{t[0]}, 15, v{L}")
    e(f"s_lshr_b32 s4, s{sTB3}, 1")
    e(f"v_lshl_add_u32 v{t[0]}, v{t[0]}, 4, s4")
    e(f"v_lshlrev_b32 v{t[0]}, 7, v{t[0]}")
    e(f"v_add_u32 v{vF}, {hex(FO_REL)}, v{t[0]}")


def addr_qkvw(e, vF, t, sP, sQB, L=1):
    addr_qkv(e, vF, t, sP, sQB, L)
    e(f"v_min_u32 v{t[0]}, 22, v{L}")
    e(f"v_add_u32 v{t[0]}, {240-7}, v{t[0]}")
    e(f"v_lshlrev_b32 v{t[0]}, 7, v{t[0]}")
    e(f"v_add_u32 v{t[0]}, {hex(F1_REL)}, v{t[0]}")
    e(f"v_cmp_lt_u32 vcc, 6, v{L}")
    e("s_nop 1")
    e(f"v_cndmask_b32 v{vF}, v{vF}, v{t[0]}, vcc")


def addr_h(e, vF, t, L=1):
    e(f"v_min_u32 v{t[0]}, 8, v{L}")
    e(f"s_lshr_b32 s4, s{sTB3}, 1")
    e(f"s_add_u32 s4, s4, {6*16}")
    e(f"v_lshl_add_u32 v{t[0]}, v{t[0]}, 4, s4")
    e(f"v_lshlrev_b32 v{t[0]}, 7, v{t[0]}")
    e(f"v_add_u32 v{vF}, {hex(F1_REL)}, v{t[0]}")
```

```python
from common import *
import struct

def f2u(x):
    return struct.unpack("<I", struct.pack("<f", x))[0]

R_RING = 5
XSLOT = 8192
XR = 122880
P1_LDS = XR + R_RING * XSLOT
CSL = 0
RSL = 1536
NML = 2048

CSG_OFF = 0x1800000
STG_REL = 0x10000
PCS_REL = 0x20000
CSG_SZ = 0x100000

S_XP, S_WQKV, S_WO, S_GATE, S_UP, S_DOWN, S_OUT, S_DBG, S_WS = 40, 42, 44, 48, 50, 52, 54, 56, 58
SRDX, SRDW, SRDO = 8, 12, 16
sTB, sROLE, sW, sCNT, sWso, sXso, sWM0, sXM0 = 20, 21, 22, 23, 24, 25, 27, 28
sNONCE = 29
sT0, sT1, sT2, sT3 = 32, 33, 34, 35
sA, sB = 36, 37
sMASK = 39
sTRIG = 60
sMINE, sPOFF = 26, 30
SRDC, SRDD = 72, 76
EXP = set()
DEFER = []


def load_ptrs(e):
    e("s_load_dwordx16 s[40:55], s[0:1], 0")
    e("s_load_dwordx4 s[56:59], s[0:1], 64")


def prologue(e, pfx="k1"):
    import common
    if common.PROF and 'es' in EXP:
        e("s_memrealtime s[100:101]")
        e("s_waitcnt lgkmcnt(0)")
        e("s_mov_b32 s86, s100")
    e("s_cmp_ge_u32 s2, 256")
    e(f"s_cbranch_scc1 {pfx}_exit")
    load_ptrs(e)
    e("v_and_b32 v1, 63, v0")
    e("v_lshrrev_b32 v2, 6, v0")
    e("s_and_b32 s3, s2, 7")
    e("s_lshr_b32 s4, s2, 3")
    e(f"v_readfirstlane_b32 s{sW}, v2")
    e("s_and_b32 s5, s3, 1")
    e("s_lshl_b32 s5, s5, 3")
    e("s_and_b32 s6, s4, 7")
    e(f"s_add_u32 s{sTB}, s5, s6")
    e("s_lshr_b32 s5, s3, 1")
    e("s_lshl_b32 s5, s5, 2")
    e("s_lshr_b32 s6, s4, 3")
    e(f"s_add_u32 s{sROLE}, s5, s6")
    e(f"s_add_u32 s{sROLE}, s{sROLE}, 15")
    e(f"s_and_b32 s{sROLE}, s{sROLE}, 15")
    e(f"s_mov_b32 s{sMASK}, 0xffff0000")
    e(f"s_cmp_eq_u32 s{sROLE}, 15")
    e(f"s_cbranch_scc1 {pfx}_helper")
    e(f"s_cmp_ge_u32 s{sROLE}, 6")
    e(f"s_cbranch_scc1 {pfx}_ffn")
    e(f"s_cmp_ge_u32 s{sROLE}, 4")
    e(f"s_cbranch_scc1 {pfx}_v")
    e(f"s_branch {pfx}_qk")


def gemm(e, cls, store_sc="", finish=None, pfx="k1"):
    ffn = cls == "ffn"
    RR = R_RING
    NSTG = 20
    NT = 3 if ffn else 5
    NU = 2 if ffn else 1
    WSLOT = 24576 if ffn else 20480
    WROW = 384 if ffn else 640
    GROW = 3456 if ffn else 3840
    NCS = 384 if ffn else 320
    R = Regs(2, 256, "v")
    t = [R.a() for _ in range(8)]
    vWs = [R.a() for _ in range(3)]
    vXs = R.a()
    nset = 2 if RR > 3 else 1
    NWB = 3 if ffn else 2
    vWA = [[R.a() for i in range(NWB)] for st in range(nset)]
    vXB = [R.a() for _ in range(2)]
    vG = R.a(2, 2)
    vN = R.a()
    vGA = R.a()
    vSTA = R.a()
    vPA = R.a()
    vST = R.a(4, 4)
    vONE = R.a(4, 4)
    aCS = [R.a(4, 4) for i in range(NT)]
    fA = [[R.a(4, 4) for i in range(NT)] for b in range(2)]
    fB = [[R.a(4, 4) for u in range(NU)] for b in range(2)]
    fS = R.a(4, 4)
    acc = [[R.a(16, 4) for u in range(NU)] for i in range(NT)]
    L = 1

    e.lab(f"{pfx}_{cls}")
    e.c(f"---------------- setup {cls} ----------------")
    if ffn:
        e(f"s_and_b32 s{sA}, s{sW}, 1")
        e(f"s_lshr_b32 s{sB}, s{sW}, 1")
    else:
        e(f"s_and_b32 s{sA}, s{sW}, 3")
        e(f"s_lshr_b32 s{sB}, s{sW}, 2")
    if ffn:
        e(f"s_and_b32 s{sT0}, s{sW}, 3")
        e(f"s_lshr_b32 s{sT1}, s{sW}, 2")
        e(f"s_sub_u32 s{sT2}, s{sROLE}, 6")
        e(f"s_mul_i32 s{sT2}, s{sT2}, 384")
        e(f"s_mul_i32 s{sT3}, s{sT0}, {8*GROW}")
        e(f"s_add_u32 s{sT2}, s{sT2}, s{sT3}")
        e(f"s_lshl_b32 s{sT3}, s{sT1}, 2")
        e(f"s_mul_i32 s4, s{sT0}, 3072")
        e(f"s_mul_i32 s5, s{sT1}, 12288")
        e(f"s_add_u32 s{sWM0}, s4, s5")
        nper, magic = 24, 2731
        e(f"v_mov_b32 v{t[4]}, v{L}")
    else:
        e(f"s_mul_i32 s4, s{sW}, 3")
        e(f"s_lshl_b32 s5, s{sW}, 1")
        e(f"s_add_u32 s5, s5, 4")
        e(f"s_cmp_ge_u32 s{sW}, 4")
        e(f"s_cselect_b32 s4, s5, s4")
        e(f"s_lshl_b32 s{sWM0}, s4, 10")
        e(f"s_lshl_b32 s4, s4, 6")
        e(f"s_mul_i32 s{sT2}, s{sROLE}, 640")
        nper, magic = 40, 1639
        e(f"v_add_u32 v{t[4]}, s4, v{L}")
    e(f"s_mov_b32 s4, {magic}")
    e(f"s_mov_b32 s5, {GROW}")
    for i in range(3):
        e(f"v_add_u32 v{t[0]}, {64*i}, v{t[4]}")
        e(f"v_mul_lo_u32 v{t[1]}, v{t[0]}, s4")
        e(f"v_lshrrev_b32 v{t[1]}, 16, v{t[1]}")
        e(f"v_mul_u32_u24 v{t[2]}, {nper}, v{t[1]}")
        e(f"v_sub_u32 v{t[2]}, v{t[0]}, v{t[2]}")
        e(f"v_bfe_u32 v{t[3]}, v{t[1]}, 1, 1")
        if ffn:
            e(f"v_lshl_or_b32 v{t[3]}, v{t[3]}, 1, s{sT3}")
        else:
            e(f"v_lshlrev_b32 v{t[3]}, 2, v{t[3]}")
        e(f"v_xor_b32 v{t[2]}, v{t[2]}, v{t[3]}")
        e(f"v_mul_lo_u32 v{t[1]}, v{t[1]}, s5")
        e(f"v_lshl_add_u32 v{t[1]}, v{t[2]}, 4, v{t[1]}")
        e(f"v_add_u32 v{t[1]}, s{sT2}, v{t[1]}")
        e(f"v_subrev_u32 v{vWs[i]}, {1024*i}, v{t[1]}")
    e(f"s_lshl_b32 s4, s{sTB}, 7")
    e(f"s_lshl_b32 s5, s{sW}, 4")
    e(f"s_add_u32 s4, s4, s5")
    e(f"s_mul_i32 s4, s4, 1280")
    e(f"v_lshrrev_b32 v{t[0]}, 2, v{L}")
    e(f"v_bfe_u32 v{t[1]}, v{L}, 4, 2")
    e(f"v_and_b32 v{t[2]}, 3, v{L}")
    e(f"v_xor_b32 v{t[2]}, v{t[2]}, v{t[1]}")
    e(f"v_mul_u32_u24 v{t[0]}, 1280, v{t[0]}")
    e(f"v_lshl_add_u32 v{t[0]}, v{t[2]}, 4, v{t[0]}")
    e(f"v_add_u32 v{vXs}, s4, v{t[0]}")
    e(f"s_lshl_b32 s{sXM0}, s{sW}, 10")
    e(f"s_add_u32 s{sXM0}, s{sXM0}, {XR}")
    ROT = 4 if 'rot4' in EXP else 2
    if ROT == 2:
        e(f"s_lshr_b32 s6, s{sTB}, 3")
        e(f"s_mul_i32 s6, s6, 10")
        e(f"s_and_b32 s4, s{sTB}, 7")
        e(f"s_add_u32 s5, s4, 8")
        e(f"s_cmp_lt_u32 s4, 2")
        e(f"s_cselect_b32 s5, s5, 99")
    else:
        e(f"s_lshr_b32 s6, s{sTB}, 2")
        e(f"s_mul_i32 s6, s6, 5")
        e(f"s_and_b32 s4, s{sTB}, 3")
        e(f"s_cmp_eq_u32 s4, 0")
        e(f"s_cselect_b32 s5, 4, 99")
    e(f"s_mul_i32 s{sWso}, s6, {32*GROW}")
    e(f"s_lshl_b32 s{sXso}, s6, 6")
    nit0 = NSTG // RR - 1
    for sl in range(RR):
        e(f"s_mov_b32 s{sTRIG+sl}, 99")
        for pr in (4, 5):
            e(f"s_cmp_eq_u32 s{pr}, {sl}")
            e(f"s_cselect_b32 s{sTRIG+sl}, {nit0}, s{sTRIG+sl}")
            e(f"s_cmp_eq_u32 s{pr}, {sl+5}")
            e(f"s_cselect_b32 s{sTRIG+sl}, {nit0-1}, s{sTRIG+sl}")
    e(f"s_lshl_b32 s5, s{sROLE}, 4")
    e(f"s_add_u32 s4, s{sTB}, s5")
    e(f"s_mul_i32 s4, s4, 12")
    e(f"s_mul_i32 s5, s{sB}, {NT}")
    e(f"s_add_u32 s4, s4, s5")
    e(f"s_lshl_b32 s4, s4, 8")
    e(f"s_add_u32 s{sPOFF}, s4, {PCS_REL}")
    if ffn:
        e(f"s_cmp_eq_u32 s{sA}, 0")
        e(f"s_cselect_b32 s{sMINE}, 3, 4")
    else:
        e(f"s_lshl_b32 s{sMINE}, 1, s{sA}")
        e(f"s_cmp_eq_u32 s{sA}, 0")
        e(f"s_cselect_b32 s{sMINE}, 17, s{sMINE}")
    e("s_waitcnt lgkmcnt(0)")
    stamp(e, 0, True)
    stamp(e, 1)
    srd(e, SRDX, S_XP, 0, X_SZ)
    if ffn:
        e(f"s_cmp_ge_u32 s{sW}, 4")
        e(f"s_cselect_b32 s{SRDW}, s{S_UP}, s{S_GATE}")
        e(f"s_cselect_b32 s{SRDW+1}, s{S_UP+1}, s{S_GATE+1}")
        e(f"s_mov_b32 s{SRDW+2}, {hex(WG_SZ)}")
        e(f"s_mov_b32 s{SRDW+3}, 0x00020000")
    else:
        srd(e, SRDW, S_WQKV, 0, WQKV_SZ)

    def dma_group(slot, var):
        nw = 3 if (ffn or var == 0) else 2
        hot = 'hot' in EXP
        it = [[f"s_add_u32 m0, s{sXM0}, {slot*XSLOT}", "s_nop 0",
               f"buffer_load_dwordx4 v{vXs}, s[{SRDX}:{SRDX+3}], s{sXso} offen lds"]]
        it.append([f"s_add_u32 m0, s{sWM0}, {slot*WSLOT}", f"s_add_u32 s{sXso}, s{sXso}, {0 if hot else 64}",
                   f"buffer_load_dwordx4 v{vWs[0]}, s[{SRDW}:{SRDW+3}], s{sWso} offen lds"])
        for i in range(1, nw):
            it.append([f"buffer_load_dwordx4 v{vWs[i]}, s[{SRDW}:{SRDW+3}], s{sWso} offen offset:{1024*i} lds"])
        it[-1] += [f"s_add_u32 s{sWso}, s{sWso}, {0 if hot else 32*GROW}",
                   f"s_cmp_eq_u32 s{sXso}, 1280",
                   f"s_cselect_b32 s{sXso}, 0, s{sXso}",
                   f"s_cselect_b32 s{sWso}, 0, s{sWso}"]
        return it

    def gsize(var):
        return 4 if (ffn or var == 0) else 3

    setup = []
    q = setup.append
    g, r4, c4, bb = t[0], t[1], t[2], t[3]
    q(f"v_lshrrev_b32 v{g}, 4, v{L}")
    q(f"v_bfe_u32 v{r4}, v{L}, 2, 2")
    q(f"v_and_b32 v{c4}, 3, v{L}")
    q(f"v_bfe_u32 v{bb}, v{L}, 3, 1")
    q(f"v_lshrrev_b32 v{t[4]}, 1, v{g}")
    q(f"v_lshl_add_u32 v{t[4]}, v{t[4]}, 3, v{r4}")
    q(f"v_mul_u32_u24 v{t[4]}, {WROW}, v{t[4]}")
    q(f"v_and_b32 v{t[5]}, 1, v{g}")
    if ffn:
        q(f"v_mul_u32_u24 v{t[6]}, 12288, v{t[5]}")
        q(f"v_add_u32 v{t[4]}, v{t[4]}, v{t[6]}")
        q(f"v_and_b32 v{t[6]}, 1, v{c4}")
        q(f"v_lshl_add_u32 v{t[4]}, v{t[6]}, 3, v{t[4]}")
        q(f"v_lshlrev_b32 v{t[5]}, 2, v{t[5]}")
        q(f"v_lshl_add_u32 v{t[5]}, v{bb}, 1, v{t[5]}")
        q(f"v_lshrrev_b32 v{t[6]}, 1, v{c4}")
        q(f"s_mul_i32 s4, s{sB}, 6")
        for i in range(3):
            q(f"v_add3_u32 v{t[7]}, v{t[6]}, s4, {2*i}")
            q(f"v_xor_b32 v{t[7]}, v{t[7]}, v{t[5]}")
            q(f"v_lshl_add_u32 v{vWA[0][i]}, v{t[7]}, 4, v{t[4]}")
            if nset > 1:
                q(f"v_add_u32 v{vWA[1][i]}, {3*WSLOT}, v{vWA[0][i]}")
    else:
        q(f"v_lshl_add_u32 v{t[4]}, v{t[5]}, 5, v{t[4]}")
        q(f"v_lshl_add_u32 v{t[4]}, v{c4}, 3, v{t[4]}")
        q(f"s_mul_i32 s4, s{sB}, 320")
        q(f"v_add_u32 v{t[4]}, s4, v{t[4]}")
        q(f"v_lshlrev_b32 v{t[5]}, 6, v{bb}")
        q(f"v_sub_u32 v{t[6]}, 0, v{t[5]}")
        q(f"s_cmp_eq_u32 s{sB}, 0")
        q(f"s_cselect_b64 vcc, -1, 0")
        q(f"v_cndmask_b32 v{t[7]}, v{t[6]}, v{t[5]}, vcc")
        q(f"v_add_u32 v{vWA[0][0]}, v{t[4]}, v{t[7]}")
        q(f"v_sub_u32 v{vWA[0][1]}, v{t[4]}, v{t[7]}")
        if nset > 1:
            q(f"v_add_u32 v{vWA[1][0]}, {3*WSLOT}, v{vWA[0][0]}")
            q(f"v_add_u32 v{vWA[1][1]}, {3*WSLOT}, v{vWA[0][1]}")
    q(f"v_and_b32 v{t[0]}, 31, v{L}")
    q(f"v_bfe_u32 v{t[1]}, v{L}, 2, 2")
    q(f"v_lshrrev_b32 v{t[2]}, 5, v{L}")
    q(f"s_lshl_b32 s5, s{sA}, {12 if ffn else 11}")
    q(f"s_add_u32 s5, s5, {XR}")
    q(f"v_lshlrev_b32 v{t[0]}, 6, v{t[0]}")
    q(f"v_add_u32 v{t[0]}, s5, v{t[0]}")
    q(f"v_xor_b32 v{t[3]}, v{t[2]}, v{t[1]}")
    q(f"v_lshl_add_u32 v{vXB[0]}, v{t[3]}, 4, v{t[0]}")
    q(f"v_xor_b32 v{vXB[1]}, 32, v{vXB[0]}")
    q(f"v_min_u32 v{t[0]}, {NCS-1}, v0")
    q(f"v_lshlrev_b32 v{vGA}, 2, v{t[0]}")
    q(f"v_and_b32 v{t[0]}, 127, v0")
    q(f"v_lshlrev_b32 v{vSTA}, 2, v{t[0]}")
    q(f"v_and_b32 v{t[0]}, 15, v{L}")
    q(f"v_lshlrev_b32 v{vPA}, 4, v{t[0]}")
    q(f"v_and_b32 v{t[0]}, 31, v{L}")
    q(f"v_mov_b32 v{t[1]}, 0x3f803f80")
    q(f"v_cmp_eq_u32 vcc, 0, v{t[0]}")
    q(f"v_cmp_eq_u32 s[4:5], 17, v{t[0]}")
    q("s_nop 1")
    q("s_or_b64 vcc, vcc, s[4:5]")
    q("s_nop 1")
    q(f"v_cndmask_b32 v{vONE}, 0, v{t[1]}, vcc")
    for r in range(1, 4):
        q(f"v_mov_b32 v{vONE+r}, v{vONE}")
    for i in range(NT):
        for r in range(4):
            q(f"v_mov_b32 v{aCS[i]+r}, 0")
    zero = [f"v_mov_b32 v{acc[i][u]+r}, 0" for i in range(NT) for u in range(NU) for r in range(16)]
    setup_all = setup + zero

    def reads_w(slot, p):
        out = []
        for i in range(NT):
            st_, sl = (1, slot - 3) if slot >= 3 else (0, slot)
            if ffn:
                base = vWA[st_][i]
                off = sl * WSLOT + p * 16 * WROW
            else:
                base = vWA[st_][i & 1]
                off = sl * WSLOT + p * 16 * WROW + 64 * i
            a = fA[p][i]
            out.append([f"ds_read_b64_tr_b16 v[{a}:{a+1}], v{base} offset:{off}",
                        f"ds_read_b64_tr_b16 v[{a+2}:{a+3}], v{base} offset:{off+4*WROW}"])
        return out

    def reads_x(slot, p):
        return [f"ds_read_b128 v[{fB[p][u]}:{fB[p][u]+3}], v{vXB[p]} offset:{slot*XSLOT+2048*u}" for u in range(NU)]

    def read_slots(slot, p):
        rw, rx = reads_w(slot, p), reads_x(slot, p)
        if ffn:
            return [rw[0], [rx[0]], [rx[1]], rw[1], rw[2], []]
        return [rw[0] + rx, rw[1], rw[2], rw[3], rw[4]]

    def mfmas(p):
        out = []
        for i in range(NT):
            for u in range(NU):
                a, b, c = fA[p][i], fB[p][u], acc[i][u]
                if cls == "v":
                    a, b = b, a
                out.append(f"v_mfma_f32_32x32x16_bf16 v[{c}:{c+15}], v[{a}:{a+3}], v[{b}:{b+3}], v[{c}:{c+15}]")
        return out

    NS = NT * NU

    def weave(ms, fl):
        out = []
        for i, m in enumerate(ms):
            out.append(m)
            if i < len(fl):
                out.extend(fl[i])
        return out

    def stage(n, slot, var, fifo, last_group, extra0=None, extra1=None, force_vm=None, mid=None, post=None):
        body = []
        G = gsize(var)
        fl = read_slots(slot, 1)
        fl = [list(x) for x in fl]
        if var == 1 and 'nodma' not in EXP:
            gid = None if n is None else n + RR - 2
            if gid is None or gid <= last_group:
                items = dma_group((slot - 2) % RR, var)
                for k_, it in enumerate(items):
                    fl[min(NS - 1, 1 + k_)] += it
                fifo.append((gid, len(items)))
        if extra0:
            fl = merge(fl, extra0)
            fifo.append(("cs", 2))
        body += weave(mfmas(0), fl)
        if mid: body += mid
        if n is None:
            vm = G * (RR - 3)
        else:
            vm = 0
            seen = False
            for gid, cnt in fifo:
                if seen: vm += cnt
                if gid == n + 1: seen = True
            assert seen or n == NSTG - 1
            if force_vm is not None: vm = force_vm
        if n is None or n < NSTG - 1:
            if 'nodma' not in EXP:
                body.append(f"s_waitcnt vmcnt({vm})")
            body.append("s_barrier")
        if post: body += post
        nslot = (slot + 1) % RR
        if n is None or n < NSTG - 1:
            fl = [list(x) for x in read_slots(nslot, 0)]
        else:
            fl = [[] for _ in range(NS)]
        if var == 0 and 'nodma' not in EXP:
            gid = None if n is None else n + RR - 1
            if gid is None or gid <= last_group:
                items = dma_group((slot - 1) % RR, var)
                for k_, it in enumerate(items):
                    fl[min(NS - 1, 1 + k_)] += it
                fifo.append((gid, len(items)))
        if extra1:
            fl = merge(fl, extra1)
        body += weave(mfmas(1), fl)
        return body

    gl_load = [f"v_lshlrev_b32 v{t[1]}, 1, v{vGA}",
               f"v_lshlrev_b32 v{t[2]}, 2, v{vSTA}",
               f"s_mul_i32 s4, s{sROLE}, {384*8}",
               f"s_lshl_b32 s5, s{sTB}, 11",
               f"s_add_u32 s5, s5, {STG_REL}",
               f"buffer_load_dwordx2 v[{vG}:{vG+1}], v{t[1]}, s[{SRDC}:{SRDC+3}], s4 offen sc1",
               f"buffer_load_dwordx4 v[{vST}:{vST+3}], v{t[2]}, s[{SRDC}:{SRDC+3}], s5 offen sc1"]
    gl_test = [f"v_cmp_ne_u32 vcc, s{sNONCE}, v{vG+1}",
               f"v_cmp_ne_u32 s[6:7], s{sNONCE}, v{vST+2}",
               "s_nop 1",
               "s_or_b64 vcc, vcc, s[6:7]"]

    for var in range(2):
        lv = f"{pfx}_{cls}_v{var}"
        if var == 0:
            e(f"s_cmp_ge_u32 s{sW}, 4")
            e(f"s_cbranch_scc1 {pfx}_{cls}_v1")
        else:
            e.lab(lv)
        ngp = RR - 1 if var == 0 else RR - 2
        chunks = [setup_all[k * len(setup_all) // ngp:(k + 1) * len(setup_all) // ngp] for k in range(ngp)]
        fifo = []
        for gi in range(ngp):
            for it in dma_group(gi, var):
                for x in it: e(x)
            fifo.append((gi, gsize(var)))
            for x in chunks[gi]: e(x)
        srd(e, SRDD, S_DBG, 0, 256)
        srd(e, SRDC, S_WS, CSG_OFF, CSG_SZ)
        vm0 = gsize(var) * (ngp - 1)
        e(f"s_waitcnt vmcnt({vm0})")
        e("s_barrier")
        if 'es' not in EXP: stamp(e, 2)
        pro = []
        rs0 = read_slots(0, 0)
        for x in rs0: pro += x
        pro, pend = autowait(pro, [])
        for x in pro: e(x)
        nit = NSTG // RR - 1
        e(f"s_mov_b32 s{sCNT}, {nit}")
        if var == 1 and 'noprio' not in EXP:
            e("s_setprio 1")
        loop = f"{pfx}_{cls}_loop{var}"
        e.lab(loop)
        body = []
        ff = []
        ool = []
        def cs_block(lab):
            b = [f"{lab}:", "s_waitcnt lgkmcnt(0)"]
            for i in range(NT):
                b += [f"s_bitcmp1_b32 s{sMINE}, {i}", f"s_cbranch_scc0 {lab}_s{i}"]
                for p in range(2):
                    b.append(f"v_mfma_f32_16x16x32_bf16 v[{aCS[i]}:{aCS[i]+3}], v[{vONE}:{vONE+3}], v[{fA[p][i]}:{fA[p][i]+3}], v[{aCS[i]}:{aCS[i]+3}]")
                b.append(f"{lab}_s{i}:")
            b.append(f"s_branch {lab}_back")
            return b
        DG0, DGI = 0, 1
        for x_ in EXP:
            if x_.startswith("dg0="): DG0 = int(x_[4:])
            if x_.startswith("dgi="): DGI = int(x_[4:])
        for st in range(RR):
            mid = post = ex0 = None
            lab = e.newlab("k1cs")
            mid = [f"s_cmp_eq_u32 s{sCNT}, s{sTRIG+st}", f"s_cbranch_scc1 {lab}", f"{lab}_back:"]
            ool += cs_block(lab)
            if st == 2:
                lab = e.newlab("k1nl")
                mid += [f"s_cmp_eq_u32 s{sCNT}, {nit}", f"s_cbranch_scc0 {lab}",
                        f"buffer_load_dword v{vN}, off, s[{SRDD}:{SRDD+3}], 0 sc1", f"{lab}:"]
            if st == 4:
                lab = e.newlab("k1pub")
                post = [f"s_cmp_eq_u32 s{sCNT}, {nit if 'rot4' in EXP else nit-1}", f"s_cbranch_scc1 {lab}", f"{lab}_back:"]
                ool += [f"{lab}:",
                        "s_nop 7",
                        f"s_mov_b32 s4, 200000",
                        f"{lab}_n:",
                        f"v_readfirstlane_b32 s{sNONCE}, v{vN}",
                        f"s_cmp_lg_u32 s{sNONCE}, 0",
                        f"s_cbranch_scc1 {lab}_ok",
                        "s_sleep 2",
                        f"buffer_load_dword v{vN}, off, s[{SRDD}:{SRDD+3}], 0 sc1",
                        "s_waitcnt vmcnt(0)",
                        "s_sub_u32 s4, s4, 1",
                        "s_cmp_lg_u32 s4, 0",
                        f"s_cbranch_scc1 {lab}_n",
                        f"{lab}_ok:",
                        "s_mov_b64 exec, 0xffff"]
                for i in range(NT):
                    ool += [f"s_bitcmp1_b32 s{sMINE}, {i}", f"s_cbranch_scc0 {lab}_s{i}",
                            f"v_mov_b32 v{aCS[i]+2}, s{sNONCE}",
                            f"v_mov_b32 v{aCS[i]+3}, s{sNONCE}",
                            f"buffer_store_dwordx4 v[{aCS[i]}:{aCS[i]+3}], v{vPA}, s[{SRDC}:{SRDC+3}], s{sPOFF} offen offset:{256*i} sc1",
                            f"{lab}_s{i}:"]
                ool += ["s_mov_b64 exec, -1", f"s_branch {lab}_back"]
            if 'dg' in EXP and var == 0 and st in (DG0, DG0 + 2):
                PER = 12 if ffn else 10
                lab = e.newlab("k1dg")
                assert post is None
                post = [f"s_cmp_eq_u32 s{sCNT}, {DGI}", f"s_cbranch_scc1 {lab}", f"{lab}_back:"]
                ld = [f"s_mul_i32 s5, s{sROLE}, {16*3072}",
                      f"s_add_u32 s5, s5, {PCS_REL}",
                      f"buffer_load_dwordx4 v[{vST}:{vST+3}], v{t[1]}, s[{SRDC}:{SRDC+3}], s5 offen sc1"]
                ool += [f"{lab}:", f"s_cmp_ge_u32 s{sW}, 3", f"s_cbranch_scc1 {lab}_back"]
                if st == DG0:
                    ool += [f"v_lshrrev_b32 v{t[0]}, 4, v{L}",
                            f"s_lshl_b32 s4, s{sW}, 2",
                            f"v_add_u32 v{t[0]}, s4, v{t[0]}",
                            f"v_min_u32 v{t[0]}, {PER-1}, v{t[0]}",
                            f"s_mul_i32 s4, s{sTB}, {PER}",
                            f"v_add_u32 v{t[0]}, s4, v{t[0]}",
                            f"v_and_b32 v{t[1]}, 15, v{L}",
                            f"v_mul_u32_u24 v{t[1]}, 3072, v{t[1]}",
                            f"v_lshl_add_u32 v{t[1]}, v{t[0]}, 4, v{t[1]}"] + ld
                else:
                    ool += ["s_mov_b32 s4, 200000",
                            f"{lab}_l:",
                            f"v_cmp_ne_u32 vcc, s{sNONCE}, v{vST+2}",
                            "s_nop 1",
                            f"s_cbranch_vccz {lab}_ok",
                            "s_sleep 2"] + ld + [
                            "s_waitcnt vmcnt(0)",
                            "s_sub_u32 s4, s4, 1",
                            "s_cmp_lg_u32 s4, 0",
                            f"s_cbranch_scc1 {lab}_l",
                            f"{lab}_ok:"]
                    for k_ in (8, 4, 2, 1):
                        ool += ["s_nop 1",
                                f"v_add_f32_dpp v{vST}, v{vST}, v{vST} row_ror:{k_} row_mask:0xf bank_mask:0xf",
                                f"v_add_f32_dpp v{vST+1}, v{vST+1}, v{vST+1} row_ror:{k_} row_mask:0xf bank_mask:0xf"]
                    ool += [f"v_lshrrev_b32 v{t[2]}, 4, v{t[0]}",
                            f"v_and_b32 v{t[3]}, 15, v{t[0]}",
                            f"v_lshlrev_b32 v{t[3]}, 3, v{t[3]}",
                            f"v_lshl_add_u32 v{t[3]}, v{t[2]}, 8, v{t[3]}",
                            f"v_mov_b32 v{vST+2}, v{vST+1}",
                            f"v_mov_b32 v{vST+1}, s{sNONCE}",
                            f"v_mov_b32 v{vST+3}, s{sNONCE}",
                            f"s_mul_i32 s4, s{sROLE}, {384*8}",
                            "s_mov_b32 exec_lo, 0x00010001",
                            "s_mov_b32 exec_hi, 0x00010001",
                            f"buffer_store_dwordx2 v[{vST}:{vST+1}], v{t[3]}, s[{SRDC}:{SRDC+3}], s4 offen sc1",
                            f"buffer_store_dwordx2 v[{vST+2}:{vST+3}], v{t[3]}, s[{SRDC}:{SRDC+3}], s4 offen offset:128 sc1",
                            "s_mov_b64 exec, -1"]
                ool += [f"s_branch {lab}_back"]
            body += stage(None, st, var, ff, 99, mid=mid, post=post)
        b1, pend1 = autowait(body, pend)
        b2, pend2 = autowait(body, pend1)
        assert b1 == b2, "loop waits not periodic"
        for x in b1: e(x)
        e(f"s_sub_u32 s{sCNT}, s{sCNT}, 1")
        e(f"s_cmp_lg_u32 s{sCNT}, 0")
        e(f"s_cbranch_scc1 {loop}")
        n0 = NSTG - RR
        hi_g = n0 + RR - 2 if var == 0 else n0 + RR - 3
        ff = [(g_, gsize(var)) for g_ in range(n0 + 1, hi_g + 1)]
        tail = []
        lretry, lback = e.newlab("k1retry"), e.newlab("k1back")
        for st in range(RR):
            n = n0 + st
            ex0 = ex1 = None
            fv = None
            if n == NSTG - 2:
                ex0 = [[] for _ in range(NS)]
                ex0[NS - 1] = gl_load
            if n == NSTG - 1:
                ex1 = [[] for _ in range(NS)]
                ex1[2] = ["s_waitcnt vmcnt(0)"] + gl_test + [
                          (f"s_cbranch_vccnz {lretry}" if 'nowait' not in EXP else "s_nop 0"),
                          f"{lback}:",
                          f"ds_write_b32 v{vGA}, v{vG} offset:{CSL}",
                          f"ds_write_b32 v{vSTA}, v{vST} offset:{RSL}",
                          f"ds_write_b32 v{vSTA}, v{vST+1} offset:{NML}"]
            sb = stage(n, st, var, ff, NSTG - 1, ex0, ex1, fv)
            tail += sb
        tl, pend3 = autowait(tail, pend1)
        for x in tl: e(x)
        e("s_waitcnt lgkmcnt(0)")
        e("s_barrier")
        if var == 0:
            e(f"s_branch {pfx}_{cls}_epi")
        ret = [f"{lretry}:", f"s_mov_b32 s{sCNT}, 200000", f"{lretry}_l:", "s_sleep 2"] + gl_load + [
            "s_waitcnt vmcnt(0)"] + gl_test + [
            f"s_cbranch_vccz {lback}",
            f"s_sub_u32 s{sCNT}, s{sCNT}, 1",
            f"s_cmp_lg_u32 s{sCNT}, 0",
            f"s_cbranch_scc1 {lretry}_l",
            f"s_branch {lback}"]
        if var == 0:
            for x in ret + ool: e(x)
        else:
            e(f"s_branch {pfx}_{cls}_epi")
            for x in ret + ool: e(x)

    e.lab(f"{pfx}_{cls}_epi")
    e("s_setprio 0")
    stamp(e, 3)
    e(f"v_and_b32 v{t[0]}, 31, v{L}")
    e(f"s_lshl_b32 s4, s{sA}, {6 if ffn else 5}")
    e(f"v_add_u32 v{t[0]}, s4, v{t[0]}")
    e(f"v_lshlrev_b32 v{t[0]}, 2, v{t[0]}")
    vNM = [R.a() for _ in range(NU)]
    vRS = [R.a() for _ in range(NU)]
    if cls != "v":
        for u in range(NU):
            e(f"ds_read_b32 v{vNM[u]}, v{t[0]} offset:{128*u+NML}")
            e(f"ds_read_b32 v{vRS[u]}, v{t[0]} offset:{128*u+RSL}")
    h = t[2]
    e(f"v_lshrrev_b32 v{h}, 5, v{L}")
    csa = t[3]
    e(f"s_mul_i32 s4, s{sB}, {NT*128}")
    e(f"v_lshlrev_b32 v{csa}, 4, v{h}")
    e(f"v_add_u32 v{csa}, s4, v{csa}")
    sc = store_sc
    frag0 = fA[0][0]
    nfr = (2 * NT + 2 * NU) * 4 + 4
    assert fS + 4 == frag0 + nfr
    if ffn:
        csr = [frag0, frag0 + 16, R.a(16, 4)]
        assert nfr >= 32
        for i in range(3):
            for a in range(4):
                e(f"ds_read_b128 v[{csr[i]+4*a}:{csr[i]+4*a+3}], v{csa} offset:{CSL+128*i+32*a}")
        srd(e, SRDO, S_WS, ACT_OFF, ACT_SZ)
        e(f"s_lshl_b32 s4, s{sTB}, 3")
        e(f"s_lshl_b32 s5, s{sA}, 2")
        e(f"s_add_u32 s4, s4, s5")
        e(f"s_mul_i32 s4, s4, {ACT_ROW}")
        e(f"s_sub_u32 s5, s{sROLE}, 6")
        e(f"s_mul_i32 s5, s5, 12")
        e(f"s_mul_i32 s6, s{sB}, 3")
        e(f"s_add_u32 s5, s5, s6")
        e(f"s_lshl_b32 s5, s5, 9")
        e(f"s_add_u32 s4, s4, s5")
        e(f"v_bfe_u32 v{t[4]}, v{L}, 4, 1")
        e(f"v_mul_u32_u24 v{t[4]}, {ACT_ROW}, v{t[4]}")
        e(f"v_lshl_add_u32 v{t[4]}, v{h}, 8, v{t[4]}")
        e(f"v_and_b32 v{t[5]}, 15, v{L}")
        e(f"v_lshl_add_u32 v{t[4]}, v{t[5]}, 4, v{t[4]}")
        e(f"v_add_u32 v{t[4]}, s4, v{t[4]}")
        e(f"s_mov_b32 s7, {2*ACT_ROW}")
        body = []
        for u in range(NU):
            body.append(f"v_mul_f32 v{vRS[u]}, v{vRS[u]}, v{vRS[u]}")
        for i in range(3):
            for u in range(2):
                c = acc[i][u]
                tm = csr[i]
                for r in range(16):
                    body.append(f"v_fmac_f32 v{c+r}, v{vNM[u]}, v{tm+r}")
                for r in range(8):
                    body.append(f"v_max_f32 v{c+r}, 0, v{c+r}")
                    body.append(f"v_mul_f32 v{c+8+r}, v{vRS[u]}, v{c+8+r}")
                for r in range(8):
                    body.append(f"v_mul_f32 v{c+r}, v{c+r}, v{c+8+r}")
                p_ = c + 8
                for r in range(4):
                    body.append(f"v_cvt_pk_bf16_f32 v{p_+r}, v{c+2*r}, v{c+2*r+1}")
                so = "0" if u == 0 else "s7"
                st_ = f"buffer_store_dwordx4 v[{p_}:{p_+3}], v{t[4]}, s[{SRDO}:{SRDO+3}], {so} offen offset:{512*i} {sc}"
                if "ek" in EXP:
                    lab = e.newlab("k1ds")
                    body += [f"s_cbranch_scc1 {lab}", st_, f"{lab}:"]
                    DEFER.append(st_)
                else:
                    body.append(st_)
        pend = [{vNM[0]}, {vRS[0]}, {vNM[1]}, {vRS[1]}] + [set(range(csr[i] + 4 * a, csr[i] + 4 * a + 4)) for i in range(3) for a in range(4)]
        e("s_waitcnt lgkmcnt(12)")
        pend = pend[4:]
        bl, _ = autowait(body, pend)
        if "ek" in EXP:
            e(f"s_cmp_eq_u32 s{sW}, 7")
        for x in bl: e(x)
    elif cls == "qk":
        nbuf = nfr // 16
        tm = [frag0 + 16 * k for k in range(2)]
        for i in range(2):
            for a in range(4):
                e(f"ds_read_b128 v[{tm[i]+4*a}:{tm[i]+4*a+3}], v{csa} offset:{CSL+128*i+32*a}")
        e(f"s_mov_b32 s6, {hex(QB_OFF)}")
        e(f"s_cmp_ge_u32 s{sROLE}, 2")
        e(f"s_cselect_b32 s4, {hex(KB_OFF)}, s6")
        e(f"s_cselect_b32 s5, 1.0, {hex(f2u(20**-0.5*1.4426950408889634))}")
        srd(e, SRDO, S_WS, "s4", QK_SZ)
        e(f"s_mov_b32 s31, s5")
        e(f"s_and_b32 s4, s{sROLE}, 1")
        e(f"s_lshl_b32 s4, s4, 3")
        e(f"s_lshl_b32 s5, s{sB}, 2")
        e(f"s_add_u32 s4, s4, s5")
        e(f"s_lshl_b32 s4, s4, 6")
        e(f"s_lshl_b32 s5, s{sTB}, 2")
        e(f"s_add_u32 s4, s4, s5")
        e(f"s_add_u32 s4, s4, s{sA}")
        e(f"s_mul_i32 s4, s4, 2560")
        e(f"v_lshlrev_b32 v{t[4]}, 4, v{L}")
        e(f"v_add_u32 v{t[4]}, s4, v{t[4]}")
        e(f"v_lshlrev_b32 v{t[5]}, 3, v{L}")
        e(f"v_add_u32 v{t[5]}, s4, v{t[5]}")
        e(f"v_add_u32 v{t[5]}, 2048, v{t[5]}")
        stg = R.a(40, 4)
        def dst(G):
            p, k = divmod(G, 5)
            base = stg + 10 * p
            return {0: base, 1: base + 2, 2: base + 8, 3: base + 4, 4: base + 6}[k]
        body = [f"v_mul_f32 v{vRS[0]}, s31, v{vRS[0]}"]
        for i in range(5):
            c = acc[i][0]
            tmc = tm[i & 1]
            for r in range(16):
                body.append(f"v_fmac_f32 v{c+r}, v{vNM[0]}, v{tmc+r}")
            if i + 2 < 5:
                for a in range(4):
                    body.append(f"ds_read_b128 v[{tmc+4*a}:{tmc+4*a+3}], v{csa} offset:{CSL+128*(i+2)+32*a}")
            for r in range(16):
                body.append(f"v_mul_f32 v{c+r}, v{vRS[0]}, v{c+r}")
            for a in range(4):
                G = 4 * i + a
                d = dst(G)
                body.append(f"v_cvt_pk_bf16_f32 v{d}, v{c+4*a}, v{c+4*a+1}")
                body.append(f"v_cvt_pk_bf16_f32 v{d+1}, v{c+4*a+2}, v{c+4*a+3}")
                p, k = divmod(G, 5)
                if k == 4:
                    base = stg + 10 * p
                    body.append(f"s_mov_b32 s7, {p*64*2560}")
                    body.append(f"buffer_store_dwordx4 v[{base}:{base+3}], v{t[4]}, s[{SRDO}:{SRDO+3}], s7 offen {sc}")
                    body.append(f"buffer_store_dwordx4 v[{base+4}:{base+7}], v{t[4]}, s[{SRDO}:{SRDO+3}], s7 offen offset:1024 {sc}")
                    body.append(f"buffer_store_dwordx2 v[{base+8}:{base+9}], v{t[5]}, s[{SRDO}:{SRDO+3}], s7 offen {sc}")
        pend = [{vNM[0]}, {vRS[0]}] + [set(range(tm[i] + 4 * a, tm[i] + 4 * a + 4)) for i in range(2) for a in range(4)]
        bl, _ = autowait(body, pend)
        for x in bl: e(x)
    else:
        srd(e, SRDO, S_WS, VB_OFF, VB_SZ)
        e(f"s_lshl_b32 s4, s{sA}, 7")
        e(f"v_lshlrev_b32 v{t[4]}, 4, v{h}")
        e(f"v_add_u32 v{t[4]}, s4, v{t[4]}")
        rsq = frag0
        nmq = rsq + 16
        assert nfr >= 32
        for a in range(4):
            e(f"ds_read_b128 v[{rsq+4*a}:{rsq+4*a+3}], v{t[4]} offset:{32*a+RSL}")
            e(f"ds_read_b128 v[{nmq+4*a}:{nmq+4*a+3}], v{t[4]} offset:{32*a+NML}")
        e(f"v_and_b32 v{t[1]}, 31, v{L}")
        e(f"s_mul_i32 s4, s{sB}, {NT*32}")
        e(f"v_add_u32 v{t[1]}, s4, v{t[1]}")
        e(f"v_lshlrev_b32 v{t[1]}, 2, v{t[1]}")
        csl = [R.a() for _ in range(5)]
        for i in range(5):
            e(f"ds_read_b32 v{csl[i]}, v{t[1]} offset:{CSL+128*i}")
        e(f"s_sub_u32 s4, s{sROLE}, 4")
        e(f"s_lshl_b32 s4, s4, 4")
        e(f"s_lshl_b32 s5, s{sB}, 3")
        e(f"s_add_u32 s4, s4, s5")
        e(f"s_lshl_b32 s4, s4, 6")
        e(f"s_lshl_b32 s5, s{sTB}, 2")
        e(f"s_add_u32 s4, s4, s5")
        e(f"s_add_u32 s4, s4, s{sA}")
        e(f"s_mul_i32 s4, s4, 1280")
        e(f"s_mov_b32 s5, 3277")
        e(f"s_mov_b32 s6, {64*1280}")
        va = [R.a() for _ in range(5)]
        for i in range(5):
            e(f"v_and_b32 v{t[5]}, 31, v{L}")
            e(f"v_add_u32 v{t[5]}, {32*i}, v{t[5]}")
            e(f"v_mul_lo_u32 v{t[6]}, v{t[5]}, s5")
            e(f"v_lshrrev_b32 v{t[6]}, 16, v{t[6]}")
            e(f"v_mul_u32_u24 v{t[7]}, 20, v{t[6]}")
            e(f"v_sub_u32 v{t[5]}, v{t[5]}, v{t[7]}")
            e(f"v_mul_lo_u32 v{t[6]}, v{t[6]}, s6")
            e(f"v_lshl_add_u32 v{t[6]}, v{t[5]}, 4, v{t[6]}")
            e(f"v_mul_u32_u24 v{t[7]}, 320, v{h}")
            e(f"v_add3_u32 v{va[i]}, v{t[6]}, v{t[7]}, s4")
        e("s_waitcnt lgkmcnt(0)")
        for i in range(5):
            c = acc[i][0]
            for r in range(16):
                e(f"v_fmac_f32 v{c+r}, v{nmq+r}, v{csl[i]}")
            for r in range(16):
                e(f"v_mul_f32 v{c+r}, v{rsq+r}, v{c+r}")
            for sidx in range(2):
                d = c + 8 * sidx
                for r in range(4):
                    e(f"v_cvt_pk_bf16_f32 v{d+r}, v{d+2*r}, v{d+2*r+1}")
                e(f"buffer_store_dwordx4 v[{d}:{d+3}], v{va[i]}, s[{SRDO}:{SRDO+3}], 0 offen offset:{640*sidx} {sc}")
    stamp(e, 7)
    if finish is None:
        e("s_waitcnt vmcnt(0)")
        stamp(e, 5)
        stamp(e, 6, True)
        stamp_dump(e, 8, 0, sW, S_WS)
        e("s_endpgm")
    else:
        finish(e, cls)
    return R.hi


def helper(e, store_sc="", finish=None, pfx="k1"):
    R = Regs(2, 256, "v")
    t = [R.a() for _ in range(6)]
    vSrc, vRd, vDst, vOff = R.a(), R.a(), R.a(), R.a()
    ac = R.a(8, 4)
    u_ = [R.a() for _ in range(4)]
    fr = [R.a(4, 4) for _ in range(5)]
    L = 1
    SRDA, SRDB, SRDS = 8, 12, 80
    sKS, sSO = 24, 25
    PART = 0
    BUF0 = 32768
    e.lab(f"{pfx}_helper")
    e(f"v_lshlrev_b32 v{vSrc}, 4, v{L}")
    e(f"v_lshrrev_b32 v{t[0]}, 5, v{L}")
    e(f"v_bfe_u32 v{t[1]}, v{L}, 4, 1")
    e(f"v_bfe_u32 v{t[2]}, v{L}, 2, 2")
    e(f"v_lshl_add_u32 v{t[2]}, v{t[1]}, 2, v{t[2]}")
    e(f"v_lshl_add_u32 v{t[2]}, v{t[0]}, 4, v{t[2]}")
    e(f"v_mul_u32_u24 v{t[2]}, 1280, v{t[2]}")
    e(f"v_and_b32 v{t[3]}, 3, v{L}")
    e(f"v_mul_u32_u24 v{t[3]}, 40, v{t[3]}")
    e(f"s_mul_i32 s4, s{sW}, 160")
    e(f"s_add_u32 s4, s4, {BUF0}")
    e(f"v_add3_u32 v{vRd}, v{t[2]}, v{t[3]}, s4")
    e(f"s_mul_i32 s4, s{sW}, {W3_CB}")
    e(f"v_add_u32 v{vDst}, s4, v{vSrc}")
    for r in range(8):
        e(f"v_mov_b32 v{ac+r}, 0")
    e("s_waitcnt lgkmcnt(0)")
    stamp(e, 0, True)
    stamp(e, 1)
    srd(e, SRDA, S_DOWN, 0, WD_SZ)
    srd(e, SRDB, S_WO, 0, WO_SZ)
    srd(e, SRDO, S_WS, W3_OFF, W3_SZ)
    srd(e, SRDD, S_DBG, 0, 256)
    srd(e, SRDC, S_WS, CSG_OFF, CSG_SZ)
    l0 = e.newlab("k1n")
    e(f"s_or_b32 s4, s2, s{sW}")
    e("s_cmp_lg_u32 s4, 0")
    e(f"s_cbranch_scc1 {l0}")
    e("s_memrealtime s[6:7]")
    e("s_waitcnt lgkmcnt(0)")
    e("s_or_b32 s6, s6, 1")
    e(f"v_mov_b32 v{t[0]}, s6")
    e("s_mov_b64 exec, 1")
    e(f"buffer_store_dword v{t[0]}, off, s[{SRDD}:{SRDD+3}], 0 sc1")
    e("s_mov_b64 exec, -1")
    e.lab(l0)

    def w3_dma(j):
        b = BUF0 + (j % 3) * 40960
        lab = e.newlab("w3")
        e(f"s_add_u32 s{sKS}, s{sTB}, {16*j}")
        e(f"s_mul_i32 m0, s{sW}, 5120")
        e(f"s_add_u32 m0, m0, {b}")
        def issue(sr):
            for i in range(4):
                e(f"buffer_load_dwordx4 v{vSrc}, s[{sr}:{sr+3}], s{sSO} offen offset:{1024*i} lds")
            e(f"s_add_u32 s{sSO}, s{sSO}, 4096")
            e(f"s_add_u32 m0, m0, 4096")
            e("s_nop 0")
            e(f"buffer_load_dwordx4 v{vSrc}, s[{sr}:{sr+3}], s{sSO} offen lds")
        if j >= 3:
            e(f"s_cmp_ge_u32 s{sKS}, 54")
            e(f"s_cbranch_scc1 {lab}_o")
        if j <= 3:
            e(f"s_lshl_b32 s4, s{sKS}, 5")
            e(f"s_lshl_b32 s5, s{sW}, 2")
            e(f"s_add_u32 s4, s4, s5")
            e(f"s_mul_i32 s{sSO}, s4, 1280")
            issue(SRDA)
        if j >= 3:
            e(f"s_branch {lab}_go")
            e.lab(f"{lab}_o")
            e(f"s_cmp_ge_u32 s{sKS}, 70")
            e(f"s_cbranch_scc1 {lab}_x")
            e(f"s_sub_u32 s4, s{sKS}, 54")
            e(f"s_mul_i32 s4, s4, 40")
            e(f"s_lshr_b32 s5, s{sW}, 2")
            e(f"s_mul_i32 s5, s5, 20")
            e(f"s_add_u32 s4, s4, s5")
            e(f"s_and_b32 s5, s{sW}, 3")
            e(f"s_lshl_b32 s5, s5, 2")
            e(f"s_add_u32 s4, s4, s5")
            e(f"s_branch {lab}_wo")
            e.lab(f"{lab}_x")
            e(f"s_sub_u32 s4, s{sKS}, 70")
            e(f"s_lshl_b32 s4, s4, 3")
            e(f"s_lshr_b32 s5, s{sW}, 2")
            e(f"s_lshl_b32 s5, s5, 2")
            e(f"s_add_u32 s4, s4, s5")
            e(f"s_and_b32 s5, s{sW}, 1")
            e(f"s_lshl_b32 s5, s5, 1")
            e(f"s_add_u32 s4, s4, s5")
            e(f"s_bfe_u32 s5, s{sW}, 0x10001")
            e(f"s_add_u32 s4, s4, s5")
            e(f"s_mul_i32 s4, s4, 20")
            e(f"s_add_u32 s4, s4, 16")
            e.lab(f"{lab}_wo")
            e(f"s_mul_i32 s{sSO}, s4, 1280")
            issue(SRDB)
            e.lab(f"{lab}_go")

    def repack_rd(j):
        off = (j % 3) * 40960
        e(f"s_mov_b32 s4, {off}")
        e(f"v_add_u32 v{t[0]}, s4, v{vRd}")
        for c5 in range(5):
            e(f"ds_read_b64_tr_b16 v[{fr[c5]}:{fr[c5]+1}], v{t[0]} offset:{8*c5}")
            e(f"ds_read_b64_tr_b16 v[{fr[c5]+2}:{fr[c5]+3}], v{t[0]} offset:{8*c5+8*1280}")
        e("s_waitcnt lgkmcnt(0)")
        e("s_barrier")

    def repack_st(j):
        e(f"s_add_u32 s4, s{sTB}, {16*j}")
        e(f"s_mul_i32 s7, s4, 5120")
        for c5 in range(4):
            e(f"buffer_store_dwordx4 v[{fr[c5]}:{fr[c5]+3}], v{vDst}, s[{SRDO}:{SRDO+3}], s7 offen offset:{1024*c5} {store_sc}")
        e(f"s_add_u32 s7, s7, 4096")
        e(f"buffer_store_dwordx4 v[{fr[4]}:{fr[4]+3}], v{vDst}, s[{SRDO}:{SRDO+3}], s7 offen {store_sc}")

    def repack(j):
        repack_rd(j)
        repack_st(j)

    HS = 'hs' in EXP
    for j in range(1 if HS else 3):
        w3_dma(j)
    xb = R.a(80, 4)
    srd(e, SRDS, S_XP, 0, X_SZ)
    e(f"s_lshl_b32 s4, s{sTB}, 7")
    e(f"s_lshl_b32 s5, s{sW}, 4")
    e(f"s_add_u32 s4, s4, s5")
    e(f"s_mul_i32 s4, s4, 1280")
    e(f"v_lshrrev_b32 v{t[0]}, 2, v{L}")
    e(f"v_mul_u32_u24 v{t[0]}, 1280, v{t[0]}")
    e(f"v_and_b32 v{t[1]}, 3, v{L}")
    e(f"v_lshl_add_u32 v{vOff}, v{t[1]}, 4, v{t[0]}")
    for j in range(20):
        e(f"buffer_load_dwordx4 v[{xb+4*j}:{xb+4*j+3}], v{vOff}, s[{SRDS}:{SRDS+3}], s4 offen offset:{64*j}")
    ln = e.newlab("csn")
    if HS:
        w3_dma(1)
        w3_dma(2)
        e("s_waitcnt vmcnt(30)")
        e("s_barrier")
        e(f"buffer_load_dword v{t[5]}, off, s[{SRDD}:{SRDD+3}], 0 sc1")
        repack(0)
        e("s_waitcnt vmcnt(16)")
        if "es" not in EXP: stamp(e, 2)
    else:
        e(f"s_mov_b32 s{sCNT}, 200000")
        e.lab(ln)
        e(f"buffer_load_dword v{t[5]}, off, s[{SRDD}:{SRDD+3}], 0 sc1")
        e("s_waitcnt vmcnt(0)")
        e(f"v_readfirstlane_b32 s{sNONCE}, v{t[5]}")
        e(f"s_cmp_lg_u32 s{sNONCE}, 0")
        e(f"s_cbranch_scc1 {ln}_ok")
        e("s_sleep 2")
        e(f"s_sub_u32 s{sCNT}, s{sCNT}, 1")
        e(f"s_cmp_lg_u32 s{sCNT}, 0")
        e(f"s_cbranch_scc1 {ln}")
        e.lab(f"{ln}_ok")
        if "es" not in EXP: stamp(e, 2)
    first = True
    for d in range(80):
        a_, b_ = u_[2 * (d & 1)], u_[2 * (d & 1) + 1]
        e(f"v_lshlrev_b32 v{a_}, 16, v{xb+d}")
        e(f"v_and_b32 v{b_}, s{sMASK}, v{xb+d}")
        k = 2 * (d & 1)
        e(f"v_add_f32 v{ac+k}, v{ac+k}, v{a_}")
        e(f"v_add_f32 v{ac+k+1}, v{ac+k+1}, v{b_}")
        e(f"v_fmac_f32 v{ac+4+k}, v{a_}, v{a_}")
        e(f"v_fmac_f32 v{ac+4+k+1}, v{b_}, v{b_}")
    e(f"v_add_f32 v{ac}, v{ac}, v{ac+1}")
    e(f"v_add_f32 v{ac+2}, v{ac+2}, v{ac+3}")
    e(f"v_add_f32 v{ac+4}, v{ac+4}, v{ac+5}")
    e(f"v_add_f32 v{ac+6}, v{ac+6}, v{ac+7}")
    e(f"v_add_f32 v{ac}, v{ac}, v{ac+2}")
    e(f"v_add_f32 v{ac+4}, v{ac+4}, v{ac+6}")
    e(f"s_mov_b32 s4, {hex(f2u(1.0/640))}")
    e(f"s_mov_b32 s5, {hex(f2u(1e-5))}")
    for qp in ("[1,0,3,2]", "[2,3,0,1]"):
        e("s_nop 1")
        e(f"v_add_f32_dpp v{ac}, v{ac}, v{ac} quad_perm:{qp} row_mask:0xf bank_mask:0xf")
        e(f"v_add_f32_dpp v{ac+4}, v{ac+4}, v{ac+4} quad_perm:{qp} row_mask:0xf bank_mask:0xf")
    e("s_nop 0")
    e(f"v_mul_f32 v{ac+1}, s4, v{ac}")
    e(f"v_mul_f32 v{ac+4}, s4, v{ac+4}")
    e(f"v_fma_f32 v{ac+4}, -v{ac+1}, v{ac+1}, v{ac+4}")
    e(f"v_max_f32 v{ac+4}, 0, v{ac+4}")
    e(f"v_add_f32 v{ac+4}, s5, v{ac+4}")
    e(f"v_rsq_f32 v{ac}, v{ac+4}")
    e(f"v_sub_f32 v{ac+1}, 0, v{ac+1}")
    if HS:
        e(f"s_mov_b32 s{sCNT}, 200000")
        e("s_waitcnt vmcnt(5)")
        e.lab(ln)
        e(f"v_readfirstlane_b32 s{sNONCE}, v{t[5]}")
        e(f"s_cmp_lg_u32 s{sNONCE}, 0")
        e(f"s_cbranch_scc1 {ln}_ok")
        e("s_sleep 2")
        e(f"buffer_load_dword v{t[5]}, off, s[{SRDD}:{SRDD+3}], 0 sc1")
        e("s_waitcnt vmcnt(0)")
        e(f"s_sub_u32 s{sCNT}, s{sCNT}, 1")
        e(f"s_cmp_lg_u32 s{sCNT}, 0")
        e(f"s_cbranch_scc1 {ln}")
        e.lab(f"{ln}_ok")
    e(f"v_mov_b32 v{ac+2}, s{sNONCE}")
    e(f"v_mov_b32 v{ac+3}, s{sNONCE}")
    e(f"v_lshrrev_b32 v{t[0]}, 2, v{L}")
    e(f"v_lshlrev_b32 v{t[0]}, 4, v{t[0]}")
    e(f"s_lshl_b32 s4, s{sTB}, 11")
    e(f"s_lshl_b32 s5, s{sW}, 8")
    e(f"s_add_u32 s4, s4, s5")
    e(f"s_add_u32 s4, s4, {STG_REL}")
    e("s_mov_b32 exec_lo, 0x11111111")
    e("s_mov_b32 exec_hi, 0x11111111")
    e(f"buffer_store_dwordx4 v[{ac}:{ac+3}], v{t[0]}, s[{SRDC}:{SRDC+3}], s4 offen sc1")
    e("s_mov_b64 exec, -1")
    stamp(e, 3)
    e("s_barrier")
    if not HS:
        repack(0)
        w3_dma(3)
    repack(1)
    if HS:
        w3_dma(3)
    l4 = e.newlab("w3s")
    e(f"s_cmp_ge_u32 s{sTB}, 10")
    e(f"s_cbranch_scc1 {l4}")
    w3_dma(4)
    e.lab(l4)
    if HS:
        repack_rd(2)
    else:
        repack(2)
    stamp(e, 4)
    lg = e.newlab("csg")
    lskip = f"{lg}_skip" if HS else f"{lg}_end"
    if 'dg' in EXP:
        assert HS
        e(f"s_branch {lskip}")
    e(f"s_cmp_eq_u32 s{sTB}, 15")
    e(f"s_cbranch_scc1 {lskip}")
    e(f"s_cmp_ge_u32 s{sW}, 3")
    e(f"s_cbranch_scc1 {lskip}")
    e(f"s_mov_b32 s5, 159")
    e(f"s_cmp_lt_u32 s{sTB}, 6")
    e(f"s_cselect_b32 s4, s5, 191")
    e(f"v_min_u32 v{t[0]}, s4, v0")
    e(f"v_lshlrev_b32 v{t[1]}, 4, v{t[0]}")
    e(f"s_mov_b32 s{sCNT}, 200000")
    def gather():
        e(f"s_mul_i32 s4, s{sTB}, {16*3072}")
        e(f"s_add_u32 s4, s4, {PCS_REL}")
        for u in range(16):
            e(f"buffer_load_dwordx4 v[{xb+4*u}:{xb+4*u+3}], v{t[1]}, s[{SRDC}:{SRDC+3}], s4 offen sc1")
            if u < 15:
                e(f"s_add_u32 s4, s4, 3072")
    if HS:
        gather()
        repack_st(2)
        e("s_waitcnt vmcnt(5)")
        e(f"s_branch {lg}_chk")
    e.lab(lg)
    gather()
    e("s_waitcnt vmcnt(0)")
    e.lab(f"{lg}_chk")
    e(f"v_xor_b32 v{t[2]}, s{sNONCE}, v{xb+2}")
    for u in range(1, 16):
        e(f"v_xor_b32 v{t[3]}, s{sNONCE}, v{xb+4*u+2}")
        e(f"v_or_b32 v{t[2]}, v{t[2]}, v{t[3]}")
    e(f"v_cmp_ne_u32 vcc, 0, v{t[2]}")
    e("s_nop 1")
    e(f"s_cbranch_vccz {lg}_ok")
    e("s_sleep 4")
    e(f"s_sub_u32 s{sCNT}, s{sCNT}, 1")
    e(f"s_cmp_lg_u32 s{sCNT}, 0")
    e(f"s_cbranch_scc1 {lg}")
    e.lab(f"{lg}_ok")
    for u in range(1, 16):
        e(f"v_add_f32 v{xb}, v{xb}, v{xb+4*u}")
        e(f"v_add_f32 v{xb+1}, v{xb+1}, v{xb+4*u+1}")
    e(f"v_mov_b32 v{xb+2}, v{xb+1}")
    e(f"v_mov_b32 v{xb+1}, s{sNONCE}")
    e(f"v_mov_b32 v{xb+3}, s{sNONCE}")
    e(f"v_lshrrev_b32 v{t[2]}, 4, v{t[0]}")
    e(f"v_and_b32 v{t[3]}, 15, v{t[0]}")
    e(f"v_lshlrev_b32 v{t[3]}, 3, v{t[3]}")
    e(f"v_lshl_add_u32 v{t[3]}, v{t[2]}, 8, v{t[3]}")
    e(f"s_mul_i32 s4, s{sTB}, {384*8}")
    e(f"buffer_store_dwordx2 v[{xb}:{xb+1}], v{t[3]}, s[{SRDC}:{SRDC+3}], s4 offen sc1")
    e(f"buffer_store_dwordx2 v[{xb+2}:{xb+3}], v{t[3]}, s[{SRDC}:{SRDC+3}], s4 offen offset:128 sc1")
    if HS:
        e(f"s_branch {lg}_end")
        e.lab(lskip)
        repack_st(2)
    e.lab(f"{lg}_end")
    lend = f"{pfx}_h_end"
    e("s_waitcnt vmcnt(%d)" % (5 if HS else 0))
    e("s_barrier")
    repack(3)
    e(f"s_cmp_ge_u32 s{sTB}, 10")
    e(f"s_cbranch_scc1 {lend}")
    repack(4)
    e.lab(lend)
    stamp(e, 7)
    if finish is None:
        e("s_waitcnt vmcnt(0)")
        stamp(e, 5)
        stamp(e, 6, True)
        stamp_dump(e, 8, 0, sW, S_WS)
        e("s_endpgm")
    else:
        finish(e, "helper")
    return R.hi


def gen_k1(e, name, store_sc=""):
    e.l.append(kernel_header(name))
    prologue(e)
    hi = 0
    hi = max(hi, gemm(e, "qk", store_sc))
    hi = max(hi, gemm(e, "v", store_sc))
    hi = max(hi, gemm(e, "ffn", store_sc))
    hi = max(hi, helper(e, store_sc))
    e.lab("k1_exit")
    e("s_endpgm")
    return hi
```

```python
KNAME = "parallel_sum__sliding_block__glu_gated_reglu__prompt"

ACT_OFF = 0x0000000
ACT_ROW = 74 * 1024
ACT_SZ = 128 * ACT_ROW
QB_OFF = 0x0A00000
KB_OFF = 0x0D00000
QK_SZ = 16 * 64 * 2560
VB_OFF = 0x1000000
VB_SZ = 32 * 64 * 1280
W3_OFF = 0x1300000
W3_CB = 74 * 5120
W3_SZ = 8 * W3_CB

X_SZ = 2048 * 1280
WQKV_SZ = 640 * 3840
WG_SZ = 640 * 3456
WD_SZ = 1728 * 1280
WO_SZ = 640 * 1280


class E:
    def __init__(self):
        self.l = []
        self.nlab = 0

    def __call__(self, s=""):
        for x in s.split("\n"):
            self.l.append("    " + x.strip() if x.strip() and not x.strip().endswith(":") else x.strip())

    def lab(self, name):
        self.l.append(name + ":")

    NLAB = [0]
    def newlab(self, p="L"):
        E.NLAB[0] += 1
        return f"{p}_{E.NLAB[0]}"

    def c(self, s):
        self.l.append("    ; " + s)

    def text(self):
        return "\n".join(self.l) + "\n"


class Regs:
    def __init__(self, start, limit, pfx):
        self.n = start
        self.limit = limit
        self.pfx = pfx
        self.hi = start

    def a(self, cnt=1, align=1):
        if cnt >= 2 and align == 1:
            align = 2
        self.n = (self.n + align - 1) // align * align
        r = self.n
        self.n += cnt
        assert self.n <= self.limit, f"out of {self.pfx} regs ({self.n})"
        self.hi = max(self.hi, self.n)
        return r

    def mark(self):
        return self.n

    def reset(self, m):
        self.n = m


def v(i, n=1):
    return f"v{i}" if n == 1 else f"v[{i}:{i+n-1}]"


def s(i, n=1):
    return f"s{i}" if n == 1 else f"s[{i}:{i+n-1}]"


def srd(e, d, base_lo, off, size):
    if off == 0:
        e(f"s_mov_b32 s{d}, s{base_lo}")
        e(f"s_mov_b32 s{d+1}, s{base_lo+1}")
    else:
        o = off if isinstance(off, str) else hex(off)
        e(f"s_add_u32 s{d}, s{base_lo}, {o}")
        e(f"s_addc_u32 s{d+1}, s{base_lo+1}, 0")
    e(f"s_mov_b32 s{d+2}, {size if isinstance(size, str) else hex(size)}")
    e(f"s_mov_b32 s{d+3}, 0x00020000")


def interleave(e, mfmas, fillers):
    for i, m in enumerate(mfmas):
        e(m)
        if i < len(fillers):
            for f in fillers[i]:
                e(f)
    for fl in fillers[len(mfmas):]:
        for f in fl:
            e(f)


def spread(items, nslots, start=0):
    out = [[] for _ in range(nslots)]
    n = len(items)
    k = nslots - start
    for j, it in enumerate(items):
        out[start + min(k - 1, j * k // max(n, 1))].append(it)
    return out


def merge(*lists):
    n = max(len(x) for x in lists)
    out = [[] for _ in range(n)]
    for x in lists:
        for i, y in enumerate(x):
            out[i] += y
    return out


def kernel_header(name):
    return f""".globl {name}
.p2align 8
.type {name},@function
{name}:
"""


def kernel_desc(name, vgpr=256, sgpr=102):
    acc = min(256, (vgpr + 3) // 4 * 4)
    return f""".amdhsa_kernel {name}
  .amdhsa_next_free_vgpr {vgpr}
  .amdhsa_next_free_sgpr {sgpr}
  .amdhsa_accum_offset {acc}
  .amdhsa_group_segment_fixed_size 0
  .amdhsa_kernarg_size 80
  .amdhsa_user_sgpr_count 2
  .amdhsa_user_sgpr_kernarg_segment_ptr 1
  .amdhsa_system_sgpr_workgroup_id_x 1
.end_amdhsa_kernel
"""


PROF = False
PROF_OFF = 0x3000000
PROF_S0 = 84
PROF2 = []
def stamp(e, idx, real=False):
    if idx in PROF2:
        e("s_memrealtime s[98:99]")
        e("s_waitcnt lgkmcnt(0)")
        e(f"s_mov_b32 s{PROF_S0+idx}, s98")
        return
    if not PROF:
        return
    assert idx < 14
    e(f"{'s_memrealtime' if real else 's_memtime'} s[98:99]")
    e("s_waitcnt lgkmcnt(0)")
    e(f"s_mov_b32 s{PROF_S0+idx}, s98")

def stamp_dump(e, n, kidx, sW, ws_lo, vt=2):
    if not PROF:
        return
    e(f"s_lshl_b32 s98, s2, 3")
    e(f"s_add_u32 s98, s98, s{sW}")
    e(f"s_lshl_b32 s98, s98, 7")
    e(f"s_add_u32 s98, s98, {hex(PROF_OFF + kidx*0x40000)}")
    e(f"s_add_u32 s8, s{ws_lo}, s98")
    e(f"s_addc_u32 s9, s{ws_lo+1}, 0")
    e("s_mov_b32 s10, 128")
    e("s_mov_b32 s11, 0x00020000")
    e("s_mov_b64 exec, 1")
    e(f"v_mov_b32 v{vt+1}, 0")
    for i in range(n):
        e(f"v_mov_b32 v{vt}, s{PROF_S0+i}")
        e(f"buffer_store_dword v{vt}, v{vt+1}, s[8:11], 0 offen offset:{4*i}")
        e("s_nop 1")
    e("s_waitcnt vmcnt(0)")


import re as _re
_VR = _re.compile(r"\bv\[(\d+):(\d+)\]|\bv(\d+)\b")

def vregs(text):
    out = set()
    for m in _VR.finditer(text):
        if m.group(3) is not None:
            out.add(int(m.group(3)))
        else:
            out.update(range(int(m.group(1)), int(m.group(2)) + 1))
    return out

def autowait(lines, pending):
    out = []
    pending = list(pending)
    for ln in lines:
        st = ln.strip()
        op = st.split()[0] if st else ""
        if not st or st.startswith(";") or st.endswith(":"):
            out.append(ln); continue
        if op == "s_waitcnt":
            m = _re.search(r"lgkmcnt\((\d+)\)", st)
            if m:
                n = int(m.group(1))
                pending = pending[len(pending) - n:] if n < len(pending) else pending
            out.append(ln); continue
        if op.startswith("ds_"):
            ops = st[len(op):].split(",")
            if op.startswith("ds_read"):
                dst = vregs(ops[0]); use = vregs(",".join(ops[1:]))
            else:
                dst = set(); use = vregs(st[len(op):])
            need = use
        else:
            dst = None; need = vregs(st[len(op):])
        idx = -1
        for i, p in enumerate(pending):
            if p & need:
                idx = i
        if idx >= 0:
            n = min(15, len(pending) - 1 - idx)
            out.append(f"s_waitcnt lgkmcnt({n})")
            pending = pending[len(pending) - n:] if n else []
        out.append(ln)
        if dst is not None:
            pending.append(dst)
    return out, pending


_TRANS = ("v_exp_f32", "v_log_f32", "v_rcp_f32", "v_rsq_f32", "v_sqrt_f32", "v_sin_f32", "v_cos_f32")

def _split_ops(st):
    op = st.split()[0]
    rest = st[len(op):].split(";")[0]
    return op, [x.strip() for x in rest.split(",")]

def autohaz(lines):
    out = []
    ev = []
    clk = 0
    for ln in lines:
        st = ln.strip()
        if not st or st.startswith(";") or st.endswith(":"):
            out.append(ln); continue
        op, ops = _split_ops(st)
        if op == "s_nop":
            clk += int(ops[0]) + 1
            out.append(ln); continue
        is_mfma = op.startswith("v_mfma")
        is_valu = op.startswith("v_") and not is_mfma
        is_ds = op.startswith("ds_")
        is_vm = op.startswith("buffer_") or op.startswith("global_")
        rd, wr = set(), set()
        srcC = srcAB = set()
        if is_mfma:
            wr = vregs(ops[0]); srcAB = vregs(ops[1]) | vregs(ops[2]); srcC = vregs(ops[3]); rd = srcAB | srcC
        elif is_valu:
            if op.startswith("v_cmp") or op.startswith("v_readfirstlane") or op.startswith("v_readlane"):
                rd = vregs(",".join(ops[1:]))
            elif op.startswith("v_permlane32_swap") or op.startswith("v_permlane16_swap"):
                rd = vregs(",".join(ops)); wr = set(rd)
            else:
                wr = vregs(ops[0]); rd = vregs(",".join(ops[1:]))
                if op.startswith("v_fmac") or op.startswith("v_mac") or "_dpp" in op:
                    rd |= wr
        elif is_ds:
            if op.startswith("ds_read"):
                wr = vregs(ops[0]); rd = vregs(",".join(ops[1:]))
            else:
                rd = vregs(",".join(ops))
        elif is_vm:
            if "load" in op and " lds" not in st:
                wr = vregs(ops[0]); rd = vregs(",".join(ops[1:]))
            else:
                rd = vregs(",".join(ops))
        need = 0
        for (pos, kind, regs, n) in ev:
            d = 0
            if kind == "valu_w":
                if is_mfma and (regs & rd): d = 2
                if op.startswith("v_permlane") and (regs & rd): d = 2
                if op.startswith("v_readfirstlane") and (regs & rd): d = 1
            elif kind == "trans_w":
                if (is_valu or is_mfma or is_ds or is_vm) and (regs & rd): d = max(1, 2 if is_mfma else 1)
            elif kind == "mfma_w":
                lat = 12 if n == 8 else 8
                if is_mfma:
                    if regs & srcAB: d = lat
                    elif (regs & srcC) and not (regs == srcC and regs == wr): d = lat
                    elif (regs & wr) and regs != wr: d = lat
                elif (is_valu or is_ds or is_vm) and (regs & (rd | wr)): d = lat
            elif kind == "mfma_c":
                if is_valu and (regs & wr): d = 7 if n == 8 else 3
            elif kind == "store_d":
                if is_valu and (regs & wr): d = 2
            if d:
                need = max(need, pos + d + 1 - (clk + 1) + 0)
        need = 0
        for (pos, kind, regs, n) in ev:
            d = 0
            if kind == "valu_w":
                if is_mfma and (regs & rd): d = 2
                if op.startswith("v_permlane") and (regs & rd): d = 2
                if op.startswith("v_readfirstlane") and (regs & rd): d = 1
            elif kind == "trans_w":
                if (is_valu or is_ds or is_vm) and (regs & rd): d = 1
                if is_mfma and (regs & rd): d = 2
            elif kind == "mfma_w":
                lat = 12 if n == 8 else 8
                if is_mfma:
                    if regs & srcAB: d = lat
                    elif (regs & srcC) and not (regs == srcC and regs == wr): d = lat
                    elif (regs & wr) and regs != wr: d = lat
                elif (is_valu or is_ds or is_vm) and (regs & (rd | wr)): d = lat
            elif kind == "mfma_c":
                if is_valu and (regs & wr): d = 7 if n == 8 else 3
            elif kind == "store_d":
                if is_valu and (regs & wr): d = 2
            if d:
                need = max(need, d - (clk - pos - 1))
        while need > 0:
            k = min(need, 16)
            out.append(f"s_nop {k-1}")
            clk += k; need -= k
        out.append(ln)
        if is_mfma:
            n = 8 if "32x32" in op else 4
            ev.append((clk, "mfma_w", wr, n))
            if srcC and srcC != wr: ev.append((clk, "mfma_c", srcC, n))
        elif is_valu and wr:
            ev.append((clk, "trans_w" if op in _TRANS else "valu_w", wr, 0))
        elif is_vm and "store" in op and ("x4" in op or "x3" in op):
            ev.append((clk, "store_d", vregs(ops[0]), 0))
        elif is_ds and op.startswith("ds_write") and ("b128" in op or "b96" in op):
            ev.append((clk, "store_d", vregs(ops[1]), 0))
        clk += 1
        ev = [x for x in ev if clk - x[0] < 24]
    return out
```

```python
from common import *
import struct

def f2u(x):
    return struct.unpack("<I", struct.pack("<f", x))[0]

R_RING = 5
XSLOT = 8192
XR = 122880
P1_LDS = XR + R_RING * XSLOT
CSL = 0
RSL = 1536
NML = 2048

CSG_OFF = 0x1800000
STG_REL = 0x10000
PCS_REL = 0x20000
CSG_SZ = 0x100000

S_XP, S_WQKV, S_WO, S_GATE, S_UP, S_DOWN, S_OUT, S_DBG, S_WS = 40, 42, 44, 48, 50, 52, 54, 56, 58
SRDX, SRDW, SRDO = 8, 12, 16
sTB, sROLE, sW, sCNT, sWso, sXso, sWM0, sXM0 = 20, 21, 22, 23, 24, 25, 27, 28
sNONCE = 29
sT0, sT1, sT2, sT3 = 32, 33, 34, 35
sA, sB = 36, 37
sMASK = 39
sTRIG = 60
sMINE, sPOFF = 26, 30
SRDC, SRDD = 72, 76
EXP = set()
DEFER = []


def load_ptrs(e):
    e("s_load_dwordx16 s[40:55], s[0:1], 0")
    e("s_load_dwordx4 s[56:59], s[0:1], 64")


def prologue(e, pfx="k1"):
    import common
    if common.PROF and 'es' in EXP:
        e("s_memrealtime s[100:101]")
        e("s_waitcnt lgkmcnt(0)")
        e("s_mov_b32 s86, s100")
    e("s_cmp_ge_u32 s2, 256")
    e(f"s_cbranch_scc1 {pfx}_exit")
    load_ptrs(e)
    e("v_and_b32 v1, 63, v0")
    e("v_lshrrev_b32 v2, 6, v0")
    e("s_and_b32 s3, s2, 7")
    e("s_lshr_b32 s4, s2, 3")
    e(f"v_readfirstlane_b32 s{sW}, v2")
    e("s_and_b32 s5, s3, 1")
    e("s_lshl_b32 s5, s5, 3")
    e("s_and_b32 s6, s4, 7")
    e(f"s_add_u32 s{sTB}, s5, s6")
    e("s_lshr_b32 s5, s3, 1")
    e("s_lshl_b32 s5, s5, 2")
    e("s_lshr_b32 s6, s4, 3")
    if 'rm2' in EXP and 'rm3' not in EXP:
        e("s_lshr_b32 s7, s3, 2")
        e("s_lshl_b32 s7, s7, 2")
        e("s_xor_b32 s5, s5, s7")
    e(f"s_add_u32 s{sROLE}, s5, s6")
    e(f"s_add_u32 s{sROLE}, s{sROLE}, {6 if 'rm2' in EXP else 15}")
    e(f"s_and_b32 s{sROLE}, s{sROLE}, 15")
    e(f"s_mov_b32 s{sMASK}, 0xffff0000")
    e(f"s_cmp_eq_u32 s{sROLE}, 15")
    e(f"s_cbranch_scc1 {pfx}_helper")
    e(f"s_cmp_ge_u32 s{sROLE}, 6")
    e(f"s_cbranch_scc1 {pfx}_ffn")
    e(f"s_cmp_ge_u32 s{sROLE}, 4")
    e(f"s_cbranch_scc1 {pfx}_v")
    e(f"s_branch {pfx}_qk")


def gemm(e, cls, store_sc="", finish=None, pfx="k1"):
    ffn = cls == "ffn"
    RR = R_RING
    NSTG = 20
    NT = 3 if ffn else 5
    NU = 2 if ffn else 1
    WSLOT = 24576 if ffn else 20480
    WROW = 384 if ffn else 640
    GROW = 3456 if ffn else 3840
    NCS = 384 if ffn else 320
    R = Regs(2, 256, "v")
    t = [R.a() for _ in range(8)]
    vWs = [R.a() for _ in range(3)]
    vXs = R.a()
    nset = 2 if RR > 3 else 1
    NWB = 3 if ffn else 2
    vWA = [[R.a() for i in range(NWB)] for st in range(nset)]
    vXB = [R.a() for _ in range(2)]
    vG = R.a(2, 2)
    vN = R.a()
    vGA = R.a()
    vSTA = R.a()
    vPA = R.a()
    vST = R.a(4, 4)
    vONE = R.a(4, 4)
    aCS = [R.a(4, 4) for i in range(NT)]
    fA = [[R.a(4, 4) for i in range(NT)] for b in range(2)]
    fB = [[R.a(4, 4) for u in range(NU)] for b in range(2)]
    fS = R.a(4, 4)
    acc = [[R.a(16, 4) for u in range(NU)] for i in range(NT)]
    L = 1

    e.lab(f"{pfx}_{cls}")
    e.c(f"---------------- setup {cls} ----------------")
    if ffn:
        e(f"s_and_b32 s{sA}, s{sW}, 1")
        e(f"s_lshr_b32 s{sB}, s{sW}, 1")
    else:
        e(f"s_and_b32 s{sA}, s{sW}, 3")
        e(f"s_lshr_b32 s{sB}, s{sW}, 2")
    if ffn:
        e(f"s_and_b32 s{sT0}, s{sW}, 3")
        e(f"s_lshr_b32 s{sT1}, s{sW}, 2")
        e(f"s_sub_u32 s{sT2}, s{sROLE}, 6")
        e(f"s_mul_i32 s{sT2}, s{sT2}, 384")
        e(f"s_mul_i32 s{sT3}, s{sT0}, {8*GROW}")
        e(f"s_add_u32 s{sT2}, s{sT2}, s{sT3}")
        e(f"s_lshl_b32 s{sT3}, s{sT1}, 2")
        e(f"s_mul_i32 s4, s{sT0}, 3072")
        e(f"s_mul_i32 s5, s{sT1}, 12288")
        e(f"s_add_u32 s{sWM0}, s4, s5")
        nper, magic = 24, 2731
        e(f"v_mov_b32 v{t[4]}, v{L}")
    else:
        e(f"s_mul_i32 s4, s{sW}, 3")
        e(f"s_lshl_b32 s5, s{sW}, 1")
        e(f"s_add_u32 s5, s5, 4")
        e(f"s_cmp_ge_u32 s{sW}, 4")
        e(f"s_cselect_b32 s4, s5, s4")
        e(f"s_lshl_b32 s{sWM0}, s4, 10")
        e(f"s_lshl_b32 s4, s4, 6")
        e(f"s_mul_i32 s{sT2}, s{sROLE}, 640")
        nper, magic = 40, 1639
        e(f"v_add_u32 v{t[4]}, s4, v{L}")
    e(f"s_mov_b32 s4, {magic}")
    e(f"s_mov_b32 s5, {GROW}")
    for i in range(3):
        e(f"v_add_u32 v{t[0]}, {64*i}, v{t[4]}")
        e(f"v_mul_lo_u32 v{t[1]}, v{t[0]}, s4")
        e(f"v_lshrrev_b32 v{t[1]}, 16, v{t[1]}")
        e(f"v_mul_u32_u24 v{t[2]}, {nper}, v{t[1]}")
        e(f"v_sub_u32 v{t[2]}, v{t[0]}, v{t[2]}")
        e(f"v_bfe_u32 v{t[3]}, v{t[1]}, 1, 1")
        if ffn:
            e(f"v_lshl_or_b32 v{t[3]}, v{t[3]}, 1, s{sT3}")
        else:
            e(f"v_lshlrev_b32 v{t[3]}, 2, v{t[3]}")
        e(f"v_xor_b32 v{t[2]}, v{t[2]}, v{t[3]}")
        e(f"v_mul_lo_u32 v{t[1]}, v{t[1]}, s5")
        e(f"v_lshl_add_u32 v{t[1]}, v{t[2]}, 4, v{t[1]}")
        e(f"v_add_u32 v{t[1]}, s{sT2}, v{t[1]}")
        e(f"v_subrev_u32 v{vWs[i]}, {1024*i}, v{t[1]}")
    e(f"s_lshl_b32 s4, s{sTB}, 7")
    e(f"s_lshl_b32 s5, s{sW}, 4")
    e(f"s_add_u32 s4, s4, s5")
    e(f"s_mul_i32 s4, s4, 1280")
    e(f"v_lshrrev_b32 v{t[0]}, 2, v{L}")
    e(f"v_bfe_u32 v{t[1]}, v{L}, 4, 2")
    e(f"v_and_b32 v{t[2]}, 3, v{L}")
    e(f"v_xor_b32 v{t[2]}, v{t[2]}, v{t[1]}")
    e(f"v_mul_u32_u24 v{t[0]}, 1280, v{t[0]}")
    e(f"v_lshl_add_u32 v{t[0]}, v{t[2]}, 4, v{t[0]}")
    e(f"v_add_u32 v{vXs}, s4, v{t[0]}")
    e(f"s_lshl_b32 s{sXM0}, s{sW}, 10")
    e(f"s_add_u32 s{sXM0}, s{sXM0}, {XR}")
    ROT = 4 if 'rot4' in EXP else 2
    if ROT == 2:
        e(f"s_lshr_b32 s6, s{sTB}, 3")
        e(f"s_mul_i32 s6, s6, 10")
        e(f"s_and_b32 s4, s{sTB}, 7")
        e(f"s_add_u32 s5, s4, 8")
        e(f"s_cmp_lt_u32 s4, 2")
        e(f"s_cselect_b32 s5, s5, 99")
    else:
        e(f"s_lshr_b32 s6, s{sTB}, 2")
        e(f"s_mul_i32 s6, s6, 5")
        e(f"s_and_b32 s4, s{sTB}, 3")
        e(f"s_cmp_eq_u32 s4, 0")
        e(f"s_cselect_b32 s5, 4, 99")
    e(f"s_mul_i32 s{sWso}, s6, {32*GROW}")
    e(f"s_lshl_b32 s{sXso}, s6, 6")
    nit0 = NSTG // RR - 1
    for sl in range(RR):
        e(f"s_mov_b32 s{sTRIG+sl}, 99")
        for pr in (4, 5):
            e(f"s_cmp_eq_u32 s{pr}, {sl}")
            e(f"s_cselect_b32 s{sTRIG+sl}, {nit0}, s{sTRIG+sl}")
            e(f"s_cmp_eq_u32 s{pr}, {sl+5}")
            e(f"s_cselect_b32 s{sTRIG+sl}, {nit0-1}, s{sTRIG+sl}")
    e(f"s_lshl_b32 s5, s{sROLE}, 4")
    e(f"s_add_u32 s4, s{sTB}, s5")
    e(f"s_mul_i32 s4, s4, 12")
    e(f"s_mul_i32 s5, s{sB}, {NT}")
    e(f"s_add_u32 s4, s4, s5")
    e(f"s_lshl_b32 s4, s4, 8")
    e(f"s_add_u32 s{sPOFF}, s4, {PCS_REL}")
    if ffn:
        e(f"s_cmp_eq_u32 s{sA}, 0")
        e(f"s_cselect_b32 s{sMINE}, 3, 4")
    else:
        e(f"s_lshl_b32 s{sMINE}, 1, s{sA}")
        e(f"s_cmp_eq_u32 s{sA}, 0")
        e(f"s_cselect_b32 s{sMINE}, 17, s{sMINE}")
    e("s_waitcnt lgkmcnt(0)")
    stamp(e, 0, True)
    stamp(e, 1)
    if 'rm2' in EXP and ffn:
        l0 = e.newlab("k1n")
        e(f"s_or_b32 s4, s2, s{sW}")
        e("s_cmp_lg_u32 s4, 0")
        e(f"s_cbranch_scc1 {l0}")
        srd(e, SRDD, S_DBG, 0, 256)
        e("s_memrealtime s[6:7]")
        e("s_waitcnt lgkmcnt(0)")
        e("s_or_b32 s6, s6, 1")
        e(f"v_mov_b32 v{t[0]}, s6")
        e("s_mov_b64 exec, 1")
        e(f"buffer_store_dword v{t[0]}, off, s[{SRDD}:{SRDD+3}], 0 sc1")
        e("s_mov_b64 exec, -1")
        e.lab(l0)
    srd(e, SRDX, S_XP, 0, X_SZ)
    if ffn:
        e(f"s_cmp_ge_u32 s{sW}, 4")
        e(f"s_cselect_b32 s{SRDW}, s{S_UP}, s{S_GATE}")
        e(f"s_cselect_b32 s{SRDW+1}, s{S_UP+1}, s{S_GATE+1}")
        e(f"s_mov_b32 s{SRDW+2}, {hex(WG_SZ)}")
        e(f"s_mov_b32 s{SRDW+3}, 0x00020000")
    else:
        srd(e, SRDW, S_WQKV, 0, WQKV_SZ)

    def dma_group(slot, var):
        nw = 3 if (ffn or var == 0) else 2
        hot = 'hot' in EXP
        it = [[f"s_add_u32 m0, s{sXM0}, {slot*XSLOT}", "s_nop 0",
               f"buffer_load_dwordx4 v{vXs}, s[{SRDX}:{SRDX+3}], s{sXso} offen lds"]]
        it.append([f"s_add_u32 m0, s{sWM0}, {slot*WSLOT}", f"s_add_u32 s{sXso}, s{sXso}, {0 if hot else 64}",
                   f"buffer_load_dwordx4 v{vWs[0]}, s[{SRDW}:{SRDW+3}], s{sWso} offen lds"])
        for i in range(1, nw):
            it.append([f"buffer_load_dwordx4 v{vWs[i]}, s[{SRDW}:{SRDW+3}], s{sWso} offen offset:{1024*i} lds"])
        it[-1] += [f"s_add_u32 s{sWso}, s{sWso}, {0 if hot else 32*GROW}",
                   f"s_cmp_eq_u32 s{sXso}, 1280",
                   f"s_cselect_b32 s{sXso}, 0, s{sXso}",
                   f"s_cselect_b32 s{sWso}, 0, s{sWso}"]
        return it

    def gsize(var):
        return 4 if (ffn or var == 0) else 3

    setup = []
    q = setup.append
    g, r4, c4, bb = t[0], t[1], t[2], t[3]
    q(f"v_lshrrev_b32 v{g}, 4, v{L}")
    q(f"v_bfe_u32 v{r4}, v{L}, 2, 2")
    q(f"v_and_b32 v{c4}, 3, v{L}")
    q(f"v_bfe_u32 v{bb}, v{L}, 3, 1")
    q(f"v_lshrrev_b32 v{t[4]}, 1, v{g}")
    q(f"v_lshl_add_u32 v{t[4]}, v{t[4]}, 3, v{r4}")
    q(f"v_mul_u32_u24 v{t[4]}, {WROW}, v{t[4]}")
    q(f"v_and_b32 v{t[5]}, 1, v{g}")
    if ffn:
        q(f"v_mul_u32_u24 v{t[6]}, 12288, v{t[5]}")
        q(f"v_add_u32 v{t[4]}, v{t[4]}, v{t[6]}")
        q(f"v_and_b32 v{t[6]}, 1, v{c4}")
        q(f"v_lshl_add_u32 v{t[4]}, v{t[6]}, 3, v{t[4]}")
        q(f"v_lshlrev_b32 v{t[5]}, 2, v{t[5]}")
        q(f"v_lshl_add_u32 v{t[5]}, v{bb}, 1, v{t[5]}")
        q(f"v_lshrrev_b32 v{t[6]}, 1, v{c4}")
        q(f"s_mul_i32 s4, s{sB}, 6")
        for i in range(3):
            q(f"v_add3_u32 v{t[7]}, v{t[6]}, s4, {2*i}")
            q(f"v_xor_b32 v{t[7]}, v{t[7]}, v{t[5]}")
            q(f"v_lshl_add_u32 v{vWA[0][i]}, v{t[7]}, 4, v{t[4]}")
            if nset > 1:
                q(f"v_add_u32 v{vWA[1][i]}, {3*WSLOT}, v{vWA[0][i]}")
    else:
        q(f"v_lshl_add_u32 v{t[4]}, v{t[5]}, 5, v{t[4]}")
        q(f"v_lshl_add_u32 v{t[4]}, v{c4}, 3, v{t[4]}")
        q(f"s_mul_i32 s4, s{sB}, 320")
        q(f"v_add_u32 v{t[4]}, s4, v{t[4]}")
        q(f"v_lshlrev_b32 v{t[5]}, 6, v{bb}")
        q(f"v_sub_u32 v{t[6]}, 0, v{t[5]}")
        q(f"s_cmp_eq_u32 s{sB}, 0")
        q(f"s_cselect_b64 vcc, -1, 0")
        q(f"v_cndmask_b32 v{t[7]}, v{t[6]}, v{t[5]}, vcc")
        q(f"v_add_u32 v{vWA[0][0]}, v{t[4]}, v{t[7]}")
        q(f"v_sub_u32 v{vWA[0][1]}, v{t[4]}, v{t[7]}")
        if nset > 1:
            q(f"v_add_u32 v{vWA[1][0]}, {3*WSLOT}, v{vWA[0][0]}")
            q(f"v_add_u32 v{vWA[1][1]}, {3*WSLOT}, v{vWA[0][1]}")
    q(f"v_and_b32 v{t[0]}, 31, v{L}")
    q(f"v_bfe_u32 v{t[1]}, v{L}, 2, 2")
    q(f"v_lshrrev_b32 v{t[2]}, 5, v{L}")
    q(f"s_lshl_b32 s5, s{sA}, {12 if ffn else 11}")
    q(f"s_add_u32 s5, s5, {XR}")
    q(f"v_lshlrev_b32 v{t[0]}, 6, v{t[0]}")
    q(f"v_add_u32 v{t[0]}, s5, v{t[0]}")
    q(f"v_xor_b32 v{t[3]}, v{t[2]}, v{t[1]}")
    q(f"v_lshl_add_u32 v{vXB[0]}, v{t[3]}, 4, v{t[0]}")
    q(f"v_xor_b32 v{vXB[1]}, 32, v{vXB[0]}")
    q(f"v_min_u32 v{t[0]}, {NCS-1}, v0")
    q(f"v_lshlrev_b32 v{vGA}, 2, v{t[0]}")
    q(f"v_and_b32 v{t[0]}, 127, v0")
    q(f"v_lshlrev_b32 v{vSTA}, 2, v{t[0]}")
    q(f"v_and_b32 v{t[0]}, 15, v{L}")
    q(f"v_lshlrev_b32 v{vPA}, 4, v{t[0]}")
    q(f"v_and_b32 v{t[0]}, 31, v{L}")
    q(f"v_mov_b32 v{t[1]}, 0x3f803f80")
    q(f"v_cmp_eq_u32 vcc, 0, v{t[0]}")
    q(f"v_cmp_eq_u32 s[4:5], 17, v{t[0]}")
    q("s_nop 1")
    q("s_or_b64 vcc, vcc, s[4:5]")
    q("s_nop 1")
    q(f"v_cndmask_b32 v{vONE}, 0, v{t[1]}, vcc")
    for r in range(1, 4):
        q(f"v_mov_b32 v{vONE+r}, v{vONE}")
    for i in range(NT):
        for r in range(4):
            q(f"v_mov_b32 v{aCS[i]+r}, 0")
    zero = [f"v_mov_b32 v{acc[i][u]+r}, 0" for i in range(NT) for u in range(NU) for r in range(16)]
    setup_all = setup + zero

    def reads_w(slot, p):
        out = []
        for i in range(NT):
            st_, sl = (1, slot - 3) if slot >= 3 else (0, slot)
            if ffn:
                base = vWA[st_][i]
                off = sl * WSLOT + p * 16 * WROW
            else:
                base = vWA[st_][i & 1]
                off = sl * WSLOT + p * 16 * WROW + 64 * i
            a = fA[p][i]
            out.append([f"ds_read_b64_tr_b16 v[{a}:{a+1}], v{base} offset:{off}",
                        f"ds_read_b64_tr_b16 v[{a+2}:{a+3}], v{base} offset:{off+4*WROW}"])
        return out

    def reads_x(slot, p):
        return [f"ds_read_b128 v[{fB[p][u]}:{fB[p][u]+3}], v{vXB[p]} offset:{slot*XSLOT+2048*u}" for u in range(NU)]

    def read_slots(slot, p):
        rw, rx = reads_w(slot, p), reads_x(slot, p)
        if ffn:
            return [rw[0], [rx[0]], [rx[1]], rw[1], rw[2], []]
        return [rw[0] + rx, rw[1], rw[2], rw[3], rw[4]]

    def mfmas(p):
        out = []
        for i in range(NT):
            for u in range(NU):
                a, b, c = fA[p][i], fB[p][u], acc[i][u]
                if cls == "v":
                    a, b = b, a
                out.append(f"v_mfma_f32_32x32x16_bf16 v[{c}:{c+15}], v[{a}:{a+3}], v[{b}:{b+3}], v[{c}:{c+15}]")
        return out

    NS = NT * NU

    def weave(ms, fl):
        out = []
        for i, m in enumerate(ms):
            out.append(m)
            if i < len(fl):
                out.extend(fl[i])
        return out

    def stage(n, slot, var, fifo, last_group, extra0=None, extra1=None, force_vm=None, mid=None, post=None):
        body = []
        G = gsize(var)
        fl = read_slots(slot, 1)
        fl = [list(x) for x in fl]
        if var == 1 and 'nodma' not in EXP:
            gid = None if n is None else n + RR - 2
            if gid is None or gid <= last_group:
                items = dma_group((slot - 2) % RR, var)
                for k_, it in enumerate(items):
                    fl[min(NS - 1, 1 + k_)] += it
                fifo.append((gid, len(items)))
        if extra0:
            fl = merge(fl, extra0)
            fifo.append(("cs", 2))
        body += weave(mfmas(0), fl)
        if mid: body += mid
        if n is None:
            vm = G * (RR - 3)
        else:
            vm = 0
            seen = False
            for gid, cnt in fifo:
                if seen: vm += cnt
                if gid == n + 1: seen = True
            assert seen or n == NSTG - 1
            if force_vm is not None: vm = force_vm
        if n is None or n < NSTG - 1:
            if 'nodma' not in EXP:
                body.append(f"s_waitcnt vmcnt({vm})")
            body.append("s_barrier")
        if post: body += post
        nslot = (slot + 1) % RR
        if n is None or n < NSTG - 1:
            fl = [list(x) for x in read_slots(nslot, 0)]
        else:
            fl = [[] for _ in range(NS)]
        if var == 0 and 'nodma' not in EXP:
            gid = None if n is None else n + RR - 1
            if gid is None or gid <= last_group:
                items = dma_group((slot - 1) % RR, var)
                for k_, it in enumerate(items):
                    fl[min(NS - 1, 1 + k_)] += it
                fifo.append((gid, len(items)))
        if extra1:
            fl = merge(fl, extra1)
        body += weave(mfmas(1), fl)
        return body

    gl_load = [f"v_lshlrev_b32 v{t[1]}, 1, v{vGA}",
               f"v_lshlrev_b32 v{t[2]}, 2, v{vSTA}",
               f"s_mul_i32 s4, s{sROLE}, {384*8}",
               f"s_lshl_b32 s5, s{sTB}, 11",
               f"s_add_u32 s5, s5, {STG_REL}",
               f"buffer_load_dwordx2 v[{vG}:{vG+1}], v{t[1]}, s[{SRDC}:{SRDC+3}], s4 offen sc1",
               f"buffer_load_dwordx4 v[{vST}:{vST+3}], v{t[2]}, s[{SRDC}:{SRDC+3}], s5 offen sc1"]
    gl_test = [f"v_cmp_ne_u32 vcc, s{sNONCE}, v{vG+1}",
               f"v_cmp_ne_u32 s[6:7], s{sNONCE}, v{vST+2}",
               "s_nop 1",
               "s_or_b64 vcc, vcc, s[6:7]"]

    for var in range(2):
        lv = f"{pfx}_{cls}_v{var}"
        if var == 0:
            e(f"s_cmp_ge_u32 s{sW}, 4")
            e(f"s_cbranch_scc1 {pfx}_{cls}_v1")
        else:
            e.lab(lv)
        ngp = RR - 1 if var == 0 else RR - 2
        chunks = [setup_all[k * len(setup_all) // ngp:(k + 1) * len(setup_all) // ngp] for k in range(ngp)]
        fifo = []
        for gi in range(ngp):
            for it in dma_group(gi, var):
                for x in it: e(x)
            fifo.append((gi, gsize(var)))
            for x in chunks[gi]: e(x)
        srd(e, SRDD, S_DBG, 0, 256)
        srd(e, SRDC, S_WS, CSG_OFF, CSG_SZ)
        vm0 = gsize(var) * (ngp - 1)
        e(f"s_waitcnt vmcnt({vm0})")
        e("s_barrier")
        if 'es' not in EXP: stamp(e, 2)
        pro = []
        rs0 = read_slots(0, 0)
        for x in rs0: pro += x
        pro, pend = autowait(pro, [])
        for x in pro: e(x)
        nit = NSTG // RR - 1
        e(f"s_mov_b32 s{sCNT}, {nit}")
        if var == 1 and 'noprio' not in EXP:
            e("s_setprio 1")
        loop = f"{pfx}_{cls}_loop{var}"
        e.lab(loop)
        body = []
        ff = []
        ool = []
        def cs_block(lab):
            b = [f"{lab}:", "s_waitcnt lgkmcnt(0)"]
            for i in range(NT):
                b += [f"s_bitcmp1_b32 s{sMINE}, {i}", f"s_cbranch_scc0 {lab}_s{i}"]
                for p in range(2):
                    b.append(f"v_mfma_f32_16x16x32_bf16 v[{aCS[i]}:{aCS[i]+3}], v[{vONE}:{vONE+3}], v[{fA[p][i]}:{fA[p][i]+3}], v[{aCS[i]}:{aCS[i]+3}]")
                b.append(f"{lab}_s{i}:")
            b.append(f"s_branch {lab}_back")
            return b
        DG0, DGI = 0, 1
        for x_ in EXP:
            if x_.startswith("dg0="): DG0 = int(x_[4:])
            if x_.startswith("dgi="): DGI = int(x_[4:])
        for st in range(RR):
            mid = post = ex0 = None
            lab = e.newlab("k1cs")
            mid = [f"s_cmp_eq_u32 s{sCNT}, s{sTRIG+st}", f"s_cbranch_scc1 {lab}", f"{lab}_back:"]
            ool += cs_block(lab)
            if st == 2:
                lab = e.newlab("k1nl")
                mid += [f"s_cmp_eq_u32 s{sCNT}, {nit}", f"s_cbranch_scc0 {lab}",
                        f"buffer_load_dword v{vN}, off, s[{SRDD}:{SRDD+3}], 0 sc1", f"{lab}:"]
            if st == 4:
                lab = e.newlab("k1pub")
                post = [f"s_cmp_eq_u32 s{sCNT}, {nit if 'rot4' in EXP else nit-1}", f"s_cbranch_scc1 {lab}", f"{lab}_back:"]
                ool += [f"{lab}:",
                        "s_nop 7",
                        f"s_mov_b32 s4, 200000",
                        f"{lab}_n:",
                        f"v_readfirstlane_b32 s{sNONCE}, v{vN}",
                        f"s_cmp_lg_u32 s{sNONCE}, 0",
                        f"s_cbranch_scc1 {lab}_ok",
                        "s_sleep 2",
                        f"buffer_load_dword v{vN}, off, s[{SRDD}:{SRDD+3}], 0 sc1",
                        "s_waitcnt vmcnt(0)",
                        "s_sub_u32 s4, s4, 1",
                        "s_cmp_lg_u32 s4, 0",
                        f"s_cbranch_scc1 {lab}_n",
                        f"{lab}_ok:",
                        "s_mov_b64 exec, 0xffff"]
                for i in range(NT):
                    ool += [f"s_bitcmp1_b32 s{sMINE}, {i}", f"s_cbranch_scc0 {lab}_s{i}",
                            f"v_mov_b32 v{aCS[i]+2}, s{sNONCE}",
                            f"v_mov_b32 v{aCS[i]+3}, s{sNONCE}",
                            f"buffer_store_dwordx4 v[{aCS[i]}:{aCS[i]+3}], v{vPA}, s[{SRDC}:{SRDC+3}], s{sPOFF} offen offset:{256*i} sc1",
                            f"{lab}_s{i}:"]
                ool += ["s_mov_b64 exec, -1", f"s_branch {lab}_back"]
            if 'dg' in EXP and var == 0 and st in (DG0, DG0 + 2):
                PER = 12 if ffn else 10
                lab = e.newlab("k1dg")
                assert post is None
                post = [f"s_cmp_eq_u32 s{sCNT}, {DGI}", f"s_cbranch_scc1 {lab}", f"{lab}_back:"]
                ld = [f"s_mul_i32 s5, s{sROLE}, {16*3072}",
                      f"s_add_u32 s5, s5, {PCS_REL}",
                      f"buffer_load_dwordx4 v[{vST}:{vST+3}], v{t[1]}, s[{SRDC}:{SRDC+3}], s5 offen sc1"]
                ool += [f"{lab}:", f"s_cmp_ge_u32 s{sW}, 3", f"s_cbranch_scc1 {lab}_back"]
                if st == DG0:
                    ool += [f"v_lshrrev_b32 v{t[0]}, 4, v{L}",
                            f"s_lshl_b32 s4, s{sW}, 2",
                            f"v_add_u32 v{t[0]}, s4, v{t[0]}",
                            f"v_min_u32 v{t[0]}, {PER-1}, v{t[0]}",
                            f"s_mul_i32 s4, s{sTB}, {PER}",
                            f"v_add_u32 v{t[0]}, s4, v{t[0]}",
                            f"v_and_b32 v{t[1]}, 15, v{L}",
                            f"v_mul_u32_u24 v{t[1]}, 3072, v{t[1]}",
                            f"v_lshl_add_u32 v{t[1]}, v{t[0]}, 4, v{t[1]}"] + ld
                else:
                    ool += ["s_mov_b32 s4, 200000",
                            f"{lab}_l:",
                            f"v_cmp_ne_u32 vcc, s{sNONCE}, v{vST+2}",
                            "s_nop 1",
                            f"s_cbranch_vccz {lab}_ok",
                            "s_sleep 2"] + ld + [
                            "s_waitcnt vmcnt(0)",
                            "s_sub_u32 s4, s4, 1",
                            "s_cmp_lg_u32 s4, 0",
                            f"s_cbranch_scc1 {lab}_l",
                            f"{lab}_ok:"]
                    for k_ in (8, 4, 2, 1):
                        ool += ["s_nop 1",
                                f"v_add_f32_dpp v{vST}, v{vST}, v{vST} row_ror:{k_} row_mask:0xf bank_mask:0xf",
                                f"v_add_f32_dpp v{vST+1}, v{vST+1}, v{vST+1} row_ror:{k_} row_mask:0xf bank_mask:0xf"]
                    ool += [f"v_lshrrev_b32 v{t[2]}, 4, v{t[0]}",
                            f"v_and_b32 v{t[3]}, 15, v{t[0]}",
                            f"v_lshlrev_b32 v{t[3]}, 3, v{t[3]}",
                            f"v_lshl_add_u32 v{t[3]}, v{t[2]}, 8, v{t[3]}",
                            f"v_mov_b32 v{vST+2}, v{vST+1}",
                            f"v_mov_b32 v{vST+1}, s{sNONCE}",
                            f"v_mov_b32 v{vST+3}, s{sNONCE}",
                            f"s_mul_i32 s4, s{sROLE}, {384*8}",
                            "s_mov_b32 exec_lo, 0x00010001",
                            "s_mov_b32 exec_hi, 0x00010001",
                            f"buffer_store_dwordx2 v[{vST}:{vST+1}], v{t[3]}, s[{SRDC}:{SRDC+3}], s4 offen sc1",
                            f"buffer_store_dwordx2 v[{vST+2}:{vST+3}], v{t[3]}, s[{SRDC}:{SRDC+3}], s4 offen offset:128 sc1",
                            "s_mov_b64 exec, -1"]
                ool += [f"s_branch {lab}_back"]
            body += stage(None, st, var, ff, 99, mid=mid, post=post)
        b1, pend1 = autowait(body, pend)
        b2, pend2 = autowait(body, pend1)
        assert b1 == b2, "loop waits not periodic"
        for x in b1: e(x)
        e(f"s_sub_u32 s{sCNT}, s{sCNT}, 1")
        e(f"s_cmp_lg_u32 s{sCNT}, 0")
        e(f"s_cbranch_scc1 {loop}")
        n0 = NSTG - RR
        hi_g = n0 + RR - 2 if var == 0 else n0 + RR - 3
        ff = [(g_, gsize(var)) for g_ in range(n0 + 1, hi_g + 1)]
        tail = []
        lretry, lback = e.newlab("k1retry"), e.newlab("k1back")
        for st in range(RR):
            n = n0 + st
            ex0 = ex1 = None
            fv = None
            if n == NSTG - 2:
                ex0 = [[] for _ in range(NS)]
                ex0[NS - 1] = gl_load
            if n == NSTG - 1:
                ex1 = [[] for _ in range(NS)]
                ex1[2] = ["s_waitcnt vmcnt(0)"] + gl_test + [
                          (f"s_cbranch_vccnz {lretry}" if 'nowait' not in EXP else "s_nop 0"),
                          f"{lback}:",
                          f"ds_write_b32 v{vGA}, v{vG} offset:{CSL}",
                          f"ds_write_b32 v{vSTA}, v{vST} offset:{RSL}",
                          f"ds_write_b32 v{vSTA}, v{vST+1} offset:{NML}"]
            sb = stage(n, st, var, ff, NSTG - 1, ex0, ex1, fv)
            tail += sb
        tl, pend3 = autowait(tail, pend1)
        for x in tl: e(x)
        e("s_waitcnt lgkmcnt(0)")
        e("s_barrier")
        if var == 0:
            e(f"s_branch {pfx}_{cls}_epi")
        ret = [f"{lretry}:", f"s_mov_b32 s{sCNT}, 200000", f"{lretry}_l:", "s_sleep 2"] + gl_load + [
            "s_waitcnt vmcnt(0)"] + gl_test + [
            f"s_cbranch_vccz {lback}",
            f"s_sub_u32 s{sCNT}, s{sCNT}, 1",
            f"s_cmp_lg_u32 s{sCNT}, 0",
            f"s_cbranch_scc1 {lretry}_l",
            f"s_branch {lback}"]
        if var == 0:
            for x in ret + ool: e(x)
        else:
            e(f"s_branch {pfx}_{cls}_epi")
            for x in ret + ool: e(x)

    e.lab(f"{pfx}_{cls}_epi")
    e("s_setprio 0")
    stamp(e, 3)
    e(f"v_and_b32 v{t[0]}, 31, v{L}")
    e(f"s_lshl_b32 s4, s{sA}, {6 if ffn else 5}")
    e(f"v_add_u32 v{t[0]}, s4, v{t[0]}")
    e(f"v_lshlrev_b32 v{t[0]}, 2, v{t[0]}")
    vNM = [R.a() for _ in range(NU)]
    vRS = [R.a() for _ in range(NU)]
    if cls != "v":
        for u in range(NU):
            e(f"ds_read_b32 v{vNM[u]}, v{t[0]} offset:{128*u+NML}")
            e(f"ds_read_b32 v{vRS[u]}, v{t[0]} offset:{128*u+RSL}")
    h = t[2]
    e(f"v_lshrrev_b32 v{h}, 5, v{L}")
    csa = t[3]
    e(f"s_mul_i32 s4, s{sB}, {NT*128}")
    e(f"v_lshlrev_b32 v{csa}, 4, v{h}")
    e(f"v_add_u32 v{csa}, s4, v{csa}")
    sc = store_sc
    frag0 = fA[0][0]
    nfr = (2 * NT + 2 * NU) * 4 + 4
    assert fS + 4 == frag0 + nfr
    if ffn:
        csr = [frag0, frag0 + 16, R.a(16, 4)]
        assert nfr >= 32
        for i in range(3):
            for a in range(4):
                e(f"ds_read_b128 v[{csr[i]+4*a}:{csr[i]+4*a+3}], v{csa} offset:{CSL+128*i+32*a}")
        srd(e, SRDO, S_WS, ACT_OFF, ACT_SZ)
        e(f"s_lshl_b32 s4, s{sTB}, 3")
        e(f"s_lshl_b32 s5, s{sA}, 2")
        e(f"s_add_u32 s4, s4, s5")
        e(f"s_mul_i32 s4, s4, {ACT_ROW}")
        e(f"s_sub_u32 s5, s{sROLE}, 6")
        e(f"s_mul_i32 s5, s5, 12")
        e(f"s_mul_i32 s6, s{sB}, 3")
        e(f"s_add_u32 s5, s5, s6")
        e(f"s_lshl_b32 s5, s5, 9")
        e(f"s_add_u32 s4, s4, s5")
        e(f"v_bfe_u32 v{t[4]}, v{L}, 4, 1")
        e(f"v_mul_u32_u24 v{t[4]}, {ACT_ROW}, v{t[4]}")
        e(f"v_lshl_add_u32 v{t[4]}, v{h}, 8, v{t[4]}")
        e(f"v_and_b32 v{t[5]}, 15, v{L}")
        e(f"v_lshl_add_u32 v{t[4]}, v{t[5]}, 4, v{t[4]}")
        e(f"v_add_u32 v{t[4]}, s4, v{t[4]}")
        e(f"s_mov_b32 s7, {2*ACT_ROW}")
        body = []
        for u in range(NU):
            body.append(f"v_mul_f32 v{vRS[u]}, v{vRS[u]}, v{vRS[u]}")
        for i in range(3):
            for u in range(2):
                c = acc[i][u]
                tm = csr[i]
                for r in range(16):
                    body.append(f"v_fmac_f32 v{c+r}, v{vNM[u]}, v{tm+r}")
                for r in range(8):
                    body.append(f"v_max_f32 v{c+r}, 0, v{c+r}")
                    body.append(f"v_mul_f32 v{c+8+r}, v{vRS[u]}, v{c+8+r}")
                for r in range(8):
                    body.append(f"v_mul_f32 v{c+r}, v{c+r}, v{c+8+r}")
                p_ = c + 8
                for r in range(4):
                    body.append(f"v_cvt_pk_bf16_f32 v{p_+r}, v{c+2*r}, v{c+2*r+1}")
                so = "0" if u == 0 else "s7"
                st_ = f"buffer_store_dwordx4 v[{p_}:{p_+3}], v{t[4]}, s[{SRDO}:{SRDO+3}], {so} offen offset:{512*i} {sc}"
                if "ek" in EXP:
                    lab = e.newlab("k1ds")
                    body += [f"s_cbranch_scc1 {lab}", st_, f"{lab}:"]
                    DEFER.append(st_)
                else:
                    body.append(st_)
        pend = [{vNM[0]}, {vRS[0]}, {vNM[1]}, {vRS[1]}] + [set(range(csr[i] + 4 * a, csr[i] + 4 * a + 4)) for i in range(3) for a in range(4)]
        e("s_waitcnt lgkmcnt(12)")
        pend = pend[4:]
        bl, _ = autowait(body, pend)
        if "ek" in EXP:
            e(f"s_cmp_eq_u32 s{sW}, 7")
        for x in bl: e(x)
    elif cls == "qk":
        nbuf = nfr // 16
        tm = [frag0 + 16 * k for k in range(2)]
        for i in range(2):
            for a in range(4):
                e(f"ds_read_b128 v[{tm[i]+4*a}:{tm[i]+4*a+3}], v{csa} offset:{CSL+128*i+32*a}")
        e(f"s_mov_b32 s6, {hex(QB_OFF)}")
        e(f"s_cmp_ge_u32 s{sROLE}, 2")
        e(f"s_cselect_b32 s4, {hex(KB_OFF)}, s6")
        e(f"s_cselect_b32 s5, 1.0, {hex(f2u(20**-0.5*1.4426950408889634))}")
        srd(e, SRDO, S_WS, "s4", QK_SZ)
        e(f"s_mov_b32 s31, s5")
        e(f"s_and_b32 s4, s{sROLE}, 1")
        e(f"s_lshl_b32 s4, s4, 3")
        e(f"s_lshl_b32 s5, s{sB}, 2")
        e(f"s_add_u32 s4, s4, s5")
        e(f"s_lshl_b32 s4, s4, 6")
        e(f"s_lshl_b32 s5, s{sTB}, 2")
        e(f"s_add_u32 s4, s4, s5")
        e(f"s_add_u32 s4, s4, s{sA}")
        e(f"s_mul_i32 s4, s4, 2560")
        e(f"v_lshlrev_b32 v{t[4]}, 4, v{L}")
        e(f"v_add_u32 v{t[4]}, s4, v{t[4]}")
        e(f"v_lshlrev_b32 v{t[5]}, 3, v{L}")
        e(f"v_add_u32 v{t[5]}, s4, v{t[5]}")
        e(f"v_add_u32 v{t[5]}, 2048, v{t[5]}")
        stg = R.a(40, 4)
        def dst(G):
            p, k = divmod(G, 5)
            base = stg + 10 * p
            return {0: base, 1: base + 2, 2: base + 8, 3: base + 4, 4: base + 6}[k]
        body = [f"v_mul_f32 v{vRS[0]}, s31, v{vRS[0]}"]
        for i in range(5):
            c = acc[i][0]
            tmc = tm[i & 1]
            for r in range(16):
                body.append(f"v_fmac_f32 v{c+r}, v{vNM[0]}, v{tmc+r}")
            if i + 2 < 5:
                for a in range(4):
                    body.append(f"ds_read_b128 v[{tmc+4*a}:{tmc+4*a+3}], v{csa} offset:{CSL+128*(i+2)+32*a}")
            for r in range(16):
                body.append(f"v_mul_f32 v{c+r}, v{vRS[0]}, v{c+r}")
            for a in range(4):
                G = 4 * i + a
                d = dst(G)
                body.append(f"v_cvt_pk_bf16_f32 v{d}, v{c+4*a}, v{c+4*a+1}")
                body.append(f"v_cvt_pk_bf16_f32 v{d+1}, v{c+4*a+2}, v{c+4*a+3}")
                p, k = divmod(G, 5)
                if k == 4:
                    base = stg + 10 * p
                    body.append(f"s_mov_b32 s7, {p*64*2560}")
                    body.append(f"buffer_store_dwordx4 v[{base}:{base+3}], v{t[4]}, s[{SRDO}:{SRDO+3}], s7 offen {sc}")
                    body.append(f"buffer_store_dwordx4 v[{base+4}:{base+7}], v{t[4]}, s[{SRDO}:{SRDO+3}], s7 offen offset:1024 {sc}")
                    body.append(f"buffer_store_dwordx2 v[{base+8}:{base+9}], v{t[5]}, s[{SRDO}:{SRDO+3}], s7 offen {sc}")
        pend = [{vNM[0]}, {vRS[0]}] + [set(range(tm[i] + 4 * a, tm[i] + 4 * a + 4)) for i in range(2) for a in range(4)]
        bl, _ = autowait(body, pend)
        for x in bl: e(x)
    else:
        srd(e, SRDO, S_WS, VB_OFF, VB_SZ)
        e(f"s_lshl_b32 s4, s{sA}, 7")
        e(f"v_lshlrev_b32 v{t[4]}, 4, v{h}")
        e(f"v_add_u32 v{t[4]}, s4, v{t[4]}")
        rsq = frag0
        nmq = rsq + 16
        assert nfr >= 32
        for a in range(4):
            e(f"ds_read_b128 v[{rsq+4*a}:{rsq+4*a+3}], v{t[4]} offset:{32*a+RSL}")
            e(f"ds_read_b128 v[{nmq+4*a}:{nmq+4*a+3}], v{t[4]} offset:{32*a+NML}")
        e(f"v_and_b32 v{t[1]}, 31, v{L}")
        e(f"s_mul_i32 s4, s{sB}, {NT*32}")
        e(f"v_add_u32 v{t[1]}, s4, v{t[1]}")
        e(f"v_lshlrev_b32 v{t[1]}, 2, v{t[1]}")
        csl = [R.a() for _ in range(5)]
        for i in range(5):
            e(f"ds_read_b32 v{csl[i]}, v{t[1]} offset:{CSL+128*i}")
        e(f"s_sub_u32 s4, s{sROLE}, 4")
        e(f"s_lshl_b32 s4, s4, 4")
        e(f"s_lshl_b32 s5, s{sB}, 3")
        e(f"s_add_u32 s4, s4, s5")
        e(f"s_lshl_b32 s4, s4, 6")
        e(f"s_lshl_b32 s5, s{sTB}, 2")
        e(f"s_add_u32 s4, s4, s5")
        e(f"s_add_u32 s4, s4, s{sA}")
        e(f"s_mul_i32 s4, s4, 1280")
        e(f"s_mov_b32 s5, 3277")
        e(f"s_mov_b32 s6, {64*1280}")
        va = [R.a() for _ in range(5)]
        for i in range(5):
            e(f"v_and_b32 v{t[5]}, 31, v{L}")
            e(f"v_add_u32 v{t[5]}, {32*i}, v{t[5]}")
            e(f"v_mul_lo_u32 v{t[6]}, v{t[5]}, s5")
            e(f"v_lshrrev_b32 v{t[6]}, 16, v{t[6]}")
            e(f"v_mul_u32_u24 v{t[7]}, 20, v{t[6]}")
            e(f"v_sub_u32 v{t[5]}, v{t[5]}, v{t[7]}")
            e(f"v_mul_lo_u32 v{t[6]}, v{t[6]}, s6")
            e(f"v_lshl_add_u32 v{t[6]}, v{t[5]}, 4, v{t[6]}")
            e(f"v_mul_u32_u24 v{t[7]}, 320, v{h}")
            e(f"v_add3_u32 v{va[i]}, v{t[6]}, v{t[7]}, s4")
        e("s_waitcnt lgkmcnt(0)")
        for i in range(5):
            c = acc[i][0]
            for r in range(16):
                e(f"v_fmac_f32 v{c+r}, v{nmq+r}, v{csl[i]}")
            for r in range(16):
                e(f"v_mul_f32 v{c+r}, v{rsq+r}, v{c+r}")
            for sidx in range(2):
                d = c + 8 * sidx
                for r in range(4):
                    e(f"v_cvt_pk_bf16_f32 v{d+r}, v{d+2*r}, v{d+2*r+1}")
                e(f"buffer_store_dwordx4 v[{d}:{d+3}], v{va[i]}, s[{SRDO}:{SRDO+3}], 0 offen offset:{640*sidx} {sc}")
    stamp(e, 7)
    if finish is None:
        e("s_waitcnt vmcnt(0)")
        stamp(e, 5)
        stamp(e, 6, True)
        stamp_dump(e, 8, 0, sW, S_WS)
        e("s_endpgm")
    else:
        finish(e, cls)
    return R.hi


def helper(e, store_sc="", finish=None, pfx="k1"):
    R = Regs(2, 256, "v")
    t = [R.a() for _ in range(6)]
    vSrc, vRd, vDst, vOff = R.a(), R.a(), R.a(), R.a()
    ac = R.a(8, 4)
    u_ = [R.a() for _ in range(4)]
    fr = [R.a(4, 4) for _ in range(5)]
    L = 1
    SRDA, SRDB, SRDS = 8, 12, 80
    sKS, sSO = 24, 25
    PART = 0
    BUF0 = 32768
    e.lab(f"{pfx}_helper")
    e(f"v_lshlrev_b32 v{vSrc}, 4, v{L}")
    e(f"v_lshrrev_b32 v{t[0]}, 5, v{L}")
    e(f"v_bfe_u32 v{t[1]}, v{L}, 4, 1")
    e(f"v_bfe_u32 v{t[2]}, v{L}, 2, 2")
    e(f"v_lshl_add_u32 v{t[2]}, v{t[1]}, 2, v{t[2]}")
    e(f"v_lshl_add_u32 v{t[2]}, v{t[0]}, 4, v{t[2]}")
    e(f"v_mul_u32_u24 v{t[2]}, 1280, v{t[2]}")
    e(f"v_and_b32 v{t[3]}, 3, v{L}")
    e(f"v_mul_u32_u24 v{t[3]}, 40, v{t[3]}")
    e(f"s_mul_i32 s4, s{sW}, 160")
    e(f"s_add_u32 s4, s4, {BUF0}")
    e(f"v_add3_u32 v{vRd}, v{t[2]}, v{t[3]}, s4")
    e(f"s_mul_i32 s4, s{sW}, {W3_CB}")
    e(f"v_add_u32 v{vDst}, s4, v{vSrc}")
    for r in range(8):
        e(f"v_mov_b32 v{ac+r}, 0")
    e("s_waitcnt lgkmcnt(0)")
    stamp(e, 0, True)
    stamp(e, 1)
    srd(e, SRDA, S_DOWN, 0, WD_SZ)
    srd(e, SRDB, S_WO, 0, WO_SZ)
    srd(e, SRDO, S_WS, W3_OFF, W3_SZ)
    srd(e, SRDD, S_DBG, 0, 256)
    srd(e, SRDC, S_WS, CSG_OFF, CSG_SZ)
    l0 = e.newlab("k1n")
    e(f"s_or_b32 s4, s2, s{sW}")
    e("s_cmp_lg_u32 s4, 0")
    e(f"s_cbranch_scc1 {l0}")
    e("s_memrealtime s[6:7]")
    e("s_waitcnt lgkmcnt(0)")
    e("s_or_b32 s6, s6, 1")
    e(f"v_mov_b32 v{t[0]}, s6")
    e("s_mov_b64 exec, 1")
    e(f"buffer_store_dword v{t[0]}, off, s[{SRDD}:{SRDD+3}], 0 sc1")
    e("s_mov_b64 exec, -1")
    e.lab(l0)

    def w3_dma(j):
        b = BUF0 + (j % 3) * 40960
        lab = e.newlab("w3")
        e(f"s_add_u32 s{sKS}, s{sTB}, {16*j}")
        e(f"s_mul_i32 m0, s{sW}, 5120")
        e(f"s_add_u32 m0, m0, {b}")
        def issue(sr):
            for i in range(4):
                e(f"buffer_load_dwordx4 v{vSrc}, s[{sr}:{sr+3}], s{sSO} offen offset:{1024*i} lds")
            e(f"s_add_u32 s{sSO}, s{sSO}, 4096")
            e(f"s_add_u32 m0, m0, 4096")
            e("s_nop 0")
            e(f"buffer_load_dwordx4 v{vSrc}, s[{sr}:{sr+3}], s{sSO} offen lds")
        if j >= 3:
            e(f"s_cmp_ge_u32 s{sKS}, 54")
            e(f"s_cbranch_scc1 {lab}_o")
        if j <= 3:
            e(f"s_lshl_b32 s4, s{sKS}, 5")
            e(f"s_lshl_b32 s5, s{sW}, 2")
            e(f"s_add_u32 s4, s4, s5")
            e(f"s_mul_i32 s{sSO}, s4, 1280")
            issue(SRDA)
        if j >= 3:
            e(f"s_branch {lab}_go")
            e.lab(f"{lab}_o")
            e(f"s_cmp_ge_u32 s{sKS}, 70")
            e(f"s_cbranch_scc1 {lab}_x")
            e(f"s_sub_u32 s4, s{sKS}, 54")
            e(f"s_mul_i32 s4, s4, 40")
            e(f"s_lshr_b32 s5, s{sW}, 2")
            e(f"s_mul_i32 s5, s5, 20")
            e(f"s_add_u32 s4, s4, s5")
            e(f"s_and_b32 s5, s{sW}, 3")
            e(f"s_lshl_b32 s5, s5, 2")
            e(f"s_add_u32 s4, s4, s5")
            e(f"s_branch {lab}_wo")
            e.lab(f"{lab}_x")
            e(f"s_sub_u32 s4, s{sKS}, 70")
            e(f"s_lshl_b32 s4, s4, 3")
            e(f"s_lshr_b32 s5, s{sW}, 2")
            e(f"s_lshl_b32 s5, s5, 2")
            e(f"s_add_u32 s4, s4, s5")
            e(f"s_and_b32 s5, s{sW}, 1")
            e(f"s_lshl_b32 s5, s5, 1")
            e(f"s_add_u32 s4, s4, s5")
            e(f"s_bfe_u32 s5, s{sW}, 0x10001")
            e(f"s_add_u32 s4, s4, s5")
            e(f"s_mul_i32 s4, s4, 20")
            e(f"s_add_u32 s4, s4, 16")
            e.lab(f"{lab}_wo")
            e(f"s_mul_i32 s{sSO}, s4, 1280")
            issue(SRDB)
            e.lab(f"{lab}_go")

    def repack_rd(j):
        off = (j % 3) * 40960
        e(f"s_mov_b32 s4, {off}")
        e(f"v_add_u32 v{t[0]}, s4, v{vRd}")
        for c5 in range(5):
            e(f"ds_read_b64_tr_b16 v[{fr[c5]}:{fr[c5]+1}], v{t[0]} offset:{8*c5}")
            e(f"ds_read_b64_tr_b16 v[{fr[c5]+2}:{fr[c5]+3}], v{t[0]} offset:{8*c5+8*1280}")
        e("s_waitcnt lgkmcnt(0)")
        e("s_barrier")

    def repack_st(j):
        e(f"s_add_u32 s4, s{sTB}, {16*j}")
        e(f"s_mul_i32 s7, s4, 5120")
        for c5 in range(4):
            e(f"buffer_store_dwordx4 v[{fr[c5]}:{fr[c5]+3}], v{vDst}, s[{SRDO}:{SRDO+3}], s7 offen offset:{1024*c5} {store_sc}")
        e(f"s_add_u32 s7, s7, 4096")
        e(f"buffer_store_dwordx4 v[{fr[4]}:{fr[4]+3}], v{vDst}, s[{SRDO}:{SRDO+3}], s7 offen {store_sc}")

    def repack(j):
        repack_rd(j)
        repack_st(j)

    HS = 'hs' in EXP
    for j in range(1 if HS else 3):
        w3_dma(j)
    xb = R.a(80, 4)
    srd(e, SRDS, S_XP, 0, X_SZ)
    e(f"s_lshl_b32 s4, s{sTB}, 7")
    e(f"s_lshl_b32 s5, s{sW}, 4")
    e(f"s_add_u32 s4, s4, s5")
    e(f"s_mul_i32 s4, s4, 1280")
    e(f"v_lshrrev_b32 v{t[0]}, 2, v{L}")
    e(f"v_mul_u32_u24 v{t[0]}, 1280, v{t[0]}")
    e(f"v_and_b32 v{t[1]}, 3, v{L}")
    e(f"v_lshl_add_u32 v{vOff}, v{t[1]}, 4, v{t[0]}")
    for j in range(20):
        e(f"buffer_load_dwordx4 v[{xb+4*j}:{xb+4*j+3}], v{vOff}, s[{SRDS}:{SRDS+3}], s4 offen offset:{64*j}")
    ln = e.newlab("csn")
    if HS:
        w3_dma(1)
        w3_dma(2)
        e("s_waitcnt vmcnt(30)")
        e("s_barrier")
        e(f"buffer_load_dword v{t[5]}, off, s[{SRDD}:{SRDD+3}], 0 sc1")
        repack(0)
        e("s_waitcnt vmcnt(16)")
        if "es" not in EXP: stamp(e, 2)
    else:
        e(f"s_mov_b32 s{sCNT}, 200000")
        e.lab(ln)
        e(f"buffer_load_dword v{t[5]}, off, s[{SRDD}:{SRDD+3}], 0 sc1")
        e("s_waitcnt vmcnt(0)")
        e(f"v_readfirstlane_b32 s{sNONCE}, v{t[5]}")
        e(f"s_cmp_lg_u32 s{sNONCE}, 0")
        e(f"s_cbranch_scc1 {ln}_ok")
        e("s_sleep 2")
        e(f"s_sub_u32 s{sCNT}, s{sCNT}, 1")
        e(f"s_cmp_lg_u32 s{sCNT}, 0")
        e(f"s_cbranch_scc1 {ln}")
        e.lab(f"{ln}_ok")
        if "es" not in EXP: stamp(e, 2)
    first = True
    for d in range(80):
        a_, b_ = u_[2 * (d & 1)], u_[2 * (d & 1) + 1]
        e(f"v_lshlrev_b32 v{a_}, 16, v{xb+d}")
        e(f"v_and_b32 v{b_}, s{sMASK}, v{xb+d}")
        k = 2 * (d & 1)
        e(f"v_add_f32 v{ac+k}, v{ac+k}, v{a_}")
        e(f"v_add_f32 v{ac+k+1}, v{ac+k+1}, v{b_}")
        e(f"v_fmac_f32 v{ac+4+k}, v{a_}, v{a_}")
        e(f"v_fmac_f32 v{ac+4+k+1}, v{b_}, v{b_}")
    e(f"v_add_f32 v{ac}, v{ac}, v{ac+1}")
    e(f"v_add_f32 v{ac+2}, v{ac+2}, v{ac+3}")
    e(f"v_add_f32 v{ac+4}, v{ac+4}, v{ac+5}")
    e(f"v_add_f32 v{ac+6}, v{ac+6}, v{ac+7}")
    e(f"v_add_f32 v{ac}, v{ac}, v{ac+2}")
    e(f"v_add_f32 v{ac+4}, v{ac+4}, v{ac+6}")
    e(f"s_mov_b32 s4, {hex(f2u(1.0/640))}")
    e(f"s_mov_b32 s5, {hex(f2u(1e-5))}")
    for qp in ("[1,0,3,2]", "[2,3,0,1]"):
        e("s_nop 1")
        e(f"v_add_f32_dpp v{ac}, v{ac}, v{ac} quad_perm:{qp} row_mask:0xf bank_mask:0xf")
        e(f"v_add_f32_dpp v{ac+4}, v{ac+4}, v{ac+4} quad_perm:{qp} row_mask:0xf bank_mask:0xf")
    e("s_nop 0")
    e(f"v_mul_f32 v{ac+1}, s4, v{ac}")
    e(f"v_mul_f32 v{ac+4}, s4, v{ac+4}")
    e(f"v_fma_f32 v{ac+4}, -v{ac+1}, v{ac+1}, v{ac+4}")
    e(f"v_max_f32 v{ac+4}, 0, v{ac+4}")
    e(f"v_add_f32 v{ac+4}, s5, v{ac+4}")
    e(f"v_rsq_f32 v{ac}, v{ac+4}")
    e(f"v_sub_f32 v{ac+1}, 0, v{ac+1}")
    if HS:
        e(f"s_mov_b32 s{sCNT}, 200000")
        e("s_waitcnt vmcnt(5)")
        e.lab(ln)
        e(f"v_readfirstlane_b32 s{sNONCE}, v{t[5]}")
        e(f"s_cmp_lg_u32 s{sNONCE}, 0")
        e(f"s_cbranch_scc1 {ln}_ok")
        e("s_sleep 2")
        e(f"buffer_load_dword v{t[5]}, off, s[{SRDD}:{SRDD+3}], 0 sc1")
        e("s_waitcnt vmcnt(0)")
        e(f"s_sub_u32 s{sCNT}, s{sCNT}, 1")
        e(f"s_cmp_lg_u32 s{sCNT}, 0")
        e(f"s_cbranch_scc1 {ln}")
        e.lab(f"{ln}_ok")
    e(f"v_mov_b32 v{ac+2}, s{sNONCE}")
    e(f"v_mov_b32 v{ac+3}, s{sNONCE}")
    e(f"v_lshrrev_b32 v{t[0]}, 2, v{L}")
    e(f"v_lshlrev_b32 v{t[0]}, 4, v{t[0]}")
    e(f"s_lshl_b32 s4, s{sTB}, 11")
    e(f"s_lshl_b32 s5, s{sW}, 8")
    e(f"s_add_u32 s4, s4, s5")
    e(f"s_add_u32 s4, s4, {STG_REL}")
    e("s_mov_b32 exec_lo, 0x11111111")
    e("s_mov_b32 exec_hi, 0x11111111")
    e(f"buffer_store_dwordx4 v[{ac}:{ac+3}], v{t[0]}, s[{SRDC}:{SRDC+3}], s4 offen sc1")
    e("s_mov_b64 exec, -1")
    stamp(e, 3)
    e("s_barrier")
    if not HS:
        repack(0)
        w3_dma(3)
    repack(1)
    if HS:
        w3_dma(3)
    l4 = e.newlab("w3s")
    e(f"s_cmp_ge_u32 s{sTB}, 10")
    e(f"s_cbranch_scc1 {l4}")
    w3_dma(4)
    e.lab(l4)
    if HS:
        repack_rd(2)
    else:
        repack(2)
    stamp(e, 4)
    lg = e.newlab("csg")
    lskip = f"{lg}_skip" if HS else f"{lg}_end"
    if 'dg' in EXP:
        assert HS
        e(f"s_branch {lskip}")
    e(f"s_cmp_eq_u32 s{sTB}, 15")
    e(f"s_cbranch_scc1 {lskip}")
    e(f"s_cmp_ge_u32 s{sW}, 3")
    e(f"s_cbranch_scc1 {lskip}")
    e(f"s_mov_b32 s5, 159")
    e(f"s_cmp_lt_u32 s{sTB}, 6")
    e(f"s_cselect_b32 s4, s5, 191")
    e(f"v_min_u32 v{t[0]}, s4, v0")
    e(f"v_lshlrev_b32 v{t[1]}, 4, v{t[0]}")
    e(f"s_mov_b32 s{sCNT}, 200000")
    def gather():
        e(f"s_mul_i32 s4, s{sTB}, {16*3072}")
        e(f"s_add_u32 s4, s4, {PCS_REL}")
        for u in range(16):
            e(f"buffer_load_dwordx4 v[{xb+4*u}:{xb+4*u+3}], v{t[1]}, s[{SRDC}:{SRDC+3}], s4 offen sc1")
            if u < 15:
                e(f"s_add_u32 s4, s4, 3072")
    if HS:
        gather()
        repack_st(2)
        e("s_waitcnt vmcnt(5)")
        e(f"s_branch {lg}_chk")
    e.lab(lg)
    gather()
    e("s_waitcnt vmcnt(0)")
    e.lab(f"{lg}_chk")
    e(f"v_xor_b32 v{t[2]}, s{sNONCE}, v{xb+2}")
    for u in range(1, 16):
        e(f"v_xor_b32 v{t[3]}, s{sNONCE}, v{xb+4*u+2}")
        e(f"v_or_b32 v{t[2]}, v{t[2]}, v{t[3]}")
    e(f"v_cmp_ne_u32 vcc, 0, v{t[2]}")
    e("s_nop 1")
    e(f"s_cbranch_vccz {lg}_ok")
    e("s_sleep 4")
    e(f"s_sub_u32 s{sCNT}, s{sCNT}, 1")
    e(f"s_cmp_lg_u32 s{sCNT}, 0")
    e(f"s_cbranch_scc1 {lg}")
    e.lab(f"{lg}_ok")
    for u in range(1, 16):
        e(f"v_add_f32 v{xb}, v{xb}, v{xb+4*u}")
        e(f"v_add_f32 v{xb+1}, v{xb+1}, v{xb+4*u+1}")
    e(f"v_mov_b32 v{xb+2}, v{xb+1}")
    e(f"v_mov_b32 v{xb+1}, s{sNONCE}")
    e(f"v_mov_b32 v{xb+3}, s{sNONCE}")
    e(f"v_lshrrev_b32 v{t[2]}, 4, v{t[0]}")
    e(f"v_and_b32 v{t[3]}, 15, v{t[0]}")
    e(f"v_lshlrev_b32 v{t[3]}, 3, v{t[3]}")
    e(f"v_lshl_add_u32 v{t[3]}, v{t[2]}, 8, v{t[3]}")
    e(f"s_mul_i32 s4, s{sTB}, {384*8}")
    e(f"buffer_store_dwordx2 v[{xb}:{xb+1}], v{t[3]}, s[{SRDC}:{SRDC+3}], s4 offen sc1")
    e(f"buffer_store_dwordx2 v[{xb+2}:{xb+3}], v{t[3]}, s[{SRDC}:{SRDC+3}], s4 offen offset:128 sc1")
    if HS:
        e(f"s_branch {lg}_end")
        e.lab(lskip)
        repack_st(2)
    e.lab(f"{lg}_end")
    lend = f"{pfx}_h_end"
    e("s_waitcnt vmcnt(%d)" % (5 if HS else 0))
    e("s_barrier")
    repack(3)
    e(f"s_cmp_ge_u32 s{sTB}, 10")
    e(f"s_cbranch_scc1 {lend}")
    repack(4)
    e.lab(lend)
    stamp(e, 7)
    if finish is None:
        e("s_waitcnt vmcnt(0)")
        stamp(e, 5)
        stamp(e, 6, True)
        stamp_dump(e, 8, 0, sW, S_WS)
        e("s_endpgm")
    else:
        finish(e, "helper")
    return R.hi


def gen_k1(e, name, store_sc=""):
    e.l.append(kernel_header(name))
    prologue(e)
    hi = 0
    hi = max(hi, gemm(e, "qk", store_sc))
    hi = max(hi, gemm(e, "v", store_sc))
    hi = max(hi, gemm(e, "ffn", store_sc))
    hi = max(hi, helper(e, store_sc))
    e.lab("k1_exit")
    e("s_endpgm")
    return hi
```

```python
from common import *
import struct

def f2u(x):
    return struct.unpack("<I", struct.pack("<f", x))[0]

R_RING = 5
XSLOT = 8192
XR = 122880
P1_LDS = XR + R_RING * XSLOT
CSL = 0
RSL = 1536
NML = 2048

CSG_OFF = 0x1800000
STG_REL = 0x10000
PCS_REL = 0x20000
CSG_SZ = 0x100000

S_XP, S_WQKV, S_WO, S_GATE, S_UP, S_DOWN, S_OUT, S_DBG, S_WS = 40, 42, 44, 48, 50, 52, 54, 56, 58
SRDX, SRDW, SRDO = 8, 12, 16
sTB, sROLE, sW, sCNT, sWso, sXso, sWM0, sXM0 = 20, 21, 22, 23, 24, 25, 27, 28
sNONCE = 29
sT0, sT1, sT2, sT3 = 32, 33, 34, 35
sA, sB = 36, 37
sMASK = 39
sTRIG = 60
sMINE, sPOFF = 26, 30
SRDC, SRDD = 72, 76
EXP = set()
DEFER = []


def load_ptrs(e):
    e("s_load_dwordx16 s[40:55], s[0:1], 0")
    e("s_load_dwordx4 s[56:59], s[0:1], 64")


def prologue(e, pfx="k1"):
    import common
    if common.PROF and 'es' in EXP:
        e("s_memrealtime s[100:101]")
        e("s_waitcnt lgkmcnt(0)")
        e("s_mov_b32 s86, s100")
    e("s_cmp_ge_u32 s2, 256")
    e(f"s_cbranch_scc1 {pfx}_exit")
    load_ptrs(e)
    e("v_and_b32 v1, 63, v0")
    e("v_lshrrev_b32 v2, 6, v0")
    e("s_and_b32 s3, s2, 7")
    e("s_lshr_b32 s4, s2, 3")
    e(f"v_readfirstlane_b32 s{sW}, v2")
    e("s_and_b32 s5, s3, 1")
    e("s_lshl_b32 s5, s5, 3")
    e("s_and_b32 s6, s4, 7")
    e(f"s_add_u32 s{sTB}, s5, s6")
    e("s_lshr_b32 s5, s3, 1")
    e("s_lshl_b32 s5, s5, 2")
    e("s_lshr_b32 s6, s4, 3")
    if 'rm2' in EXP and 'rm3' not in EXP:
        e("s_lshr_b32 s7, s3, 2")
        e("s_lshl_b32 s7, s7, 2")
        e("s_xor_b32 s5, s5, s7")
    e(f"s_add_u32 s{sROLE}, s5, s6")
    e(f"s_add_u32 s{sROLE}, s{sROLE}, {6 if 'rm2' in EXP else 15}")
    e(f"s_and_b32 s{sROLE}, s{sROLE}, 15")
    e(f"s_mov_b32 s{sMASK}, 0xffff0000")
    e(f"s_cmp_eq_u32 s{sROLE}, 15")
    e(f"s_cbranch_scc1 {pfx}_helper")
    e(f"s_cmp_ge_u32 s{sROLE}, 6")
    e(f"s_cbranch_scc1 {pfx}_ffn")
    e(f"s_cmp_ge_u32 s{sROLE}, 4")
    e(f"s_cbranch_scc1 {pfx}_v")
    e(f"s_branch {pfx}_qk")


def gemm(e, cls, store_sc="", finish=None, pfx="k1"):
    ffn = cls == "ffn"
    RR = R_RING
    NSTG = 20
    NT = 3 if ffn else 5
    NU = 2 if ffn else 1
    WSLOT = 24576 if ffn else 20480
    WROW = 384 if ffn else 640
    GROW = 3456 if ffn else 3840
    NCS = 384 if ffn else 320
    R = Regs(2, 256, "v")
    t = [R.a() for _ in range(8)]
    vWs = [R.a() for _ in range(3)]
    vXs = R.a()
    nset = 2 if RR > 3 else 1
    NWB = 3 if ffn else 2
    vWA = [[R.a() for i in range(NWB)] for st in range(nset)]
    vXB = [R.a() for _ in range(2)]
    vG = R.a(2, 2)
    vN = R.a()
    vGA = R.a()
    vSTA = R.a()
    vPA = R.a()
    vST = R.a(4, 4)
    vONE = R.a(4, 4)
    aCS = [R.a(4, 4) for i in range(NT)]
    fA = [[R.a(4, 4) for i in range(NT)] for b in range(2)]
    fB = [[R.a(4, 4) for u in range(NU)] for b in range(2)]
    fS = R.a(4, 4)
    acc = [[R.a(16, 4) for u in range(NU)] for i in range(NT)]
    L = 1

    e.lab(f"{pfx}_{cls}")
    e.c(f"---------------- setup {cls} ----------------")
    if ffn:
        e(f"s_and_b32 s{sA}, s{sW}, 1")
        e(f"s_lshr_b32 s{sB}, s{sW}, 1")
    else:
        e(f"s_and_b32 s{sA}, s{sW}, 3")
        e(f"s_lshr_b32 s{sB}, s{sW}, 2")
    if ffn:
        e(f"s_and_b32 s{sT0}, s{sW}, 3")
        e(f"s_lshr_b32 s{sT1}, s{sW}, 2")
        e(f"s_sub_u32 s{sT2}, s{sROLE}, 6")
        e(f"s_mul_i32 s{sT2}, s{sT2}, 384")
        e(f"s_mul_i32 s{sT3}, s{sT0}, {8*GROW}")
        e(f"s_add_u32 s{sT2}, s{sT2}, s{sT3}")
        e(f"s_lshl_b32 s{sT3}, s{sT1}, 2")
        e(f"s_mul_i32 s4, s{sT0}, 3072")
        e(f"s_mul_i32 s5, s{sT1}, 12288")
        e(f"s_add_u32 s{sWM0}, s4, s5")
        nper, magic = 24, 2731
        e(f"v_mov_b32 v{t[4]}, v{L}")
    else:
        e(f"s_mul_i32 s4, s{sW}, 3")
        e(f"s_lshl_b32 s5, s{sW}, 1")
        e(f"s_add_u32 s5, s5, 4")
        e(f"s_cmp_ge_u32 s{sW}, 4")
        e(f"s_cselect_b32 s4, s5, s4")
        e(f"s_lshl_b32 s{sWM0}, s4, 10")
        e(f"s_lshl_b32 s4, s4, 6")
        e(f"s_mul_i32 s{sT2}, s{sROLE}, 640")
        nper, magic = 40, 1639
        e(f"v_add_u32 v{t[4]}, s4, v{L}")
    e(f"s_mov_b32 s4, {magic}")
    e(f"s_mov_b32 s5, {GROW}")
    for i in range(3):
        e(f"v_add_u32 v{t[0]}, {64*i}, v{t[4]}")
        e(f"v_mul_lo_u32 v{t[1]}, v{t[0]}, s4")
        e(f"v_lshrrev_b32 v{t[1]}, 16, v{t[1]}")
        e(f"v_mul_u32_u24 v{t[2]}, {nper}, v{t[1]}")
        e(f"v_sub_u32 v{t[2]}, v{t[0]}, v{t[2]}")
        e(f"v_bfe_u32 v{t[3]}, v{t[1]}, 1, 1")
        if ffn:
            e(f"v_lshl_or_b32 v{t[3]}, v{t[3]}, 1, s{sT3}")
        else:
            e(f"v_lshlrev_b32 v{t[3]}, 2, v{t[3]}")
        e(f"v_xor_b32 v{t[2]}, v{t[2]}, v{t[3]}")
        e(f"v_mul_lo_u32 v{t[1]}, v{t[1]}, s5")
        e(f"v_lshl_add_u32 v{t[1]}, v{t[2]}, 4, v{t[1]}")
        e(f"v_add_u32 v{t[1]}, s{sT2}, v{t[1]}")
        e(f"v_subrev_u32 v{vWs[i]}, {1024*i}, v{t[1]}")
    e(f"s_lshl_b32 s4, s{sTB}, 7")
    e(f"s_lshl_b32 s5, s{sW}, 4")
    e(f"s_add_u32 s4, s4, s5")
    e(f"s_mul_i32 s4, s4, 1280")
    e(f"v_lshrrev_b32 v{t[0]}, 2, v{L}")
    e(f"v_bfe_u32 v{t[1]}, v{L}, 4, 2")
    e(f"v_and_b32 v{t[2]}, 3, v{L}")
    e(f"v_xor_b32 v{t[2]}, v{t[2]}, v{t[1]}")
    e(f"v_mul_u32_u24 v{t[0]}, 1280, v{t[0]}")
    e(f"v_lshl_add_u32 v{t[0]}, v{t[2]}, 4, v{t[0]}")
    e(f"v_add_u32 v{vXs}, s4, v{t[0]}")
    e(f"s_lshl_b32 s{sXM0}, s{sW}, 10")
    e(f"s_add_u32 s{sXM0}, s{sXM0}, {XR}")
    ROT = 4 if 'rot4' in EXP else 2
    if ROT == 2:
        e(f"s_lshr_b32 s6, s{sTB}, 3")
        e(f"s_mul_i32 s6, s6, 10")
        e(f"s_and_b32 s4, s{sTB}, 7")
        e(f"s_add_u32 s5, s4, 8")
        e(f"s_cmp_lt_u32 s4, 2")
        e(f"s_cselect_b32 s5, s5, 99")
    else:
        e(f"s_lshr_b32 s6, s{sTB}, 2")
        e(f"s_mul_i32 s6, s6, 5")
        e(f"s_and_b32 s4, s{sTB}, 3")
        e(f"s_cmp_eq_u32 s4, 0")
        e(f"s_cselect_b32 s5, 4, 99")
    e(f"s_mul_i32 s{sWso}, s6, {32*GROW}")
    e(f"s_lshl_b32 s{sXso}, s6, 6")
    nit0 = NSTG // RR - 1
    for sl in range(RR):
        e(f"s_mov_b32 s{sTRIG+sl}, 99")
        for pr in (4, 5):
            e(f"s_cmp_eq_u32 s{pr}, {sl}")
            e(f"s_cselect_b32 s{sTRIG+sl}, {nit0}, s{sTRIG+sl}")
            e(f"s_cmp_eq_u32 s{pr}, {sl+5}")
            e(f"s_cselect_b32 s{sTRIG+sl}, {nit0-1}, s{sTRIG+sl}")
    e(f"s_lshl_b32 s5, s{sROLE}, 4")
    e(f"s_add_u32 s4, s{sTB}, s5")
    e(f"s_mul_i32 s4, s4, 12")
    e(f"s_mul_i32 s5, s{sB}, {NT}")
    e(f"s_add_u32 s4, s4, s5")
    e(f"s_lshl_b32 s4, s4, 8")
    e(f"s_add_u32 s{sPOFF}, s4, {PCS_REL}")
    if ffn:
        e(f"s_cmp_eq_u32 s{sA}, 0")
        e(f"s_cselect_b32 s{sMINE}, 3, 4")
    else:
        e(f"s_lshl_b32 s{sMINE}, 1, s{sA}")
        e(f"s_cmp_eq_u32 s{sA}, 0")
        e(f"s_cselect_b32 s{sMINE}, 17, s{sMINE}")
    e("s_waitcnt lgkmcnt(0)")
    stamp(e, 0, True)
    stamp(e, 1)
    if 'rm2' in EXP and ffn:
        l0 = e.newlab("k1n")
        e(f"s_or_b32 s4, s2, s{sW}")
        e("s_cmp_lg_u32 s4, 0")
        e(f"s_cbranch_scc1 {l0}")
        srd(e, SRDD, S_DBG, 0, 256)
        e("s_memrealtime s[6:7]")
        e("s_waitcnt lgkmcnt(0)")
        e("s_or_b32 s6, s6, 1")
        e(f"v_mov_b32 v{t[0]}, s6")
        e("s_mov_b64 exec, 1")
        e(f"buffer_store_dword v{t[0]}, off, s[{SRDD}:{SRDD+3}], 0 sc1")
        e("s_mov_b64 exec, -1")
        e.lab(l0)
    srd(e, SRDX, S_XP, 0, X_SZ)
    if ffn:
        e(f"s_cmp_ge_u32 s{sW}, 4")
        e(f"s_cselect_b32 s{SRDW}, s{S_UP}, s{S_GATE}")
        e(f"s_cselect_b32 s{SRDW+1}, s{S_UP+1}, s{S_GATE+1}")
        e(f"s_mov_b32 s{SRDW+2}, {hex(WG_SZ)}")
        e(f"s_mov_b32 s{SRDW+3}, 0x00020000")
    else:
        srd(e, SRDW, S_WQKV, 0, WQKV_SZ)

    def dma_group(slot, var):
        nw = 3 if (ffn or var == 0) else 2
        hot = 'hot' in EXP
        it = [[f"s_add_u32 m0, s{sXM0}, {slot*XSLOT}", "s_nop 0",
               f"buffer_load_dwordx4 v{vXs}, s[{SRDX}:{SRDX+3}], s{sXso} offen lds"]]
        it.append([f"s_add_u32 m0, s{sWM0}, {slot*WSLOT}", f"s_add_u32 s{sXso}, s{sXso}, {0 if hot else 64}",
                   f"buffer_load_dwordx4 v{vWs[0]}, s[{SRDW}:{SRDW+3}], s{sWso} offen lds"])
        for i in range(1, nw):
            it.append([f"buffer_load_dwordx4 v{vWs[i]}, s[{SRDW}:{SRDW+3}], s{sWso} offen offset:{1024*i} lds"])
        it[-1] += [f"s_add_u32 s{sWso}, s{sWso}, {0 if hot else 32*GROW}",
                   f"s_cmp_eq_u32 s{sXso}, 1280",
                   f"s_cselect_b32 s{sXso}, 0, s{sXso}",
                   f"s_cselect_b32 s{sWso}, 0, s{sWso}"]
        return it

    def gsize(var):
        return 4 if (ffn or var == 0) else 3

    setup = []
    q = setup.append
    g, r4, c4, bb = t[0], t[1], t[2], t[3]
    q(f"v_lshrrev_b32 v{g}, 4, v{L}")
    q(f"v_bfe_u32 v{r4}, v{L}, 2, 2")
    q(f"v_and_b32 v{c4}, 3, v{L}")
    q(f"v_bfe_u32 v{bb}, v{L}, 3, 1")
    q(f"v_lshrrev_b32 v{t[4]}, 1, v{g}")
    q(f"v_lshl_add_u32 v{t[4]}, v{t[4]}, 3, v{r4}")
    q(f"v_mul_u32_u24 v{t[4]}, {WROW}, v{t[4]}")
    q(f"v_and_b32 v{t[5]}, 1, v{g}")
    if ffn:
        q(f"v_mul_u32_u24 v{t[6]}, 12288, v{t[5]}")
        q(f"v_add_u32 v{t[4]}, v{t[4]}, v{t[6]}")
        q(f"v_and_b32 v{t[6]}, 1, v{c4}")
        q(f"v_lshl_add_u32 v{t[4]}, v{t[6]}, 3, v{t[4]}")
        q(f"v_lshlrev_b32 v{t[5]}, 2, v{t[5]}")
        q(f"v_lshl_add_u32 v{t[5]}, v{bb}, 1, v{t[5]}")
        q(f"v_lshrrev_b32 v{t[6]}, 1, v{c4}")
        q(f"s_mul_i32 s4, s{sB}, 6")
        for i in range(3):
            q(f"v_add3_u32 v{t[7]}, v{t[6]}, s4, {2*i}")
            q(f"v_xor_b32 v{t[7]}, v{t[7]}, v{t[5]}")
            q(f"v_lshl_add_u32 v{vWA[0][i]}, v{t[7]}, 4, v{t[4]}")
            if nset > 1:
                q(f"v_add_u32 v{vWA[1][i]}, {3*WSLOT}, v{vWA[0][i]}")
    else:
        q(f"v_lshl_add_u32 v{t[4]}, v{t[5]}, 5, v{t[4]}")
        q(f"v_lshl_add_u32 v{t[4]}, v{c4}, 3, v{t[4]}")
        q(f"s_mul_i32 s4, s{sB}, 320")
        q(f"v_add_u32 v{t[4]}, s4, v{t[4]}")
        q(f"v_lshlrev_b32 v{t[5]}, 6, v{bb}")
        q(f"v_sub_u32 v{t[6]}, 0, v{t[5]}")
        q(f"s_cmp_eq_u32 s{sB}, 0")
        q(f"s_cselect_b64 vcc, -1, 0")
        q(f"v_cndmask_b32 v{t[7]}, v{t[6]}, v{t[5]}, vcc")
        q(f"v_add_u32 v{vWA[0][0]}, v{t[4]}, v{t[7]}")
        q(f"v_sub_u32 v{vWA[0][1]}, v{t[4]}, v{t[7]}")
        if nset > 1:
            q(f"v_add_u32 v{vWA[1][0]}, {3*WSLOT}, v{vWA[0][0]}")
            q(f"v_add_u32 v{vWA[1][1]}, {3*WSLOT}, v{vWA[0][1]}")
    q(f"v_and_b32 v{t[0]}, 31, v{L}")
    q(f"v_bfe_u32 v{t[1]}, v{L}, 2, 2")
    q(f"v_lshrrev_b32 v{t[2]}, 5, v{L}")
    q(f"s_lshl_b32 s5, s{sA}, {12 if ffn else 11}")
    q(f"s_add_u32 s5, s5, {XR}")
    q(f"v_lshlrev_b32 v{t[0]}, 6, v{t[0]}")
    q(f"v_add_u32 v{t[0]}, s5, v{t[0]}")
    q(f"v_xor_b32 v{t[3]}, v{t[2]}, v{t[1]}")
    q(f"v_lshl_add_u32 v{vXB[0]}, v{t[3]}, 4, v{t[0]}")
    q(f"v_xor_b32 v{vXB[1]}, 32, v{vXB[0]}")
    q(f"v_min_u32 v{t[0]}, {NCS-1}, v0")
    q(f"v_lshlrev_b32 v{vGA}, 2, v{t[0]}")
    q(f"v_and_b32 v{t[0]}, 127, v0")
    q(f"v_lshlrev_b32 v{vSTA}, 2, v{t[0]}")
    q(f"v_and_b32 v{t[0]}, 15, v{L}")
    q(f"v_lshlrev_b32 v{vPA}, 4, v{t[0]}")
    q(f"v_and_b32 v{t[0]}, 31, v{L}")
    q(f"v_mov_b32 v{t[1]}, 0x3f803f80")
    q(f"v_cmp_eq_u32 vcc, 0, v{t[0]}")
    q(f"v_cmp_eq_u32 s[4:5], 17, v{t[0]}")
    q("s_nop 1")
    q("s_or_b64 vcc, vcc, s[4:5]")
    q("s_nop 1")
    q(f"v_cndmask_b32 v{vONE}, 0, v{t[1]}, vcc")
    for r in range(1, 4):
        q(f"v_mov_b32 v{vONE+r}, v{vONE}")
    for i in range(NT):
        for r in range(4):
            q(f"v_mov_b32 v{aCS[i]+r}, 0")
    zero = [f"v_mov_b32 v{acc[i][u]+r}, 0" for i in range(NT) for u in range(NU) for r in range(16)]
    setup_all = setup + zero

    def reads_w(slot, p):
        out = []
        for i in range(NT):
            st_, sl = (1, slot - 3) if slot >= 3 else (0, slot)
            if ffn:
                base = vWA[st_][i]
                off = sl * WSLOT + p * 16 * WROW
            else:
                base = vWA[st_][i & 1]
                off = sl * WSLOT + p * 16 * WROW + 64 * i
            a = fA[p][i]
            out.append([f"ds_read_b64_tr_b16 v[{a}:{a+1}], v{base} offset:{off}",
                        f"ds_read_b64_tr_b16 v[{a+2}:{a+3}], v{base} offset:{off+4*WROW}"])
        return out

    def reads_x(slot, p):
        return [f"ds_read_b128 v[{fB[p][u]}:{fB[p][u]+3}], v{vXB[p]} offset:{slot*XSLOT+2048*u}" for u in range(NU)]

    def read_slots(slot, p):
        rw, rx = reads_w(slot, p), reads_x(slot, p)
        if ffn:
            return [rw[0], [rx[0]], [rx[1]], rw[1], rw[2], []]
        return [rw[0] + rx, rw[1], rw[2], rw[3], rw[4]]

    def mfmas(p):
        out = []
        for i in range(NT):
            for u in range(NU):
                a, b, c = fA[p][i], fB[p][u], acc[i][u]
                if cls == "v":
                    a, b = b, a
                out.append(f"v_mfma_f32_32x32x16_bf16 v[{c}:{c+15}], v[{a}:{a+3}], v[{b}:{b+3}], v[{c}:{c+15}]")
        return out

    NS = NT * NU

    def weave(ms, fl):
        out = []
        for i, m in enumerate(ms):
            out.append(m)
            if i < len(fl):
                out.extend(fl[i])
        return out

    def stage(n, slot, var, fifo, last_group, extra0=None, extra1=None, force_vm=None, mid=None, post=None):
        body = []
        G = gsize(var)
        fl = read_slots(slot, 1)
        fl = [list(x) for x in fl]
        if var == 1 and 'nodma' not in EXP:
            gid = None if n is None else n + RR - 2
            if gid is None or gid <= last_group:
                items = dma_group((slot - 2) % RR, var)
                for k_, it in enumerate(items):
                    fl[min(NS - 1, 1 + k_)] += it
                fifo.append((gid, len(items)))
        if extra0:
            fl = merge(fl, extra0)
            fifo.append(("cs", 2))
        body += weave(mfmas(0), fl)
        if mid: body += mid
        if n is None:
            vm = G * (RR - 3)
        else:
            vm = 0
            seen = False
            for gid, cnt in fifo:
                if seen: vm += cnt
                if gid == n + 1: seen = True
            assert seen or n == NSTG - 1
            if force_vm is not None: vm = force_vm
        if n is None or n < NSTG - 1:
            if 'nodma' not in EXP:
                body.append(f"s_waitcnt vmcnt({vm})")
            body.append("s_barrier")
        if post: body += post
        nslot = (slot + 1) % RR
        if n is None or n < NSTG - 1:
            fl = [list(x) for x in read_slots(nslot, 0)]
        else:
            fl = [[] for _ in range(NS)]
        if var == 0 and 'nodma' not in EXP:
            gid = None if n is None else n + RR - 1
            if gid is None or gid <= last_group:
                items = dma_group((slot - 1) % RR, var)
                for k_, it in enumerate(items):
                    fl[min(NS - 1, 1 + k_)] += it
                fifo.append((gid, len(items)))
        if extra1:
            fl = merge(fl, extra1)
        body += weave(mfmas(1), fl)
        return body

    gl_load = [f"v_lshlrev_b32 v{t[1]}, 1, v{vGA}",
               f"v_lshlrev_b32 v{t[2]}, 2, v{vSTA}",
               f"s_mul_i32 s4, s{sROLE}, {384*8}",
               f"s_lshl_b32 s5, s{sTB}, 11",
               f"s_add_u32 s5, s5, {STG_REL}",
               f"buffer_load_dwordx2 v[{vG}:{vG+1}], v{t[1]}, s[{SRDC}:{SRDC+3}], s4 offen sc1",
               f"buffer_load_dwordx4 v[{vST}:{vST+3}], v{t[2]}, s[{SRDC}:{SRDC+3}], s5 offen sc1"]
    gl_test = [f"v_cmp_ne_u32 vcc, s{sNONCE}, v{vG+1}",
               f"v_cmp_ne_u32 s[6:7], s{sNONCE}, v{vST+2}",
               "s_nop 1",
               "s_or_b64 vcc, vcc, s[6:7]"]

    for var in range(2):
        lv = f"{pfx}_{cls}_v{var}"
        if var == 0:
            e(f"s_cmp_ge_u32 s{sW}, 4")
            e(f"s_cbranch_scc1 {pfx}_{cls}_v1")
        else:
            e.lab(lv)
        ngp = RR - 1 if var == 0 else RR - 2
        chunks = [setup_all[k * len(setup_all) // ngp:(k + 1) * len(setup_all) // ngp] for k in range(ngp)]
        fifo = []
        for gi in range(ngp):
            for it in dma_group(gi, var):
                for x in it: e(x)
            fifo.append((gi, gsize(var)))
            for x in chunks[gi]: e(x)
        srd(e, SRDD, S_DBG, 0, 256)
        srd(e, SRDC, S_WS, CSG_OFF, CSG_SZ)
        ntouch = 0
        if 'touch' in EXP:
            nl, mg, sh = (3, 171, 9) if ffn else (5, 205, 10)
            rows = 20 if ffn else 10
            e(f"v_min_u32 v{t[0]}, {rows*nl-1}, v{L}")
            e(f"v_mul_u32_u24 v{t[1]}, {mg}, v{t[0]}")
            e(f"v_lshrrev_b32 v{t[1]}, {sh}, v{t[1]}")
            e(f"v_mul_u32_u24 v{t[2]}, {nl}, v{t[1]}")
            e(f"v_sub_u32 v{t[0]}, v{t[0]}, v{t[2]}")
            e(f"s_and_b32 s4, s{sTB}, 7")
            e(f"s_mul_i32 s4, s4, 80")
            e(f"s_and_b32 s5, s{sW}, {3 if ffn else 7}")
            e(f"s_mul_i32 s5, s5, {rows}")
            e(f"s_add_u32 s4, s4, s5")
            e(f"s_mul_i32 s4, s4, {GROW}")
            if ffn:
                e(f"s_sub_u32 s5, s{sROLE}, 6")
                e(f"s_mul_i32 s5, s5, 384")
            else:
                e(f"s_mul_i32 s5, s{sROLE}, 640")
            e(f"s_add_u32 s4, s4, s5")
            e(f"v_mul_u32_u24 v{t[1]}, {GROW}, v{t[1]}")
            e(f"v_lshl_add_u32 v{t[0]}, v{t[0]}, 7, v{t[1]}")
            e(f"buffer_load_dword v{t[4]}, v{t[0]}, s[{SRDW}:{SRDW+3}], s4 offen")
            ntouch += 1
            if 'touchx' in EXP:
                e(f"v_min_u32 v{t[2]}, 39, v{L}")
                e(f"v_mul_u32_u24 v{t[1]}, 205, v{t[2]}")
                e(f"v_lshrrev_b32 v{t[1]}, 11, v{t[1]}")
                e(f"v_mul_u32_u24 v{t[3]}, 10, v{t[1]}")
                e(f"v_sub_u32 v{t[2]}, v{t[2]}, v{t[3]}")
                e(f"s_bfe_u32 s4, s2, 0x20006")
                e(f"s_lshl_b32 s4, s4, 5")
                e(f"s_lshl_b32 s5, s{sW}, 2")
                e(f"s_add_u32 s4, s4, s5")
                e(f"s_lshl_b32 s5, s{sTB}, 7")
                e(f"s_add_u32 s4, s4, s5")
                e(f"s_mul_i32 s4, s4, 1280")
                e(f"v_mul_u32_u24 v{t[1]}, 1280, v{t[1]}")
                e(f"v_lshl_add_u32 v{t[2]}, v{t[2]}, 7, v{t[1]}")
                e(f"buffer_load_dword v{t[5]}, v{t[2]}, s[{SRDX}:{SRDX+3}], s4 offen")
                ntouch += 1
        vm0 = gsize(var) * (ngp - 1) + ntouch
        e(f"s_waitcnt vmcnt({vm0})")
        e("s_barrier")
        if 'es' not in EXP: stamp(e, 2)
        pro = []
        rs0 = read_slots(0, 0)
        for x in rs0: pro += x
        pro, pend = autowait(pro, [])
        for x in pro: e(x)
        nit = NSTG // RR - 1
        e(f"s_mov_b32 s{sCNT}, {nit}")
        if var == 1 and 'noprio' not in EXP:
            e("s_setprio 1")
        loop = f"{pfx}_{cls}_loop{var}"
        e.lab(loop)
        body = []
        ff = []
        ool = []
        def cs_block(lab):
            b = [f"{lab}:", "s_waitcnt lgkmcnt(0)"]
            for i in range(NT):
                b += [f"s_bitcmp1_b32 s{sMINE}, {i}", f"s_cbranch_scc0 {lab}_s{i}"]
                for p in range(2):
                    b.append(f"v_mfma_f32_16x16x32_bf16 v[{aCS[i]}:{aCS[i]+3}], v[{vONE}:{vONE+3}], v[{fA[p][i]}:{fA[p][i]+3}], v[{aCS[i]}:{aCS[i]+3}]")
                b.append(f"{lab}_s{i}:")
            b.append(f"s_branch {lab}_back")
            return b
        DG0, DGI = 0, 1
        for x_ in EXP:
            if x_.startswith("dg0="): DG0 = int(x_[4:])
            if x_.startswith("dgi="): DGI = int(x_[4:])
        for st in range(RR):
            mid = post = ex0 = None
            lab = e.newlab("k1cs")
            mid = [f"s_cmp_eq_u32 s{sCNT}, s{sTRIG+st}", f"s_cbranch_scc1 {lab}", f"{lab}_back:"]
            ool += cs_block(lab)
            if st == 2:
                lab = e.newlab("k1nl")
                mid += [f"s_cmp_eq_u32 s{sCNT}, {nit}", f"s_cbranch_scc0 {lab}",
                        f"buffer_load_dword v{vN}, off, s[{SRDD}:{SRDD+3}], 0 sc1", f"{lab}:"]
            if st == 4:
                lab = e.newlab("k1pub")
                post = [f"s_cmp_eq_u32 s{sCNT}, {nit if 'rot4' in EXP else nit-1}", f"s_cbranch_scc1 {lab}", f"{lab}_back:"]
                ool += [f"{lab}:",
                        "s_nop 7",
                        f"s_mov_b32 s4, 200000",
                        f"{lab}_n:",
                        f"v_readfirstlane_b32 s{sNONCE}, v{vN}",
                        f"s_cmp_lg_u32 s{sNONCE}, 0",
                        f"s_cbranch_scc1 {lab}_ok",
                        "s_sleep 2",
                        f"buffer_load_dword v{vN}, off, s[{SRDD}:{SRDD+3}], 0 sc1",
                        "s_waitcnt vmcnt(0)",
                        "s_sub_u32 s4, s4, 1",
                        "s_cmp_lg_u32 s4, 0",
                        f"s_cbranch_scc1 {lab}_n",
                        f"{lab}_ok:",
                        "s_mov_b64 exec, 0xffff"]
                for i in range(NT):
                    ool += [f"s_bitcmp1_b32 s{sMINE}, {i}", f"s_cbranch_scc0 {lab}_s{i}",
                            f"v_mov_b32 v{aCS[i]+2}, s{sNONCE}",
                            f"v_mov_b32 v{aCS[i]+3}, s{sNONCE}",
                            f"buffer_store_dwordx4 v[{aCS[i]}:{aCS[i]+3}], v{vPA}, s[{SRDC}:{SRDC+3}], s{sPOFF} offen offset:{256*i} sc1",
                            f"{lab}_s{i}:"]
                ool += ["s_mov_b64 exec, -1", f"s_branch {lab}_back"]
            if 'dg' in EXP and var == 0 and st in (DG0, DG0 + 2):
                PER = 12 if ffn else 10
                lab = e.newlab("k1dg")
                assert post is None
                post = [f"s_cmp_eq_u32 s{sCNT}, {DGI}", f"s_cbranch_scc1 {lab}", f"{lab}_back:"]
                ld = [f"s_mul_i32 s5, s{sROLE}, {16*3072}",
                      f"s_add_u32 s5, s5, {PCS_REL}",
                      f"buffer_load_dwordx4 v[{vST}:{vST+3}], v{t[1]}, s[{SRDC}:{SRDC+3}], s5 offen sc1"]
                ool += [f"{lab}:", f"s_cmp_ge_u32 s{sW}, 3", f"s_cbranch_scc1 {lab}_back"]
                if st == DG0:
                    ool += [f"v_lshrrev_b32 v{t[0]}, 4, v{L}",
                            f"s_lshl_b32 s4, s{sW}, 2",
                            f"v_add_u32 v{t[0]}, s4, v{t[0]}",
                            f"v_min_u32 v{t[0]}, {PER-1}, v{t[0]}",
                            f"s_mul_i32 s4, s{sTB}, {PER}",
                            f"v_add_u32 v{t[0]}, s4, v{t[0]}",
                            f"v_and_b32 v{t[1]}, 15, v{L}",
                            f"v_mul_u32_u24 v{t[1]}, 3072, v{t[1]}",
                            f"v_lshl_add_u32 v{t[1]}, v{t[0]}, 4, v{t[1]}"] + ld
                else:
                    ool += ["s_mov_b32 s4, 200000",
                            f"{lab}_l:",
                            f"v_cmp_ne_u32 vcc, s{sNONCE}, v{vST+2}",
                            "s_nop 1",
                            f"s_cbranch_vccz {lab}_ok",
                            "s_sleep 2"] + ld + [
                            "s_waitcnt vmcnt(0)",
                            "s_sub_u32 s4, s4, 1",
                            "s_cmp_lg_u32 s4, 0",
                            f"s_cbranch_scc1 {lab}_l",
                            f"{lab}_ok:"]
                    for k_ in (8, 4, 2, 1):
                        ool += ["s_nop 1",
                                f"v_add_f32_dpp v{vST}, v{vST}, v{vST} row_ror:{k_} row_mask:0xf bank_mask:0xf",
                                f"v_add_f32_dpp v{vST+1}, v{vST+1}, v{vST+1} row_ror:{k_} row_mask:0xf bank_mask:0xf"]
                    ool += [f"v_lshrrev_b32 v{t[2]}, 4, v{t[0]}",
                            f"v_and_b32 v{t[3]}, 15, v{t[0]}",
                            f"v_lshlrev_b32 v{t[3]}, 3, v{t[3]}",
                            f"v_lshl_add_u32 v{t[3]}, v{t[2]}, 8, v{t[3]}",
                            f"v_mov_b32 v{vST+2}, v{vST+1}",
                            f"v_mov_b32 v{vST+1}, s{sNONCE}",
                            f"v_mov_b32 v{vST+3}, s{sNONCE}",
                            f"s_mul_i32 s4, s{sROLE}, {384*8}",
                            "s_mov_b32 exec_lo, 0x00010001",
                            "s_mov_b32 exec_hi, 0x00010001",
                            f"buffer_store_dwordx2 v[{vST}:{vST+1}], v{t[3]}, s[{SRDC}:{SRDC+3}], s4 offen sc1",
                            f"buffer_store_dwordx2 v[{vST+2}:{vST+3}], v{t[3]}, s[{SRDC}:{SRDC+3}], s4 offen offset:128 sc1",
                            "s_mov_b64 exec, -1"]
                ool += [f"s_branch {lab}_back"]
            body += stage(None, st, var, ff, 99, mid=mid, post=post)
        b1, pend1 = autowait(body, pend)
        b2, pend2 = autowait(body, pend1)
        assert b1 == b2, "loop waits not periodic"
        for x in b1: e(x)
        e(f"s_sub_u32 s{sCNT}, s{sCNT}, 1")
        e(f"s_cmp_lg_u32 s{sCNT}, 0")
        e(f"s_cbranch_scc1 {loop}")
        n0 = NSTG - RR
        hi_g = n0 + RR - 2 if var == 0 else n0 + RR - 3
        ff = [(g_, gsize(var)) for g_ in range(n0 + 1, hi_g + 1)]
        tail = []
        lretry, lback = e.newlab("k1retry"), e.newlab("k1back")
        for st in range(RR):
            n = n0 + st
            ex0 = ex1 = None
            fv = None
            if n == NSTG - 2:
                ex0 = [[] for _ in range(NS)]
                ex0[NS - 1] = gl_load
            if n == NSTG - 1:
                ex1 = [[] for _ in range(NS)]
                ex1[2] = ["s_waitcnt vmcnt(0)"] + gl_test + [
                          (f"s_cbranch_vccnz {lretry}" if 'nowait' not in EXP else "s_nop 0"),
                          f"{lback}:",
                          f"ds_write_b32 v{vGA}, v{vG} offset:{CSL}",
                          f"ds_write_b32 v{vSTA}, v{vST} offset:{RSL}",
                          f"ds_write_b32 v{vSTA}, v{vST+1} offset:{NML}"]
            sb = stage(n, st, var, ff, NSTG - 1, ex0, ex1, fv)
            tail += sb
        tl, pend3 = autowait(tail, pend1)
        for x in tl: e(x)
        e("s_waitcnt lgkmcnt(0)")
        e("s_barrier")
        if var == 0:
            e(f"s_branch {pfx}_{cls}_epi")
        ret = [f"{lretry}:", f"s_mov_b32 s{sCNT}, 200000", f"{lretry}_l:", "s_sleep 2"] + gl_load + [
            "s_waitcnt vmcnt(0)"] + gl_test + [
            f"s_cbranch_vccz {lback}",
            f"s_sub_u32 s{sCNT}, s{sCNT}, 1",
            f"s_cmp_lg_u32 s{sCNT}, 0",
            f"s_cbranch_scc1 {lretry}_l",
            f"s_branch {lback}"]
        if var == 0:
            for x in ret + ool: e(x)
        else:
            e(f"s_branch {pfx}_{cls}_epi")
            for x in ret + ool: e(x)

    e.lab(f"{pfx}_{cls}_epi")
    e("s_setprio 0")
    stamp(e, 3)
    e(f"v_and_b32 v{t[0]}, 31, v{L}")
    e(f"s_lshl_b32 s4, s{sA}, {6 if ffn else 5}")
    e(f"v_add_u32 v{t[0]}, s4, v{t[0]}")
    e(f"v_lshlrev_b32 v{t[0]}, 2, v{t[0]}")
    vNM = [R.a() for _ in range(NU)]
    vRS = [R.a() for _ in range(NU)]
    if cls != "v":
        for u in range(NU):
            e(f"ds_read_b32 v{vNM[u]}, v{t[0]} offset:{128*u+NML}")
            e(f"ds_read_b32 v{vRS[u]}, v{t[0]} offset:{128*u+RSL}")
    h = t[2]
    e(f"v_lshrrev_b32 v{h}, 5, v{L}")
    csa = t[3]
    e(f"s_mul_i32 s4, s{sB}, {NT*128}")
    e(f"v_lshlrev_b32 v{csa}, 4, v{h}")
    e(f"v_add_u32 v{csa}, s4, v{csa}")
    sc = store_sc
    frag0 = fA[0][0]
    nfr = (2 * NT + 2 * NU) * 4 + 4
    assert fS + 4 == frag0 + nfr
    if ffn:
        csr = [frag0, frag0 + 16, R.a(16, 4)]
        assert nfr >= 32
        for i in range(3):
            for a in range(4):
                e(f"ds_read_b128 v[{csr[i]+4*a}:{csr[i]+4*a+3}], v{csa} offset:{CSL+128*i+32*a}")
        srd(e, SRDO, S_WS, ACT_OFF, ACT_SZ)
        e(f"s_lshl_b32 s4, s{sTB}, 3")
        e(f"s_lshl_b32 s5, s{sA}, 2")
        e(f"s_add_u32 s4, s4, s5")
        e(f"s_mul_i32 s4, s4, {ACT_ROW}")
        e(f"s_sub_u32 s5, s{sROLE}, 6")
        e(f"s_mul_i32 s5, s5, 12")
        e(f"s_mul_i32 s6, s{sB}, 3")
        e(f"s_add_u32 s5, s5, s6")
        e(f"s_lshl_b32 s5, s5, 9")
        e(f"s_add_u32 s4, s4, s5")
        e(f"v_bfe_u32 v{t[4]}, v{L}, 4, 1")
        e(f"v_mul_u32_u24 v{t[4]}, {ACT_ROW}, v{t[4]}")
        e(f"v_lshl_add_u32 v{t[4]}, v{h}, 8, v{t[4]}")
        e(f"v_and_b32 v{t[5]}, 15, v{L}")
        e(f"v_lshl_add_u32 v{t[4]}, v{t[5]}, 4, v{t[4]}")
        e(f"v_add_u32 v{t[4]}, s4, v{t[4]}")
        e(f"s_mov_b32 s7, {2*ACT_ROW}")
        body = []
        for u in range(NU):
            body.append(f"v_mul_f32 v{vRS[u]}, v{vRS[u]}, v{vRS[u]}")
        for i in range(3):
            for u in range(2):
                c = acc[i][u]
                tm = csr[i]
                for r in range(16):
                    body.append(f"v_fmac_f32 v{c+r}, v{vNM[u]}, v{tm+r}")
                for r in range(8):
                    body.append(f"v_max_f32 v{c+r}, 0, v{c+r}")
                    body.append(f"v_mul_f32 v{c+8+r}, v{vRS[u]}, v{c+8+r}")
                for r in range(8):
                    body.append(f"v_mul_f32 v{c+r}, v{c+r}, v{c+8+r}")
                p_ = c + 8
                for r in range(4):
                    body.append(f"v_cvt_pk_bf16_f32 v{p_+r}, v{c+2*r}, v{c+2*r+1}")
                so = "0" if u == 0 else "s7"
                st_ = f"buffer_store_dwordx4 v[{p_}:{p_+3}], v{t[4]}, s[{SRDO}:{SRDO+3}], {so} offen offset:{512*i} {sc}"
                if "ek" in EXP:
                    lab = e.newlab("k1ds")
                    body += [f"s_cbranch_scc1 {lab}", st_, f"{lab}:"]
                    DEFER.append(st_)
                else:
                    body.append(st_)
        pend = [{vNM[0]}, {vRS[0]}, {vNM[1]}, {vRS[1]}] + [set(range(csr[i] + 4 * a, csr[i] + 4 * a + 4)) for i in range(3) for a in range(4)]
        e("s_waitcnt lgkmcnt(12)")
        pend = pend[4:]
        bl, _ = autowait(body, pend)
        if "ek" in EXP:
            e(f"s_cmp_eq_u32 s{sW}, 7")
        for x in bl: e(x)
    elif cls == "qk":
        nbuf = nfr // 16
        tm = [frag0 + 16 * k for k in range(2)]
        for i in range(2):
            for a in range(4):
                e(f"ds_read_b128 v[{tm[i]+4*a}:{tm[i]+4*a+3}], v{csa} offset:{CSL+128*i+32*a}")
        e(f"s_mov_b32 s6, {hex(QB_OFF)}")
        e(f"s_cmp_ge_u32 s{sROLE}, 2")
        e(f"s_cselect_b32 s4, {hex(KB_OFF)}, s6")
        e(f"s_cselect_b32 s5, 1.0, {hex(f2u(20**-0.5*1.4426950408889634))}")
        srd(e, SRDO, S_WS, "s4", QK_SZ)
        e(f"s_mov_b32 s31, s5")
        e(f"s_and_b32 s4, s{sROLE}, 1")
        e(f"s_lshl_b32 s4, s4, 3")
        e(f"s_lshl_b32 s5, s{sB}, 2")
        e(f"s_add_u32 s4, s4, s5")
        e(f"s_lshl_b32 s4, s4, 6")
        e(f"s_lshl_b32 s5, s{sTB}, 2")
        e(f"s_add_u32 s4, s4, s5")
        e(f"s_add_u32 s4, s4, s{sA}")
        e(f"s_mul_i32 s4, s4, 2560")
        e(f"v_lshlrev_b32 v{t[4]}, 4, v{L}")
        e(f"v_add_u32 v{t[4]}, s4, v{t[4]}")
        e(f"v_lshlrev_b32 v{t[5]}, 3, v{L}")
        e(f"v_add_u32 v{t[5]}, s4, v{t[5]}")
        e(f"v_add_u32 v{t[5]}, 2048, v{t[5]}")
        stg = R.a(40, 4)
        def dst(G):
            p, k = divmod(G, 5)
            base = stg + 10 * p
            return {0: base, 1: base + 2, 2: base + 8, 3: base + 4, 4: base + 6}[k]
        body = [f"v_mul_f32 v{vRS[0]}, s31, v{vRS[0]}"]
        for i in range(5):
            c = acc[i][0]
            tmc = tm[i & 1]
            for r in range(16):
                body.append(f"v_fmac_f32 v{c+r}, v{vNM[0]}, v{tmc+r}")
            if i + 2 < 5:
                for a in range(4):
                    body.append(f"ds_read_b128 v[{tmc+4*a}:{tmc+4*a+3}], v{csa} offset:{CSL+128*(i+2)+32*a}")
            for r in range(16):
                body.append(f"v_mul_f32 v{c+r}, v{vRS[0]}, v{c+r}")
            for a in range(4):
                G = 4 * i + a
                d = dst(G)
                body.append(f"v_cvt_pk_bf16_f32 v{d}, v{c+4*a}, v{c+4*a+1}")
                body.append(f"v_cvt_pk_bf16_f32 v{d+1}, v{c+4*a+2}, v{c+4*a+3}")
                p, k = divmod(G, 5)
                if k == 4:
                    base = stg + 10 * p
                    body.append(f"s_mov_b32 s7, {p*64*2560}")
                    body.append(f"buffer_store_dwordx4 v[{base}:{base+3}], v{t[4]}, s[{SRDO}:{SRDO+3}], s7 offen {sc}")
                    body.append(f"buffer_store_dwordx4 v[{base+4}:{base+7}], v{t[4]}, s[{SRDO}:{SRDO+3}], s7 offen offset:1024 {sc}")
                    body.append(f"buffer_store_dwordx2 v[{base+8}:{base+9}], v{t[5]}, s[{SRDO}:{SRDO+3}], s7 offen {sc}")
        pend = [{vNM[0]}, {vRS[0]}] + [set(range(tm[i] + 4 * a, tm[i] + 4 * a + 4)) for i in range(2) for a in range(4)]
        bl, _ = autowait(body, pend)
        for x in bl: e(x)
    else:
        srd(e, SRDO, S_WS, VB_OFF, VB_SZ)
        e(f"s_lshl_b32 s4, s{sA}, 7")
        e(f"v_lshlrev_b32 v{t[4]}, 4, v{h}")
        e(f"v_add_u32 v{t[4]}, s4, v{t[4]}")
        rsq = frag0
        nmq = rsq + 16
        assert nfr >= 32
        for a in range(4):
            e(f"ds_read_b128 v[{rsq+4*a}:{rsq+4*a+3}], v{t[4]} offset:{32*a+RSL}")
            e(f"ds_read_b128 v[{nmq+4*a}:{nmq+4*a+3}], v{t[4]} offset:{32*a+NML}")
        e(f"v_and_b32 v{t[1]}, 31, v{L}")
        e(f"s_mul_i32 s4, s{sB}, {NT*32}")
        e(f"v_add_u32 v{t[1]}, s4, v{t[1]}")
        e(f"v_lshlrev_b32 v{t[1]}, 2, v{t[1]}")
        csl = [R.a() for _ in range(5)]
        for i in range(5):
            e(f"ds_read_b32 v{csl[i]}, v{t[1]} offset:{CSL+128*i}")
        e(f"s_sub_u32 s4, s{sROLE}, 4")
        e(f"s_lshl_b32 s4, s4, 4")
        e(f"s_lshl_b32 s5, s{sB}, 3")
        e(f"s_add_u32 s4, s4, s5")
        e(f"s_lshl_b32 s4, s4, 6")
        e(f"s_lshl_b32 s5, s{sTB}, 2")
        e(f"s_add_u32 s4, s4, s5")
        e(f"s_add_u32 s4, s4, s{sA}")
        e(f"s_mul_i32 s4, s4, 1280")
        e(f"s_mov_b32 s5, 3277")
        e(f"s_mov_b32 s6, {64*1280}")
        va = [R.a() for _ in range(5)]
        for i in range(5):
            e(f"v_and_b32 v{t[5]}, 31, v{L}")
            e(f"v_add_u32 v{t[5]}, {32*i}, v{t[5]}")
            e(f"v_mul_lo_u32 v{t[6]}, v{t[5]}, s5")
            e(f"v_lshrrev_b32 v{t[6]}, 16, v{t[6]}")
            e(f"v_mul_u32_u24 v{t[7]}, 20, v{t[6]}")
            e(f"v_sub_u32 v{t[5]}, v{t[5]}, v{t[7]}")
            e(f"v_mul_lo_u32 v{t[6]}, v{t[6]}, s6")
            e(f"v_lshl_add_u32 v{t[6]}, v{t[5]}, 4, v{t[6]}")
            e(f"v_mul_u32_u24 v{t[7]}, 320, v{h}")
            e(f"v_add3_u32 v{va[i]}, v{t[6]}, v{t[7]}, s4")
        e("s_waitcnt lgkmcnt(0)")
        for i in range(5):
            c = acc[i][0]
            for r in range(16):
                e(f"v_fmac_f32 v{c+r}, v{nmq+r}, v{csl[i]}")
            for r in range(16):
                e(f"v_mul_f32 v{c+r}, v{rsq+r}, v{c+r}")
            for sidx in range(2):
                d = c + 8 * sidx
                for r in range(4):
                    e(f"v_cvt_pk_bf16_f32 v{d+r}, v{d+2*r}, v{d+2*r+1}")
                e(f"buffer_store_dwordx4 v[{d}:{d+3}], v{va[i]}, s[{SRDO}:{SRDO+3}], 0 offen offset:{640*sidx} {sc}")
    stamp(e, 7)
    if finish is None:
        e("s_waitcnt vmcnt(0)")
        stamp(e, 5)
        stamp(e, 6, True)
        stamp_dump(e, 8, 0, sW, S_WS)
        e("s_endpgm")
    else:
        finish(e, cls)
    return R.hi


def helper(e, store_sc="", finish=None, pfx="k1"):
    R = Regs(2, 256, "v")
    t = [R.a() for _ in range(6)]
    vSrc, vRd, vDst, vOff = R.a(), R.a(), R.a(), R.a()
    ac = R.a(8, 4)
    u_ = [R.a() for _ in range(4)]
    fr = [R.a(4, 4) for _ in range(5)]
    L = 1
    SRDA, SRDB, SRDS = 8, 12, 80
    sKS, sSO = 24, 25
    PART = 0
    BUF0 = 32768
    e.lab(f"{pfx}_helper")
    e(f"v_lshlrev_b32 v{vSrc}, 4, v{L}")
    e(f"v_lshrrev_b32 v{t[0]}, 5, v{L}")
    e(f"v_bfe_u32 v{t[1]}, v{L}, 4, 1")
    e(f"v_bfe_u32 v{t[2]}, v{L}, 2, 2")
    e(f"v_lshl_add_u32 v{t[2]}, v{t[1]}, 2, v{t[2]}")
    e(f"v_lshl_add_u32 v{t[2]}, v{t[0]}, 4, v{t[2]}")
    e(f"v_mul_u32_u24 v{t[2]}, 1280, v{t[2]}")
    e(f"v_and_b32 v{t[3]}, 3, v{L}")
    e(f"v_mul_u32_u24 v{t[3]}, 40, v{t[3]}")
    e(f"s_mul_i32 s4, s{sW}, 160")
    e(f"s_add_u32 s4, s4, {BUF0}")
    e(f"v_add3_u32 v{vRd}, v{t[2]}, v{t[3]}, s4")
    e(f"s_mul_i32 s4, s{sW}, {W3_CB}")
    e(f"v_add_u32 v{vDst}, s4, v{vSrc}")
    for r in range(8):
        e(f"v_mov_b32 v{ac+r}, 0")
    e("s_waitcnt lgkmcnt(0)")
    stamp(e, 0, True)
    stamp(e, 1)
    srd(e, SRDA, S_DOWN, 0, WD_SZ)
    srd(e, SRDB, S_WO, 0, WO_SZ)
    srd(e, SRDO, S_WS, W3_OFF, W3_SZ)
    srd(e, SRDD, S_DBG, 0, 256)
    srd(e, SRDC, S_WS, CSG_OFF, CSG_SZ)
    l0 = e.newlab("k1n")
    e(f"s_or_b32 s4, s2, s{sW}")
    e("s_cmp_lg_u32 s4, 0")
    e(f"s_cbranch_scc1 {l0}")
    e("s_memrealtime s[6:7]")
    e("s_waitcnt lgkmcnt(0)")
    e("s_or_b32 s6, s6, 1")
    e(f"v_mov_b32 v{t[0]}, s6")
    e("s_mov_b64 exec, 1")
    e(f"buffer_store_dword v{t[0]}, off, s[{SRDD}:{SRDD+3}], 0 sc1")
    e("s_mov_b64 exec, -1")
    e.lab(l0)

    def w3_dma(j):
        b = BUF0 + (j % 3) * 40960
        lab = e.newlab("w3")
        e(f"s_add_u32 s{sKS}, s{sTB}, {16*j}")
        e(f"s_mul_i32 m0, s{sW}, 5120")
        e(f"s_add_u32 m0, m0, {b}")
        def issue(sr):
            for i in range(4):
                e(f"buffer_load_dwordx4 v{vSrc}, s[{sr}:{sr+3}], s{sSO} offen offset:{1024*i} lds")
            e(f"s_add_u32 s{sSO}, s{sSO}, 4096")
            e(f"s_add_u32 m0, m0, 4096")
            e("s_nop 0")
            e(f"buffer_load_dwordx4 v{vSrc}, s[{sr}:{sr+3}], s{sSO} offen lds")
        if j >= 3:
            e(f"s_cmp_ge_u32 s{sKS}, 54")
            e(f"s_cbranch_scc1 {lab}_o")
        if j <= 3:
            e(f"s_lshl_b32 s4, s{sKS}, 5")
            e(f"s_lshl_b32 s5, s{sW}, 2")
            e(f"s_add_u32 s4, s4, s5")
            e(f"s_mul_i32 s{sSO}, s4, 1280")
            issue(SRDA)
        if j >= 3:
            e(f"s_branch {lab}_go")
            e.lab(f"{lab}_o")
            e(f"s_cmp_ge_u32 s{sKS}, 70")
            e(f"s_cbranch_scc1 {lab}_x")
            e(f"s_sub_u32 s4, s{sKS}, 54")
            e(f"s_mul_i32 s4, s4, 40")
            e(f"s_lshr_b32 s5, s{sW}, 2")
            e(f"s_mul_i32 s5, s5, 20")
            e(f"s_add_u32 s4, s4, s5")
            e(f"s_and_b32 s5, s{sW}, 3")
            e(f"s_lshl_b32 s5, s5, 2")
            e(f"s_add_u32 s4, s4, s5")
            e(f"s_branch {lab}_wo")
            e.lab(f"{lab}_x")
            e(f"s_sub_u32 s4, s{sKS}, 70")
            e(f"s_lshl_b32 s4, s4, 3")
            e(f"s_lshr_b32 s5, s{sW}, 2")
            e(f"s_lshl_b32 s5, s5, 2")
            e(f"s_add_u32 s4, s4, s5")
            e(f"s_and_b32 s5, s{sW}, 1")
            e(f"s_lshl_b32 s5, s5, 1")
            e(f"s_add_u32 s4, s4, s5")
            e(f"s_bfe_u32 s5, s{sW}, 0x10001")
            e(f"s_add_u32 s4, s4, s5")
            e(f"s_mul_i32 s4, s4, 20")
            e(f"s_add_u32 s4, s4, 16")
            e.lab(f"{lab}_wo")
            e(f"s_mul_i32 s{sSO}, s4, 1280")
            issue(SRDB)
            e.lab(f"{lab}_go")

    def repack_rd(j):
        off = (j % 3) * 40960
        e(f"s_mov_b32 s4, {off}")
        e(f"v_add_u32 v{t[0]}, s4, v{vRd}")
        for c5 in range(5):
            e(f"ds_read_b64_tr_b16 v[{fr[c5]}:{fr[c5]+1}], v{t[0]} offset:{8*c5}")
            e(f"ds_read_b64_tr_b16 v[{fr[c5]+2}:{fr[c5]+3}], v{t[0]} offset:{8*c5+8*1280}")
        e("s_waitcnt lgkmcnt(0)")
        e("s_barrier")

    def repack_st(j):
        e(f"s_add_u32 s4, s{sTB}, {16*j}")
        e(f"s_mul_i32 s7, s4, 5120")
        for c5 in range(4):
            e(f"buffer_store_dwordx4 v[{fr[c5]}:{fr[c5]+3}], v{vDst}, s[{SRDO}:{SRDO+3}], s7 offen offset:{1024*c5} {store_sc}")
        e(f"s_add_u32 s7, s7, 4096")
        e(f"buffer_store_dwordx4 v[{fr[4]}:{fr[4]+3}], v{vDst}, s[{SRDO}:{SRDO+3}], s7 offen {store_sc}")

    def repack(j):
        repack_rd(j)
        repack_st(j)

    HS = 'hs' in EXP
    for j in range(1 if HS else 3):
        w3_dma(j)
    xb = R.a(80, 4)
    srd(e, SRDS, S_XP, 0, X_SZ)
    e(f"s_lshl_b32 s4, s{sTB}, 7")
    e(f"s_lshl_b32 s5, s{sW}, 4")
    e(f"s_add_u32 s4, s4, s5")
    e(f"s_mul_i32 s4, s4, 1280")
    e(f"v_lshrrev_b32 v{t[0]}, 2, v{L}")
    e(f"v_mul_u32_u24 v{t[0]}, 1280, v{t[0]}")
    e(f"v_and_b32 v{t[1]}, 3, v{L}")
    e(f"v_lshl_add_u32 v{vOff}, v{t[1]}, 4, v{t[0]}")
    for j in range(20):
        e(f"buffer_load_dwordx4 v[{xb+4*j}:{xb+4*j+3}], v{vOff}, s[{SRDS}:{SRDS+3}], s4 offen offset:{64*j}")
    ln = e.newlab("csn")
    if HS:
        w3_dma(1)
        w3_dma(2)
        e("s_waitcnt vmcnt(30)")
        e("s_barrier")
        e(f"buffer_load_dword v{t[5]}, off, s[{SRDD}:{SRDD+3}], 0 sc1")
        repack(0)
        e("s_waitcnt vmcnt(16)")
        if "es" not in EXP: stamp(e, 2)
    else:
        e(f"s_mov_b32 s{sCNT}, 200000")
        e.lab(ln)
        e(f"buffer_load_dword v{t[5]}, off, s[{SRDD}:{SRDD+3}], 0 sc1")
        e("s_waitcnt vmcnt(0)")
        e(f"v_readfirstlane_b32 s{sNONCE}, v{t[5]}")
        e(f"s_cmp_lg_u32 s{sNONCE}, 0")
        e(f"s_cbranch_scc1 {ln}_ok")
        e("s_sleep 2")
        e(f"s_sub_u32 s{sCNT}, s{sCNT}, 1")
        e(f"s_cmp_lg_u32 s{sCNT}, 0")
        e(f"s_cbranch_scc1 {ln}")
        e.lab(f"{ln}_ok")
        if "es" not in EXP: stamp(e, 2)
    first = True
    for d in range(80):
        a_, b_ = u_[2 * (d & 1)], u_[2 * (d & 1) + 1]
        e(f"v_lshlrev_b32 v{a_}, 16, v{xb+d}")
        e(f"v_and_b32 v{b_}, s{sMASK}, v{xb+d}")
        k = 2 * (d & 1)
        e(f"v_add_f32 v{ac+k}, v{ac+k}, v{a_}")
        e(f"v_add_f32 v{ac+k+1}, v{ac+k+1}, v{b_}")
        e(f"v_fmac_f32 v{ac+4+k}, v{a_}, v{a_}")
        e(f"v_fmac_f32 v{ac+4+k+1}, v{b_}, v{b_}")
    e(f"v_add_f32 v{ac}, v{ac}, v{ac+1}")
    e(f"v_add_f32 v{ac+2}, v{ac+2}, v{ac+3}")
    e(f"v_add_f32 v{ac+4}, v{ac+4}, v{ac+5}")
    e(f"v_add_f32 v{ac+6}, v{ac+6}, v{ac+7}")
    e(f"v_add_f32 v{ac}, v{ac}, v{ac+2}")
    e(f"v_add_f32 v{ac+4}, v{ac+4}, v{ac+6}")
    e(f"s_mov_b32 s4, {hex(f2u(1.0/640))}")
    e(f"s_mov_b32 s5, {hex(f2u(1e-5))}")
    for qp in ("[1,0,3,2]", "[2,3,0,1]"):
        e("s_nop 1")
        e(f"v_add_f32_dpp v{ac}, v{ac}, v{ac} quad_perm:{qp} row_mask:0xf bank_mask:0xf")
        e(f"v_add_f32_dpp v{ac+4}, v{ac+4}, v{ac+4} quad_perm:{qp} row_mask:0xf bank_mask:0xf")
    e("s_nop 0")
    e(f"v_mul_f32 v{ac+1}, s4, v{ac}")
    e(f"v_mul_f32 v{ac+4}, s4, v{ac+4}")
    e(f"v_fma_f32 v{ac+4}, -v{ac+1}, v{ac+1}, v{ac+4}")
    e(f"v_max_f32 v{ac+4}, 0, v{ac+4}")
    e(f"v_add_f32 v{ac+4}, s5, v{ac+4}")
    e(f"v_rsq_f32 v{ac}, v{ac+4}")
    e(f"v_sub_f32 v{ac+1}, 0, v{ac+1}")
    if HS:
        e(f"s_mov_b32 s{sCNT}, 200000")
        e("s_waitcnt vmcnt(5)")
        e.lab(ln)
        e(f"v_readfirstlane_b32 s{sNONCE}, v{t[5]}")
        e(f"s_cmp_lg_u32 s{sNONCE}, 0")
        e(f"s_cbranch_scc1 {ln}_ok")
        e("s_sleep 2")
        e(f"buffer_load_dword v{t[5]}, off, s[{SRDD}:{SRDD+3}], 0 sc1")
        e("s_waitcnt vmcnt(0)")
        e(f"s_sub_u32 s{sCNT}, s{sCNT}, 1")
        e(f"s_cmp_lg_u32 s{sCNT}, 0")
        e(f"s_cbranch_scc1 {ln}")
        e.lab(f"{ln}_ok")
    e(f"v_mov_b32 v{ac+2}, s{sNONCE}")
    e(f"v_mov_b32 v{ac+3}, s{sNONCE}")
    e(f"v_lshrrev_b32 v{t[0]}, 2, v{L}")
    e(f"v_lshlrev_b32 v{t[0]}, 4, v{t[0]}")
    e(f"s_lshl_b32 s4, s{sTB}, 11")
    e(f"s_lshl_b32 s5, s{sW}, 8")
    e(f"s_add_u32 s4, s4, s5")
    e(f"s_add_u32 s4, s4, {STG_REL}")
    e("s_mov_b32 exec_lo, 0x11111111")
    e("s_mov_b32 exec_hi, 0x11111111")
    e(f"buffer_store_dwordx4 v[{ac}:{ac+3}], v{t[0]}, s[{SRDC}:{SRDC+3}], s4 offen sc1")
    e("s_mov_b64 exec, -1")
    stamp(e, 3)
    e("s_barrier")
    if not HS:
        repack(0)
        w3_dma(3)
    repack(1)
    if HS:
        w3_dma(3)
    l4 = e.newlab("w3s")
    e(f"s_cmp_ge_u32 s{sTB}, 10")
    e(f"s_cbranch_scc1 {l4}")
    w3_dma(4)
    e.lab(l4)
    if HS:
        repack_rd(2)
    else:
        repack(2)
    stamp(e, 4)
    lg = e.newlab("csg")
    lskip = f"{lg}_skip" if HS else f"{lg}_end"
    if 'dg' in EXP:
        assert HS
        e(f"s_branch {lskip}")
    e(f"s_cmp_eq_u32 s{sTB}, 15")
    e(f"s_cbranch_scc1 {lskip}")
    e(f"s_cmp_ge_u32 s{sW}, 3")
    e(f"s_cbranch_scc1 {lskip}")
    e(f"s_mov_b32 s5, 159")
    e(f"s_cmp_lt_u32 s{sTB}, 6")
    e(f"s_cselect_b32 s4, s5, 191")
    e(f"v_min_u32 v{t[0]}, s4, v0")
    e(f"v_lshlrev_b32 v{t[1]}, 4, v{t[0]}")
    e(f"s_mov_b32 s{sCNT}, 200000")
    def gather():
        e(f"s_mul_i32 s4, s{sTB}, {16*3072}")
        e(f"s_add_u32 s4, s4, {PCS_REL}")
        for u in range(16):
            e(f"buffer_load_dwordx4 v[{xb+4*u}:{xb+4*u+3}], v{t[1]}, s[{SRDC}:{SRDC+3}], s4 offen sc1")
            if u < 15:
                e(f"s_add_u32 s4, s4, 3072")
    if HS:
        gather()
        repack_st(2)
        e("s_waitcnt vmcnt(5)")
        e(f"s_branch {lg}_chk")
    e.lab(lg)
    gather()
    e("s_waitcnt vmcnt(0)")
    e.lab(f"{lg}_chk")
    e(f"v_xor_b32 v{t[2]}, s{sNONCE}, v{xb+2}")
    for u in range(1, 16):
        e(f"v_xor_b32 v{t[3]}, s{sNONCE}, v{xb+4*u+2}")
        e(f"v_or_b32 v{t[2]}, v{t[2]}, v{t[3]}")
    e(f"v_cmp_ne_u32 vcc, 0, v{t[2]}")
    e("s_nop 1")
    e(f"s_cbranch_vccz {lg}_ok")
    e("s_sleep 4")
    e(f"s_sub_u32 s{sCNT}, s{sCNT}, 1")
    e(f"s_cmp_lg_u32 s{sCNT}, 0")
    e(f"s_cbranch_scc1 {lg}")
    e.lab(f"{lg}_ok")
    for u in range(1, 16):
        e(f"v_add_f32 v{xb}, v{xb}, v{xb+4*u}")
        e(f"v_add_f32 v{xb+1}, v{xb+1}, v{xb+4*u+1}")
    e(f"v_mov_b32 v{xb+2}, v{xb+1}")
    e(f"v_mov_b32 v{xb+1}, s{sNONCE}")
    e(f"v_mov_b32 v{xb+3}, s{sNONCE}")
    e(f"v_lshrrev_b32 v{t[2]}, 4, v{t[0]}")
    e(f"v_and_b32 v{t[3]}, 15, v{t[0]}")
    e(f"v_lshlrev_b32 v{t[3]}, 3, v{t[3]}")
    e(f"v_lshl_add_u32 v{t[3]}, v{t[2]}, 8, v{t[3]}")
    e(f"s_mul_i32 s4, s{sTB}, {384*8}")
    e(f"buffer_store_dwordx2 v[{xb}:{xb+1}], v{t[3]}, s[{SRDC}:{SRDC+3}], s4 offen sc1")
    e(f"buffer_store_dwordx2 v[{xb+2}:{xb+3}], v{t[3]}, s[{SRDC}:{SRDC+3}], s4 offen offset:128 sc1")
    if HS:
        e(f"s_branch {lg}_end")
        e.lab(lskip)
        repack_st(2)
    e.lab(f"{lg}_end")
    lend = f"{pfx}_h_end"
    e("s_waitcnt vmcnt(%d)" % (5 if HS else 0))
    e("s_barrier")
    repack(3)
    e(f"s_cmp_ge_u32 s{sTB}, 10")
    e(f"s_cbranch_scc1 {lend}")
    repack(4)
    e.lab(lend)
    stamp(e, 7)
    if finish is None:
        e("s_waitcnt vmcnt(0)")
        stamp(e, 5)
        stamp(e, 6, True)
        stamp_dump(e, 8, 0, sW, S_WS)
        e("s_endpgm")
    else:
        finish(e, "helper")
    return R.hi


def gen_k1(e, name, store_sc=""):
    e.l.append(kernel_header(name))
    prologue(e)
    hi = 0
    hi = max(hi, gemm(e, "qk", store_sc))
    hi = max(hi, gemm(e, "v", store_sc))
    hi = max(hi, gemm(e, "ffn", store_sc))
    hi = max(hi, helper(e, store_sc))
    e.lab("k1_exit")
    e("s_endpgm")
    return hi
```

```python
KNAME = "parallel_sum__sliding_block__glu_gated_reglu__prompt"

ACT_OFF = 0x0000000
ACT_ROW = 74 * 1024
ACT_SZ = 128 * ACT_ROW
QB_OFF = 0x0A00000
KB_OFF = 0x0D00000
QK_SZ = 16 * 64 * 2560
VB_OFF = 0x1000000
VB_SZ = 32 * 64 * 1280
W3_OFF = 0x1300000
W3_CB = 74 * 5120
W3_SZ = 8 * W3_CB

X_SZ = 2048 * 1280
WQKV_SZ = 640 * 3840
WG_SZ = 640 * 3456
WD_SZ = 1728 * 1280
WO_SZ = 640 * 1280


class E:
    def __init__(self):
        self.l = []
        self.nlab = 0

    def __call__(self, s=""):
        for x in s.split("\n"):
            self.l.append("    " + x.strip() if x.strip() and not x.strip().endswith(":") else x.strip())

    def lab(self, name):
        self.l.append(name + ":")

    NLAB = [0]
    def newlab(self, p="L"):
        E.NLAB[0] += 1
        return f"{p}_{E.NLAB[0]}"

    def c(self, s):
        self.l.append("    ; " + s)

    def text(self):
        return "\n".join(self.l) + "\n"


class Regs:
    def __init__(self, start, limit, pfx):
        self.n = start
        self.limit = limit
        self.pfx = pfx
        self.hi = start

    def a(self, cnt=1, align=1):
        if cnt >= 2 and align == 1:
            align = 2
        self.n = (self.n + align - 1) // align * align
        r = self.n
        self.n += cnt
        assert self.n <= self.limit, f"out of {self.pfx} regs ({self.n})"
        self.hi = max(self.hi, self.n)
        return r

    def mark(self):
        return self.n

    def reset(self, m):
        self.n = m


def v(i, n=1):
    return f"v{i}" if n == 1 else f"v[{i}:{i+n-1}]"


def s(i, n=1):
    return f"s{i}" if n == 1 else f"s[{i}:{i+n-1}]"


def srd(e, d, base_lo, off, size):
    if off == 0:
        e(f"s_mov_b32 s{d}, s{base_lo}")
        e(f"s_mov_b32 s{d+1}, s{base_lo+1}")
    else:
        o = off if isinstance(off, str) else hex(off)
        e(f"s_add_u32 s{d}, s{base_lo}, {o}")
        e(f"s_addc_u32 s{d+1}, s{base_lo+1}, 0")
    e(f"s_mov_b32 s{d+2}, {size if isinstance(size, str) else hex(size)}")
    e(f"s_mov_b32 s{d+3}, 0x00020000")


def interleave(e, mfmas, fillers):
    for i, m in enumerate(mfmas):
        e(m)
        if i < len(fillers):
            for f in fillers[i]:
                e(f)
    for fl in fillers[len(mfmas):]:
        for f in fl:
            e(f)


def spread(items, nslots, start=0):
    out = [[] for _ in range(nslots)]
    n = len(items)
    k = nslots - start
    for j, it in enumerate(items):
        out[start + min(k - 1, j * k // max(n, 1))].append(it)
    return out


def merge(*lists):
    n = max(len(x) for x in lists)
    out = [[] for _ in range(n)]
    for x in lists:
        for i, y in enumerate(x):
            out[i] += y
    return out


def kernel_header(name):
    return f""".globl {name}
.p2align 8
.type {name},@function
{name}:
"""


def kernel_desc(name, vgpr=256, sgpr=102):
    acc = min(256, (vgpr + 3) // 4 * 4)
    return f""".amdhsa_kernel {name}
  .amdhsa_next_free_vgpr {vgpr}
  .amdhsa_next_free_sgpr {sgpr}
  .amdhsa_accum_offset {acc}
  .amdhsa_group_segment_fixed_size 0
  .amdhsa_kernarg_size 80
  .amdhsa_user_sgpr_count 2
  .amdhsa_user_sgpr_kernarg_segment_ptr 1
  .amdhsa_system_sgpr_workgroup_id_x 1
.end_amdhsa_kernel
"""


PROF = False
PROF_OFF = 0x3000000
PROF_S0 = 84
PROF2 = []
NOSTAMP = set()
PCLK = []
def stamp(e, idx, real=False):
    if PCLK and idx in PCLK:
        P_ = PROF_S0
        e("s_memrealtime s[98:99]")
        e("s_waitcnt lgkmcnt(0)")
        e(f"s_mov_b32 s{P_ + (10 if idx == PCLK[0] else 12)}, s98")
        e("s_memtime s[98:99]")
        e("s_waitcnt lgkmcnt(0)")
        if idx == PCLK[0]:
            e(f"s_mov_b32 s{P_+11}, s98")
        else:
            e(f"s_sub_u32 s{P_+11}, s98, s{P_+11}")
        return
    if idx in NOSTAMP:
        return
    if idx in PROF2:
        e("s_memrealtime s[98:99]")
        e("s_waitcnt lgkmcnt(0)")
        e(f"s_mov_b32 s{PROF_S0+idx}, s98")
        return
    if not PROF:
        return
    if idx in NOSTAMP:
        return
    assert idx < 14
    e(f"{'s_memrealtime' if real else 's_memtime'} s[98:99]")
    e("s_waitcnt lgkmcnt(0)")
    e(f"s_mov_b32 s{PROF_S0+idx}, s98")

def tinstr():
    return "s_memrealtime s[98:99]" if PROF2 else "s_memtime s[98:99]"

def pstamp(e, idx):
    e(tinstr())
    e("s_waitcnt lgkmcnt(0)")
    e(f"s_mov_b32 s{PROF_S0+idx}, s98")

def stamp_dump(e, n, kidx, sW, ws_lo, vt=2):
    if not PROF:
        return
    e(f"s_lshl_b32 s98, s2, 3")
    e(f"s_add_u32 s98, s98, s{sW}")
    e(f"s_lshl_b32 s98, s98, 7")
    e(f"s_add_u32 s98, s98, {hex(PROF_OFF + kidx*0x40000)}")
    e(f"s_add_u32 s8, s{ws_lo}, s98")
    e(f"s_addc_u32 s9, s{ws_lo+1}, 0")
    e("s_mov_b32 s10, 128")
    e("s_mov_b32 s11, 0x00020000")
    e("s_mov_b64 exec, 1")
    e(f"v_mov_b32 v{vt+1}, 0")
    for i in range(n):
        e(f"v_mov_b32 v{vt}, s{PROF_S0+i}")
        e(f"buffer_store_dword v{vt}, v{vt+1}, s[8:11], 0 offen offset:{4*i}")
        e("s_nop 1")
    e("s_waitcnt vmcnt(0)")


import re as _re
_VR = _re.compile(r"\bv\[(\d+):(\d+)\]|\bv(\d+)\b")

def vregs(text):
    out = set()
    for m in _VR.finditer(text):
        if m.group(3) is not None:
            out.add(int(m.group(3)))
        else:
            out.update(range(int(m.group(1)), int(m.group(2)) + 1))
    return out

def autowait(lines, pending):
    out = []
    pending = list(pending)
    for ln in lines:
        st = ln.strip()
        op = st.split()[0] if st else ""
        if not st or st.startswith(";") or st.endswith(":"):
            out.append(ln); continue
        if op == "s_waitcnt":
            m = _re.search(r"lgkmcnt\((\d+)\)", st)
            if m:
                n = int(m.group(1))
                pending = pending[len(pending) - n:] if n < len(pending) else pending
            out.append(ln); continue
        if op.startswith("ds_"):
            ops = st[len(op):].split(",")
            if op.startswith("ds_read"):
                dst = vregs(ops[0]); use = vregs(",".join(ops[1:]))
            else:
                dst = set(); use = vregs(st[len(op):])
            need = use
        else:
            dst = None; need = vregs(st[len(op):])
        idx = -1
        for i, p in enumerate(pending):
            if p & need:
                idx = i
        if idx >= 0:
            n = min(15, len(pending) - 1 - idx)
            out.append(f"s_waitcnt lgkmcnt({n})")
            pending = pending[len(pending) - n:] if n else []
        out.append(ln)
        if dst is not None:
            pending.append(dst)
    return out, pending


_TRANS = ("v_exp_f32", "v_log_f32", "v_rcp_f32", "v_rsq_f32", "v_sqrt_f32", "v_sin_f32", "v_cos_f32")

def _split_ops(st):
    op = st.split()[0]
    rest = st[len(op):].split(";")[0]
    return op, [x.strip() for x in rest.split(",")]

def autohaz(lines):
    out = []
    ev = []
    clk = 0
    for ln in lines:
        st = ln.strip()
        if not st or st.startswith(";") or st.endswith(":"):
            out.append(ln); continue
        op, ops = _split_ops(st)
        if op == "s_nop":
            clk += int(ops[0]) + 1
            out.append(ln); continue
        is_mfma = op.startswith("v_mfma")
        is_valu = op.startswith("v_") and not is_mfma
        is_ds = op.startswith("ds_")
        is_vm = op.startswith("buffer_") or op.startswith("global_")
        rd, wr = set(), set()
        srcC = srcAB = set()
        if is_mfma:
            wr = vregs(ops[0]); srcAB = vregs(ops[1]) | vregs(ops[2]); srcC = vregs(ops[3]); rd = srcAB | srcC
        elif is_valu:
            if op.startswith("v_cmp") or op.startswith("v_readfirstlane") or op.startswith("v_readlane"):
                rd = vregs(",".join(ops[1:]))
            elif op.startswith("v_permlane32_swap") or op.startswith("v_permlane16_swap"):
                rd = vregs(",".join(ops)); wr = set(rd)
            else:
                wr = vregs(ops[0]); rd = vregs(",".join(ops[1:]))
                if op.startswith("v_fmac") or op.startswith("v_mac") or "_dpp" in op:
                    rd |= wr
        elif is_ds:
            if op.startswith("ds_read"):
                wr = vregs(ops[0]); rd = vregs(",".join(ops[1:]))
            else:
                rd = vregs(",".join(ops))
        elif is_vm:
            if "load" in op and " lds" not in st:
                wr = vregs(ops[0]); rd = vregs(",".join(ops[1:]))
            else:
                rd = vregs(",".join(ops))
        need = 0
        for (pos, kind, regs, n) in ev:
            d = 0
            if kind == "valu_w":
                if is_mfma and (regs & rd): d = 2
                if op.startswith("v_permlane") and (regs & rd): d = 2
                if op.startswith("v_readfirstlane") and (regs & rd): d = 1
            elif kind == "trans_w":
                if (is_valu or is_mfma or is_ds or is_vm) and (regs & rd): d = max(1, 2 if is_mfma else 1)
            elif kind == "mfma_w":
                lat = 12 if n == 8 else 8
                if is_mfma:
                    if regs & srcAB: d = lat
                    elif (regs & srcC) and not (regs == srcC and regs == wr): d = lat
                    elif (regs & wr) and regs != wr: d = lat
                elif (is_valu or is_ds or is_vm) and (regs & (rd | wr)): d = lat
            elif kind == "mfma_c":
                if is_valu and (regs & wr): d = 7 if n == 8 else 3
            elif kind == "store_d":
                if is_valu and (regs & wr): d = 2
            if d:
                need = max(need, pos + d + 1 - (clk + 1) + 0)
        need = 0
        for (pos, kind, regs, n) in ev:
            d = 0
            if kind == "valu_w":
                if is_mfma and (regs & rd): d = 2
                if op.startswith("v_permlane") and (regs & rd): d = 2
                if op.startswith("v_readfirstlane") and (regs & rd): d = 1
            elif kind == "trans_w":
                if (is_valu or is_ds or is_vm) and (regs & rd): d = 1
                if is_mfma and (regs & rd): d = 2
            elif kind == "mfma_w":
                lat = 12 if n == 8 else 8
                if is_mfma:
                    if regs & srcAB: d = lat
                    elif (regs & srcC) and not (regs == srcC and regs == wr): d = lat
                    elif (regs & wr) and regs != wr: d = lat
                elif (is_valu or is_ds or is_vm) and (regs & (rd | wr)): d = lat
            elif kind == "mfma_c":
                if is_valu and (regs & wr): d = 7 if n == 8 else 3
            elif kind == "store_d":
                if is_valu and (regs & wr): d = 2
            if d:
                need = max(need, d - (clk - pos - 1))
        while need > 0:
            k = min(need, 16)
            out.append(f"s_nop {k-1}")
            clk += k; need -= k
        out.append(ln)
        if is_mfma:
            n = 8 if "32x32" in op else 4
            ev.append((clk, "mfma_w", wr, n))
            if srcC and srcC != wr: ev.append((clk, "mfma_c", srcC, n))
        elif is_valu and wr:
            ev.append((clk, "trans_w" if op in _TRANS else "valu_w", wr, 0))
        elif is_vm and "store" in op and ("x4" in op or "x3" in op):
            ev.append((clk, "store_d", vregs(ops[0]), 0))
        elif is_ds and op.startswith("ds_write") and ("b128" in op or "b96" in op):
            ev.append((clk, "store_d", vregs(ops[1]), 0))
        clk += 1
        ev = [x for x in ev if clk - x[0] < 24]
    return out
```

```python
from common import *
import struct

def f2u(x):
    return struct.unpack("<I", struct.pack("<f", x))[0]

R_RING = 5
XSLOT = 8192
XR = 122880
P1_LDS = XR + R_RING * XSLOT
CSL = 0
RSL = 1536
NML = 2048

CSG_OFF = 0x1800000
STG_REL = 0x10000
PCS_REL = 0x20000
CSG_SZ = 0x100000

S_XP, S_WQKV, S_WO, S_GATE, S_UP, S_DOWN, S_OUT, S_DBG, S_WS = 40, 42, 44, 48, 50, 52, 54, 56, 58
SRDX, SRDW, SRDO = 8, 12, 16
sTB, sROLE, sW, sCNT, sWso, sXso, sWM0, sXM0 = 20, 21, 22, 23, 24, 25, 27, 28
sNONCE = 29
sT0, sT1, sT2, sT3 = 32, 33, 34, 35
sA, sB = 36, 37
sMASK = 39
sTRIG = 60
sMINE, sPOFF = 26, 30
SRDC, SRDD = 72, 76
EXP = set()
DEFER = []


def load_ptrs(e):
    e("s_load_dwordx16 s[40:55], s[0:1], 0")
    e("s_load_dwordx4 s[56:59], s[0:1], 64")


def prologue(e, pfx="k1"):
    import common
    if common.PROF and 'es' in EXP:
        e("s_memrealtime s[100:101]")
        e("s_waitcnt lgkmcnt(0)")
        e("s_mov_b32 s86, s100")
    e("s_cmp_ge_u32 s2, 256")
    e(f"s_cbranch_scc1 {pfx}_exit")
    load_ptrs(e)
    e("v_and_b32 v1, 63, v0")
    e("v_lshrrev_b32 v2, 6, v0")
    e("s_and_b32 s3, s2, 7")
    e("s_lshr_b32 s4, s2, 3")
    e(f"v_readfirstlane_b32 s{sW}, v2")
    e("s_and_b32 s5, s3, 1")
    e("s_lshl_b32 s5, s5, 3")
    e("s_and_b32 s6, s4, 7")
    e(f"s_add_u32 s{sTB}, s5, s6")
    e("s_lshr_b32 s5, s3, 1")
    e("s_lshl_b32 s5, s5, 2")
    e("s_lshr_b32 s6, s4, 3")
    if 'rm2' in EXP and 'rm3' not in EXP:
        e("s_lshr_b32 s7, s3, 2")
        e("s_lshl_b32 s7, s7, 2")
        e("s_xor_b32 s5, s5, s7")
    e(f"s_add_u32 s{sROLE}, s5, s6")
    e(f"s_add_u32 s{sROLE}, s{sROLE}, {6 if 'rm2' in EXP else 15}")
    e(f"s_and_b32 s{sROLE}, s{sROLE}, 15")
    tabs = {'rm4': [6, 7, 0, 1, 8, 9, 2, 3, 10, 11, 4, 5, 15, 12, 13, 14],
            'rm5': [6, 7, 0, 1, 8, 9, 2, 3, 15, 12, 13, 14, 10, 11, 4, 5],
            'rm6': [6, 0, 7, 1, 8, 2, 9, 3, 10, 4, 11, 5, 15, 12, 13, 14],
            'rm7': [6, 7, 8, 0, 9, 10, 1, 2, 11, 12, 3, 4, 15, 13, 14, 5]}
    for k_, tab in tabs.items():
        if k_ in EXP:
            assert sorted(tab) == list(range(16)) and 'rm2' in EXP
            lo = sum(v << (4 * j) for j, v in enumerate(tab[:8]))
            hi = sum(v << (4 * j) for j, v in enumerate(tab[8:]))
            e("s_lshr_b32 s5, s3, 1")
            e("s_lshl_b32 s5, s5, 2")
            e("s_lshr_b32 s6, s4, 3")
            e("s_add_u32 s5, s5, s6")
            e("s_lshl_b32 s5, s5, 2")
            e(f"s_mov_b32 s6, {hex(lo)}")
            e(f"s_mov_b32 s7, {hex(hi)}")
            e("s_lshr_b64 s[6:7], s[6:7], s5")
            e(f"s_and_b32 s{sROLE}, s6, 15")
    e(f"s_mov_b32 s{sMASK}, 0xffff0000")
    e(f"s_cmp_eq_u32 s{sROLE}, 15")
    e(f"s_cbranch_scc1 {pfx}_helper")
    e(f"s_cmp_ge_u32 s{sROLE}, 6")
    e(f"s_cbranch_scc1 {pfx}_ffn")
    e(f"s_cmp_ge_u32 s{sROLE}, 4")
    e(f"s_cbranch_scc1 {pfx}_v")
    e(f"s_branch {pfx}_qk")


def gemm(e, cls, store_sc="", finish=None, pfx="k1"):
    ffn = cls == "ffn"
    RR = R_RING
    NSTG = 20
    NT = 3 if ffn else 5
    NU = 2 if ffn else 1
    WSLOT = 24576 if ffn else 20480
    WROW = 384 if ffn else 640
    GROW = 3456 if ffn else 3840
    NCS = 384 if ffn else 320
    R = Regs(2, 256, "v")
    t = [R.a() for _ in range(8)]
    vWs = [R.a() for _ in range(3)]
    vXs = R.a()
    nset = 2 if RR > 3 else 1
    NWB = 3 if ffn else 2
    vWA = [[R.a() for i in range(NWB)] for st in range(nset)]
    vXB = [R.a() for _ in range(2)]
    vG = R.a(2, 2)
    vN = R.a()
    vGA = R.a()
    vSTA = R.a()
    vPA = R.a()
    vST = R.a(4, 4)
    vONE = R.a(4, 4)
    aCS = [R.a(4, 4) for i in range(NT)]
    fA = [[R.a(4, 4) for i in range(NT)] for b in range(2)]
    fB = [[R.a(4, 4) for u in range(NU)] for b in range(2)]
    fS = R.a(4, 4)
    acc = [[R.a(16, 4) for u in range(NU)] for i in range(NT)]
    L = 1

    e.lab(f"{pfx}_{cls}")
    e.c(f"---------------- setup {cls} ----------------")
    if ffn:
        e(f"s_and_b32 s{sA}, s{sW}, 1")
        e(f"s_lshr_b32 s{sB}, s{sW}, 1")
    else:
        e(f"s_and_b32 s{sA}, s{sW}, 3")
        e(f"s_lshr_b32 s{sB}, s{sW}, 2")
    if ffn:
        e(f"s_and_b32 s{sT0}, s{sW}, 3")
        e(f"s_lshr_b32 s{sT1}, s{sW}, 2")
        e(f"s_sub_u32 s{sT2}, s{sROLE}, 6")
        e(f"s_mul_i32 s{sT2}, s{sT2}, 384")
        e(f"s_mul_i32 s{sT3}, s{sT0}, {8*GROW}")
        e(f"s_add_u32 s{sT2}, s{sT2}, s{sT3}")
        e(f"s_lshl_b32 s{sT3}, s{sT1}, 2")
        e(f"s_mul_i32 s4, s{sT0}, 3072")
        e(f"s_mul_i32 s5, s{sT1}, 12288")
        e(f"s_add_u32 s{sWM0}, s4, s5")
        nper, magic = 24, 2731
        e(f"v_mov_b32 v{t[4]}, v{L}")
    else:
        e(f"s_mul_i32 s4, s{sW}, 3")
        e(f"s_lshl_b32 s5, s{sW}, 1")
        e(f"s_add_u32 s5, s5, 4")
        e(f"s_cmp_ge_u32 s{sW}, 4")
        e(f"s_cselect_b32 s4, s5, s4")
        e(f"s_lshl_b32 s{sWM0}, s4, 10")
        e(f"s_lshl_b32 s4, s4, 6")
        e(f"s_mul_i32 s{sT2}, s{sROLE}, 640")
        nper, magic = 40, 1639
        e(f"v_add_u32 v{t[4]}, s4, v{L}")
    e(f"s_mov_b32 s4, {magic}")
    e(f"s_mov_b32 s5, {GROW}")
    for i in range(3):
        e(f"v_add_u32 v{t[0]}, {64*i}, v{t[4]}")
        e(f"v_mul_lo_u32 v{t[1]}, v{t[0]}, s4")
        e(f"v_lshrrev_b32 v{t[1]}, 16, v{t[1]}")
        e(f"v_mul_u32_u24 v{t[2]}, {nper}, v{t[1]}")
        e(f"v_sub_u32 v{t[2]}, v{t[0]}, v{t[2]}")
        e(f"v_bfe_u32 v{t[3]}, v{t[1]}, 1, 1")
        if ffn:
            e(f"v_lshl_or_b32 v{t[3]}, v{t[3]}, 1, s{sT3}")
        else:
            e(f"v_lshlrev_b32 v{t[3]}, 2, v{t[3]}")
        e(f"v_xor_b32 v{t[2]}, v{t[2]}, v{t[3]}")
        e(f"v_mul_lo_u32 v{t[1]}, v{t[1]}, s5")
        e(f"v_lshl_add_u32 v{t[1]}, v{t[2]}, 4, v{t[1]}")
        e(f"v_add_u32 v{t[1]}, s{sT2}, v{t[1]}")
        e(f"v_subrev_u32 v{vWs[i]}, {1024*i}, v{t[1]}")
    e(f"s_lshl_b32 s4, s{sTB}, 7")
    e(f"s_lshl_b32 s5, s{sW}, 4")
    e(f"s_add_u32 s4, s4, s5")
    e(f"s_mul_i32 s4, s4, 1280")
    e(f"v_lshrrev_b32 v{t[0]}, 2, v{L}")
    e(f"v_bfe_u32 v{t[1]}, v{L}, 4, 2")
    e(f"v_and_b32 v{t[2]}, 3, v{L}")
    e(f"v_xor_b32 v{t[2]}, v{t[2]}, v{t[1]}")
    e(f"v_mul_u32_u24 v{t[0]}, 1280, v{t[0]}")
    e(f"v_lshl_add_u32 v{t[0]}, v{t[2]}, 4, v{t[0]}")
    e(f"v_add_u32 v{vXs}, s4, v{t[0]}")
    e(f"s_lshl_b32 s{sXM0}, s{sW}, 10")
    e(f"s_add_u32 s{sXM0}, s{sXM0}, {XR}")
    ROT = 4 if 'rot4' in EXP else 2
    if ROT == 2:
        e(f"s_lshr_b32 s6, s{sTB}, 3")
        e(f"s_mul_i32 s6, s6, 10")
        e(f"s_and_b32 s4, s{sTB}, 7")
        e(f"s_add_u32 s5, s4, 8")
        e(f"s_cmp_lt_u32 s4, 2")
        e(f"s_cselect_b32 s5, s5, 99")
    else:
        e(f"s_lshr_b32 s6, s{sTB}, 2")
        e(f"s_mul_i32 s6, s6, 5")
        e(f"s_and_b32 s4, s{sTB}, 3")
        e(f"s_cmp_eq_u32 s4, 0")
        e(f"s_cselect_b32 s5, 4, 99")
    e(f"s_mul_i32 s{sWso}, s6, {32*GROW}")
    e(f"s_lshl_b32 s{sXso}, s6, 6")
    nit0 = NSTG // RR - 1
    for sl in range(RR):
        e(f"s_mov_b32 s{sTRIG+sl}, 99")
        for pr in (4, 5):
            e(f"s_cmp_eq_u32 s{pr}, {sl}")
            e(f"s_cselect_b32 s{sTRIG+sl}, {nit0}, s{sTRIG+sl}")
            e(f"s_cmp_eq_u32 s{pr}, {sl+5}")
            e(f"s_cselect_b32 s{sTRIG+sl}, {nit0-1}, s{sTRIG+sl}")
    e(f"s_lshl_b32 s5, s{sROLE}, 4")
    e(f"s_add_u32 s4, s{sTB}, s5")
    e(f"s_mul_i32 s4, s4, 12")
    e(f"s_mul_i32 s5, s{sB}, {NT}")
    e(f"s_add_u32 s4, s4, s5")
    e(f"s_lshl_b32 s4, s4, 8")
    e(f"s_add_u32 s{sPOFF}, s4, {PCS_REL}")
    if ffn:
        e(f"s_cmp_eq_u32 s{sA}, 0")
        e(f"s_cselect_b32 s{sMINE}, 3, 4")
    else:
        e(f"s_lshl_b32 s{sMINE}, 1, s{sA}")
        e(f"s_cmp_eq_u32 s{sA}, 0")
        e(f"s_cselect_b32 s{sMINE}, 17, s{sMINE}")
    e("s_waitcnt lgkmcnt(0)")
    stamp(e, 0, True)
    stamp(e, 1)
    if 'rm2' in EXP and ffn:
        l0 = e.newlab("k1n")
        e(f"s_or_b32 s4, s2, s{sW}")
        e("s_cmp_lg_u32 s4, 0")
        e(f"s_cbranch_scc1 {l0}")
        srd(e, SRDD, S_DBG, 0, 256)
        e("s_memrealtime s[6:7]")
        e("s_waitcnt lgkmcnt(0)")
        e("s_or_b32 s6, s6, 1")
        e(f"v_mov_b32 v{t[0]}, s6")
        e("s_mov_b64 exec, 1")
        e(f"buffer_store_dword v{t[0]}, off, s[{SRDD}:{SRDD+3}], 0 sc1")
        e("s_mov_b64 exec, -1")
        e.lab(l0)
    srd(e, SRDX, S_XP, 0, X_SZ)
    if ffn:
        e(f"s_cmp_ge_u32 s{sW}, 4")
        e(f"s_cselect_b32 s{SRDW}, s{S_UP}, s{S_GATE}")
        e(f"s_cselect_b32 s{SRDW+1}, s{S_UP+1}, s{S_GATE+1}")
        e(f"s_mov_b32 s{SRDW+2}, {hex(WG_SZ)}")
        e(f"s_mov_b32 s{SRDW+3}, 0x00020000")
    else:
        srd(e, SRDW, S_WQKV, 0, WQKV_SZ)

    def dma_group(slot, var):
        nw = 3 if (ffn or var == 0) else 2
        hot = 'hot' in EXP
        it = [[f"s_add_u32 m0, s{sXM0}, {slot*XSLOT}", "s_nop 0",
               f"buffer_load_dwordx4 v{vXs}, s[{SRDX}:{SRDX+3}], s{sXso} offen lds"]]
        it.append([f"s_add_u32 m0, s{sWM0}, {slot*WSLOT}", f"s_add_u32 s{sXso}, s{sXso}, {0 if hot else 64}",
                   f"buffer_load_dwordx4 v{vWs[0]}, s[{SRDW}:{SRDW+3}], s{sWso} offen lds"])
        for i in range(1, nw):
            it.append([f"buffer_load_dwordx4 v{vWs[i]}, s[{SRDW}:{SRDW+3}], s{sWso} offen offset:{1024*i} lds"])
        it[-1] += [f"s_add_u32 s{sWso}, s{sWso}, {0 if hot else 32*GROW}",
                   f"s_cmp_eq_u32 s{sXso}, 1280",
                   f"s_cselect_b32 s{sXso}, 0, s{sXso}",
                   f"s_cselect_b32 s{sWso}, 0, s{sWso}"]
        return it

    def gsize(var):
        return 4 if (ffn or var == 0) else 3

    setup = []
    q = setup.append
    g, r4, c4, bb = t[0], t[1], t[2], t[3]
    q(f"v_lshrrev_b32 v{g}, 4, v{L}")
    q(f"v_bfe_u32 v{r4}, v{L}, 2, 2")
    q(f"v_and_b32 v{c4}, 3, v{L}")
    q(f"v_bfe_u32 v{bb}, v{L}, 3, 1")
    q(f"v_lshrrev_b32 v{t[4]}, 1, v{g}")
    q(f"v_lshl_add_u32 v{t[4]}, v{t[4]}, 3, v{r4}")
    q(f"v_mul_u32_u24 v{t[4]}, {WROW}, v{t[4]}")
    q(f"v_and_b32 v{t[5]}, 1, v{g}")
    if ffn:
        q(f"v_mul_u32_u24 v{t[6]}, 12288, v{t[5]}")
        q(f"v_add_u32 v{t[4]}, v{t[4]}, v{t[6]}")
        q(f"v_and_b32 v{t[6]}, 1, v{c4}")
        q(f"v_lshl_add_u32 v{t[4]}, v{t[6]}, 3, v{t[4]}")
        q(f"v_lshlrev_b32 v{t[5]}, 2, v{t[5]}")
        q(f"v_lshl_add_u32 v{t[5]}, v{bb}, 1, v{t[5]}")
        q(f"v_lshrrev_b32 v{t[6]}, 1, v{c4}")
        q(f"s_mul_i32 s4, s{sB}, 6")
        for i in range(3):
            q(f"v_add3_u32 v{t[7]}, v{t[6]}, s4, {2*i}")
            q(f"v_xor_b32 v{t[7]}, v{t[7]}, v{t[5]}")
            q(f"v_lshl_add_u32 v{vWA[0][i]}, v{t[7]}, 4, v{t[4]}")
            if nset > 1:
                q(f"v_add_u32 v{vWA[1][i]}, {3*WSLOT}, v{vWA[0][i]}")
    else:
        q(f"v_lshl_add_u32 v{t[4]}, v{t[5]}, 5, v{t[4]}")
        q(f"v_lshl_add_u32 v{t[4]}, v{c4}, 3, v{t[4]}")
        q(f"s_mul_i32 s4, s{sB}, 320")
        q(f"v_add_u32 v{t[4]}, s4, v{t[4]}")
        q(f"v_lshlrev_b32 v{t[5]}, 6, v{bb}")
        q(f"v_sub_u32 v{t[6]}, 0, v{t[5]}")
        q(f"s_cmp_eq_u32 s{sB}, 0")
        q(f"s_cselect_b64 vcc, -1, 0")
        q(f"v_cndmask_b32 v{t[7]}, v{t[6]}, v{t[5]}, vcc")
        q(f"v_add_u32 v{vWA[0][0]}, v{t[4]}, v{t[7]}")
        q(f"v_sub_u32 v{vWA[0][1]}, v{t[4]}, v{t[7]}")
        if nset > 1:
            q(f"v_add_u32 v{vWA[1][0]}, {3*WSLOT}, v{vWA[0][0]}")
            q(f"v_add_u32 v{vWA[1][1]}, {3*WSLOT}, v{vWA[0][1]}")
    q(f"v_and_b32 v{t[0]}, 31, v{L}")
    q(f"v_bfe_u32 v{t[1]}, v{L}, 2, 2")
    q(f"v_lshrrev_b32 v{t[2]}, 5, v{L}")
    q(f"s_lshl_b32 s5, s{sA}, {12 if ffn else 11}")
    q(f"s_add_u32 s5, s5, {XR}")
    q(f"v_lshlrev_b32 v{t[0]}, 6, v{t[0]}")
    q(f"v_add_u32 v{t[0]}, s5, v{t[0]}")
    q(f"v_xor_b32 v{t[3]}, v{t[2]}, v{t[1]}")
    q(f"v_lshl_add_u32 v{vXB[0]}, v{t[3]}, 4, v{t[0]}")
    q(f"v_xor_b32 v{vXB[1]}, 32, v{vXB[0]}")
    q(f"v_min_u32 v{t[0]}, {NCS-1}, v0")
    q(f"v_lshlrev_b32 v{vGA}, 2, v{t[0]}")
    q(f"v_and_b32 v{t[0]}, 127, v0")
    q(f"v_lshlrev_b32 v{vSTA}, 2, v{t[0]}")
    q(f"v_and_b32 v{t[0]}, 15, v{L}")
    q(f"v_lshlrev_b32 v{vPA}, 4, v{t[0]}")
    q(f"v_and_b32 v{t[0]}, 31, v{L}")
    q(f"v_mov_b32 v{t[1]}, 0x3f803f80")
    q(f"v_cmp_eq_u32 vcc, 0, v{t[0]}")
    q(f"v_cmp_eq_u32 s[4:5], 17, v{t[0]}")
    q("s_nop 1")
    q("s_or_b64 vcc, vcc, s[4:5]")
    q("s_nop 1")
    q(f"v_cndmask_b32 v{vONE}, 0, v{t[1]}, vcc")
    for r in range(1, 4):
        q(f"v_mov_b32 v{vONE+r}, v{vONE}")
    for i in range(NT):
        for r in range(4):
            q(f"v_mov_b32 v{aCS[i]+r}, 0")
    zero = [f"v_mov_b32 v{acc[i][u]+r}, 0" for i in range(NT) for u in range(NU) for r in range(16)]
    setup_all = setup + zero

    def reads_w(slot, p):
        out = []
        for i in range(NT):
            st_, sl = (1, slot - 3) if slot >= 3 else (0, slot)
            if ffn:
                base = vWA[st_][i]
                off = sl * WSLOT + p * 16 * WROW
            else:
                base = vWA[st_][i & 1]
                off = sl * WSLOT + p * 16 * WROW + 64 * i
            a = fA[p][i]
            out.append([f"ds_read_b64_tr_b16 v[{a}:{a+1}], v{base} offset:{off}",
                        f"ds_read_b64_tr_b16 v[{a+2}:{a+3}], v{base} offset:{off+4*WROW}"])
        return out

    def reads_x(slot, p):
        return [f"ds_read_b128 v[{fB[p][u]}:{fB[p][u]+3}], v{vXB[p]} offset:{slot*XSLOT+2048*u}" for u in range(NU)]

    def read_slots(slot, p):
        rw, rx = reads_w(slot, p), reads_x(slot, p)
        if ffn:
            return [rw[0], [rx[0]], [rx[1]], rw[1], rw[2], []]
        return [rw[0] + rx, rw[1], rw[2], rw[3], rw[4]]

    def mfmas(p):
        out = []
        for i in range(NT):
            for u in range(NU):
                a, b, c = fA[p][i], fB[p][u], acc[i][u]
                if cls == "v":
                    a, b = b, a
                out.append(f"v_mfma_f32_32x32x16_bf16 v[{c}:{c+15}], v[{a}:{a+3}], v[{b}:{b+3}], v[{c}:{c+15}]")
        return out

    NS = NT * NU

    def weave(ms, fl):
        out = []
        for i, m in enumerate(ms):
            out.append(m)
            if i < len(fl):
                out.extend(fl[i])
        return out

    def stage(n, slot, var, fifo, last_group, extra0=None, extra1=None, force_vm=None, mid=None, post=None):
        body = []
        G = gsize(var)
        fl = read_slots(slot, 1)
        fl = [list(x) for x in fl]
        if var == 1 and 'nodma' not in EXP:
            gid = None if n is None else n + RR - 2
            if gid is None or gid <= last_group:
                items = dma_group((slot - 2) % RR, var)
                for k_, it in enumerate(items):
                    fl[min(NS - 1, 1 + k_)] += it
                fifo.append((gid, len(items)))
        if extra0:
            fl = merge(fl, extra0)
            fifo.append(("cs", 2))
        body += weave(mfmas(0), fl)
        if mid: body += mid
        if n is None:
            vm = G * (RR - 3)
        else:
            vm = 0
            seen = False
            for gid, cnt in fifo:
                if seen: vm += cnt
                if gid == n + 1: seen = True
            assert seen or n == NSTG - 1
            if force_vm is not None: vm = force_vm
        if n is None or n < NSTG - 1:
            if 'nodma' not in EXP:
                body.append(f"s_waitcnt vmcnt({vm})")
            body.append("s_barrier")
        if post: body += post
        nslot = (slot + 1) % RR
        if n is None or n < NSTG - 1:
            fl = [list(x) for x in read_slots(nslot, 0)]
        else:
            fl = [[] for _ in range(NS)]
        if var == 0 and 'nodma' not in EXP:
            gid = None if n is None else n + RR - 1
            if gid is None or gid <= last_group:
                items = dma_group((slot - 1) % RR, var)
                for k_, it in enumerate(items):
                    fl[min(NS - 1, 1 + k_)] += it
                fifo.append((gid, len(items)))
        if extra1:
            fl = merge(fl, extra1)
        body += weave(mfmas(1), fl)
        return body

    gl_load = [f"v_lshlrev_b32 v{t[1]}, 1, v{vGA}",
               f"v_lshlrev_b32 v{t[2]}, 2, v{vSTA}",
               f"s_mul_i32 s4, s{sROLE}, {384*8}",
               f"s_lshl_b32 s5, s{sTB}, 11",
               f"s_add_u32 s5, s5, {STG_REL}",
               f"buffer_load_dwordx2 v[{vG}:{vG+1}], v{t[1]}, s[{SRDC}:{SRDC+3}], s4 offen sc1",
               f"buffer_load_dwordx4 v[{vST}:{vST+3}], v{t[2]}, s[{SRDC}:{SRDC+3}], s5 offen sc1"]
    gl_test = [f"v_cmp_ne_u32 vcc, s{sNONCE}, v{vG+1}",
               f"v_cmp_ne_u32 s[6:7], s{sNONCE}, v{vST+2}",
               "s_nop 1",
               "s_or_b64 vcc, vcc, s[6:7]"]

    for var in range(2):
        lv = f"{pfx}_{cls}_v{var}"
        if var == 0:
            e(f"s_cmp_ge_u32 s{sW}, 4")
            e(f"s_cbranch_scc1 {pfx}_{cls}_v1")
        else:
            e.lab(lv)
        ngp = ngp_all = RR - 1 if var == 0 else RR - 2
        if 'fs' in EXP:
            ngp = 2
            for x_ in EXP:
                if x_.startswith("fsn="): ngp = min(ngp_all, int(x_[4:]))
        chunks = [setup_all[k * len(setup_all) // ngp:(k + 1) * len(setup_all) // ngp] for k in range(ngp)]
        fifo = []
        if 'ps' in EXP: pstamp(e, 8)
        for gi in range(ngp):
            for it in dma_group(gi, var):
                for x in it: e(x)
            fifo.append((gi, gsize(var)))
            for x in chunks[gi]: e(x)
        srd(e, SRDD, S_DBG, 0, 256)
        srd(e, SRDC, S_WS, CSG_OFF, CSG_SZ)
        ntouch = 0
        if 'touch' in EXP:
            nl, mg, sh = (3, 171, 9) if ffn else (5, 205, 10)
            rows = 20 if ffn else 10
            e(f"v_min_u32 v{t[0]}, {rows*nl-1}, v{L}")
            e(f"v_mul_u32_u24 v{t[1]}, {mg}, v{t[0]}")
            e(f"v_lshrrev_b32 v{t[1]}, {sh}, v{t[1]}")
            e(f"v_mul_u32_u24 v{t[2]}, {nl}, v{t[1]}")
            e(f"v_sub_u32 v{t[0]}, v{t[0]}, v{t[2]}")
            e(f"s_and_b32 s4, s{sTB}, 7")
            e(f"s_mul_i32 s4, s4, 80")
            e(f"s_and_b32 s5, s{sW}, {3 if ffn else 7}")
            e(f"s_mul_i32 s5, s5, {rows}")
            e(f"s_add_u32 s4, s4, s5")
            e(f"s_mul_i32 s4, s4, {GROW}")
            if ffn:
                e(f"s_sub_u32 s5, s{sROLE}, 6")
                e(f"s_mul_i32 s5, s5, 384")
            else:
                e(f"s_mul_i32 s5, s{sROLE}, 640")
            e(f"s_add_u32 s4, s4, s5")
            e(f"v_mul_u32_u24 v{t[1]}, {GROW}, v{t[1]}")
            e(f"v_lshl_add_u32 v{t[0]}, v{t[0]}, 7, v{t[1]}")
            e(f"buffer_load_dword v{t[4]}, v{t[0]}, s[{SRDW}:{SRDW+3}], s4 offen")
            ntouch += 1
            if 'touchx' in EXP:
                e(f"v_min_u32 v{t[2]}, 39, v{L}")
                e(f"v_mul_u32_u24 v{t[1]}, 205, v{t[2]}")
                e(f"v_lshrrev_b32 v{t[1]}, 11, v{t[1]}")
                e(f"v_mul_u32_u24 v{t[3]}, 10, v{t[1]}")
                e(f"v_sub_u32 v{t[2]}, v{t[2]}, v{t[3]}")
                e(f"s_bfe_u32 s4, s2, 0x20006")
                e(f"s_lshl_b32 s4, s4, 5")
                e(f"s_lshl_b32 s5, s{sW}, 2")
                e(f"s_add_u32 s4, s4, s5")
                e(f"s_lshl_b32 s5, s{sTB}, 7")
                e(f"s_add_u32 s4, s4, s5")
                e(f"s_mul_i32 s4, s4, 1280")
                e(f"v_mul_u32_u24 v{t[1]}, 1280, v{t[1]}")
                e(f"v_lshl_add_u32 v{t[2]}, v{t[2]}, 7, v{t[1]}")
                e(f"buffer_load_dword v{t[5]}, v{t[2]}, s[{SRDX}:{SRDX+3}], s4 offen")
                ntouch += 1
        vm0 = gsize(var) * (ngp - 1) + ntouch
        if 'ps' in EXP: pstamp(e, 9)
        e(f"s_waitcnt vmcnt({vm0})")
        e("s_barrier")
        if 'es' not in EXP: stamp(e, 2)
        pro = []
        rs0 = read_slots(0, 0)
        for x in rs0: pro += x
        pro, pend = autowait(pro, [])
        for x in pro: e(x)
        for gi in range(ngp, ngp_all):
            for it in dma_group(gi, var):
                for x in it: e(x)
        nit = NSTG // RR - 1
        e(f"s_mov_b32 s{sCNT}, {nit}")
        if var == 1 and 'noprio' not in EXP:
            e("s_setprio 1")
        loop = f"{pfx}_{cls}_loop{var}"
        e.lab(loop)
        body = []
        ff = []
        ool = []
        def cs_block(lab):
            b = [f"{lab}:", "s_waitcnt lgkmcnt(0)"]
            for i in range(NT):
                b += [f"s_bitcmp1_b32 s{sMINE}, {i}", f"s_cbranch_scc0 {lab}_s{i}"]
                for p in range(2):
                    b.append(f"v_mfma_f32_16x16x32_bf16 v[{aCS[i]}:{aCS[i]+3}], v[{vONE}:{vONE+3}], v[{fA[p][i]}:{fA[p][i]+3}], v[{aCS[i]}:{aCS[i]+3}]")
                b.append(f"{lab}_s{i}:")
            b.append(f"s_branch {lab}_back")
            return b
        DG0, DGI = 0, 1
        for x_ in EXP:
            if x_.startswith("dg0="): DG0 = int(x_[4:])
            if x_.startswith("dgi="): DGI = int(x_[4:])
        for st in range(RR):
            mid = post = ex0 = None
            lab = e.newlab("k1cs")
            mid = [f"s_cmp_eq_u32 s{sCNT}, s{sTRIG+st}", f"s_cbranch_scc1 {lab}", f"{lab}_back:"]
            ool += cs_block(lab)
            if st == 0 and 'ps' in EXP:
                import common
                lab = e.newlab("k1ps")
                mid += [f"s_branch {lab}", f"{lab}_back:"]
                ool += [f"{lab}:", common.tinstr(), "s_waitcnt lgkmcnt(0)"]
                if 'clk' in EXP:
                    P_ = common.PROF_S0
                    ool += [f"s_cmp_eq_u32 s{sCNT}, 2", f"s_cselect_b32 s{P_+10}, s98, s{P_+10}",
                            f"s_cmp_eq_u32 s{sCNT}, 1", f"s_cselect_b32 s{P_+12}, s98, s{P_+12}",
                            "s_memtime s[98:99]", "s_waitcnt lgkmcnt(0)",
                            f"s_cmp_eq_u32 s{sCNT}, 2", f"s_cselect_b32 s{P_+11}, s98, s{P_+11}",
                            f"s_sub_u32 s98, s98, s{P_+11}", f"s_add_u32 s98, s98, s{sNONCE}",
                            f"s_cmp_eq_u32 s{sCNT}, 1", f"s_cselect_b32 s{P_+11}, s98, s{P_+11}"]
                for c_ in (3, 2, 1) if 'clk' not in EXP else ():
                    ool += [f"s_cmp_eq_u32 s{sCNT}, {c_}", f"s_cselect_b32 s{common.PROF_S0+13-c_}, s98, s{common.PROF_S0+13-c_}"]
                ool += [f"s_branch {lab}_back"]
            if 'ps2' in EXP:
                import common
                lab = e.newlab("k1ps")
                mid += [f"s_cmp_eq_u32 s{sCNT}, {nit}", f"s_cbranch_scc1 {lab}"]
                if st == 0: mid += [f"s_cmp_eq_u32 s{sCNT}, {nit-1}", f"s_cbranch_scc1 {lab}b"]
                mid += [f"{lab}_back:"]
                ool += [f"{lab}:", "s_memtime s[98:99]", "s_waitcnt lgkmcnt(0)", f"s_mov_b32 s{common.PROF_S0+8+st}, s98", f"s_branch {lab}_back"]
                if st == 0:
                    ool += [f"{lab}b:", "s_memtime s[98:99]", "s_waitcnt lgkmcnt(0)", f"s_mov_b32 s{common.PROF_S0+13}, s98", f"s_branch {lab}_back"]
            if st == 2:
                lab = e.newlab("k1nl")
                mid += [f"s_cmp_eq_u32 s{sCNT}, {nit}", f"s_cbranch_scc0 {lab}",
                        f"buffer_load_dword v{vN}, off, s[{SRDD}:{SRDD+3}], 0 sc1", f"{lab}:"]
            if st == 4:
                lab = e.newlab("k1pub")
                post = [f"s_cmp_eq_u32 s{sCNT}, {nit if 'rot4' in EXP and 'publate' not in EXP else nit-1}", f"s_cbranch_scc1 {lab}", f"{lab}_back:"]
                ool += [f"{lab}:",
                        "s_nop 7",
                        f"s_mov_b32 s4, 200000",
                        f"{lab}_n:",
                        f"v_readfirstlane_b32 s{sNONCE}, v{vN}",
                        f"s_cmp_lg_u32 s{sNONCE}, 0",
                        f"s_cbranch_scc1 {lab}_ok",
                        "s_sleep 2",
                        f"buffer_load_dword v{vN}, off, s[{SRDD}:{SRDD+3}], 0 sc1",
                        "s_waitcnt vmcnt(0)",
                        "s_sub_u32 s4, s4, 1",
                        "s_cmp_lg_u32 s4, 0",
                        f"s_cbranch_scc1 {lab}_n",
                        f"{lab}_ok:",
                        "s_mov_b64 exec, 0xffff"]
                for i in range(NT):
                    ool += [f"s_bitcmp1_b32 s{sMINE}, {i}", f"s_cbranch_scc0 {lab}_s{i}",
                            f"v_mov_b32 v{aCS[i]+2}, s{sNONCE}",
                            f"v_mov_b32 v{aCS[i]+3}, s{sNONCE}",
                            f"buffer_store_dwordx4 v[{aCS[i]}:{aCS[i]+3}], v{vPA}, s[{SRDC}:{SRDC+3}], s{sPOFF} offen offset:{256*i} sc1",
                            f"{lab}_s{i}:"]
                ool += ["s_mov_b64 exec, -1", f"s_branch {lab}_back"]
            if 'dg' in EXP and var == 0 and st in (DG0, DG0 + 2):
                PER = 12 if ffn else 10
                lab = e.newlab("k1dg")
                assert post is None
                post = [f"s_cmp_eq_u32 s{sCNT}, {DGI}", f"s_cbranch_scc1 {lab}", f"{lab}_back:"]
                ld = [f"s_mul_i32 s5, s{sROLE}, {16*3072}",
                      f"s_add_u32 s5, s5, {PCS_REL}",
                      f"buffer_load_dwordx4 v[{vST}:{vST+3}], v{t[1]}, s[{SRDC}:{SRDC+3}], s5 offen sc1"]
                ool += [f"{lab}:", f"s_cmp_ge_u32 s{sW}, 3", f"s_cbranch_scc1 {lab}_back"]
                if st == DG0:
                    ool += [f"v_lshrrev_b32 v{t[0]}, 4, v{L}",
                            f"s_lshl_b32 s4, s{sW}, 2",
                            f"v_add_u32 v{t[0]}, s4, v{t[0]}",
                            f"v_min_u32 v{t[0]}, {PER-1}, v{t[0]}",
                            f"s_mul_i32 s4, s{sTB}, {PER}",
                            f"v_add_u32 v{t[0]}, s4, v{t[0]}",
                            f"v_and_b32 v{t[1]}, 15, v{L}",
                            f"v_mul_u32_u24 v{t[1]}, 3072, v{t[1]}",
                            f"v_lshl_add_u32 v{t[1]}, v{t[0]}, 4, v{t[1]}"] + ld
                else:
                    ool += ["s_mov_b32 s4, 200000",
                            f"{lab}_l:",
                            f"v_cmp_ne_u32 vcc, s{sNONCE}, v{vST+2}",
                            "s_nop 1",
                            f"s_cbranch_vccz {lab}_ok",
                            "s_sleep 2"] + ld + [
                            "s_waitcnt vmcnt(0)",
                            "s_sub_u32 s4, s4, 1",
                            "s_cmp_lg_u32 s4, 0",
                            f"s_cbranch_scc1 {lab}_l",
                            f"{lab}_ok:"]
                    for k_ in (8, 4, 2, 1):
                        ool += ["s_nop 1",
                                f"v_add_f32_dpp v{vST}, v{vST}, v{vST} row_ror:{k_} row_mask:0xf bank_mask:0xf",
                                f"v_add_f32_dpp v{vST+1}, v{vST+1}, v{vST+1} row_ror:{k_} row_mask:0xf bank_mask:0xf"]
                    ool += [f"v_lshrrev_b32 v{t[2]}, 4, v{t[0]}",
                            f"v_and_b32 v{t[3]}, 15, v{t[0]}",
                            f"v_lshlrev_b32 v{t[3]}, 3, v{t[3]}",
                            f"v_lshl_add_u32 v{t[3]}, v{t[2]}, 8, v{t[3]}",
                            f"v_mov_b32 v{vST+2}, v{vST+1}",
                            f"v_mov_b32 v{vST+1}, s{sNONCE}",
                            f"v_mov_b32 v{vST+3}, s{sNONCE}",
                            f"s_mul_i32 s4, s{sROLE}, {384*8}",
                            "s_mov_b32 exec_lo, 0x00010001",
                            "s_mov_b32 exec_hi, 0x00010001",
                            f"buffer_store_dwordx2 v[{vST}:{vST+1}], v{t[3]}, s[{SRDC}:{SRDC+3}], s4 offen sc1",
                            f"buffer_store_dwordx2 v[{vST+2}:{vST+3}], v{t[3]}, s[{SRDC}:{SRDC+3}], s4 offen offset:128 sc1",
                            "s_mov_b64 exec, -1"]
                ool += [f"s_branch {lab}_back"]
            body += stage(None, st, var, ff, 99, mid=mid, post=post)
        b1, pend1 = autowait(body, pend)
        b2, pend2 = autowait(body, pend1)
        assert b1 == b2, "loop waits not periodic"
        for x in b1: e(x)
        e(f"s_sub_u32 s{sCNT}, s{sCNT}, 1")
        e(f"s_cmp_lg_u32 s{sCNT}, 0")
        e(f"s_cbranch_scc1 {loop}")
        if 'ps' in EXP:
            pstamp(e, 13)
        n0 = NSTG - RR
        hi_g = n0 + RR - 2 if var == 0 else n0 + RR - 3
        ff = [(g_, gsize(var)) for g_ in range(n0 + 1, hi_g + 1)]
        tail = []
        lretry, lback = e.newlab("k1retry"), e.newlab("k1back")
        for st in range(RR):
            n = n0 + st
            ex0 = ex1 = None
            fv = None
            if n == NSTG - 2:
                ex0 = [[] for _ in range(NS)]
                ex0[NS - 1] = gl_load
            if n == NSTG - 1:
                ex1 = [[] for _ in range(NS)]
                ex1[2] = ["s_waitcnt vmcnt(0)"] + gl_test + [
                          (f"s_cbranch_vccnz {lretry}" if 'nowait' not in EXP else "s_nop 0"),
                          f"{lback}:",
                          f"ds_write_b32 v{vGA}, v{vG} offset:{CSL}",
                          f"ds_write_b32 v{vSTA}, v{vST} offset:{RSL}",
                          f"ds_write_b32 v{vSTA}, v{vST+1} offset:{NML}"]
            sb = stage(n, st, var, ff, NSTG - 1, ex0, ex1, fv)
            tail += sb
        tl, pend3 = autowait(tail, pend1)
        for x in tl: e(x)
        e("s_waitcnt lgkmcnt(0)")
        e("s_barrier")
        if var == 0:
            e(f"s_branch {pfx}_{cls}_epi")
        ret = [f"{lretry}:", f"s_mov_b32 s{sCNT}, 200000", f"{lretry}_l:", "s_sleep 2"] + gl_load + [
            "s_waitcnt vmcnt(0)"] + gl_test + [
            f"s_cbranch_vccz {lback}",
            f"s_sub_u32 s{sCNT}, s{sCNT}, 1",
            f"s_cmp_lg_u32 s{sCNT}, 0",
            f"s_cbranch_scc1 {lretry}_l",
            f"s_branch {lback}"]
        if var == 0:
            for x in ret + ool: e(x)
        else:
            e(f"s_branch {pfx}_{cls}_epi")
            for x in ret + ool: e(x)

    e.lab(f"{pfx}_{cls}_epi")
    e("s_setprio 0")
    stamp(e, 3)
    e(f"v_and_b32 v{t[0]}, 31, v{L}")
    e(f"s_lshl_b32 s4, s{sA}, {6 if ffn else 5}")
    e(f"v_add_u32 v{t[0]}, s4, v{t[0]}")
    e(f"v_lshlrev_b32 v{t[0]}, 2, v{t[0]}")
    vNM = [R.a() for _ in range(NU)]
    vRS = [R.a() for _ in range(NU)]
    if cls != "v":
        for u in range(NU):
            e(f"ds_read_b32 v{vNM[u]}, v{t[0]} offset:{128*u+NML}")
            e(f"ds_read_b32 v{vRS[u]}, v{t[0]} offset:{128*u+RSL}")
    h = t[2]
    e(f"v_lshrrev_b32 v{h}, 5, v{L}")
    csa = t[3]
    e(f"s_mul_i32 s4, s{sB}, {NT*128}")
    e(f"v_lshlrev_b32 v{csa}, 4, v{h}")
    e(f"v_add_u32 v{csa}, s4, v{csa}")
    sc = store_sc
    frag0 = fA[0][0]
    nfr = (2 * NT + 2 * NU) * 4 + 4
    assert fS + 4 == frag0 + nfr
    if ffn:
        csr = [frag0, frag0 + 16, R.a(16, 4)]
        assert nfr >= 32
        for i in range(3):
            for a in range(4):
                e(f"ds_read_b128 v[{csr[i]+4*a}:{csr[i]+4*a+3}], v{csa} offset:{CSL+128*i+32*a}")
        srd(e, SRDO, S_WS, ACT_OFF, ACT_SZ)
        e(f"s_lshl_b32 s4, s{sTB}, 3")
        e(f"s_lshl_b32 s5, s{sA}, 2")
        e(f"s_add_u32 s4, s4, s5")
        e(f"s_mul_i32 s4, s4, {ACT_ROW}")
        e(f"s_sub_u32 s5, s{sROLE}, 6")
        e(f"s_mul_i32 s5, s5, 12")
        e(f"s_mul_i32 s6, s{sB}, 3")
        e(f"s_add_u32 s5, s5, s6")
        e(f"s_lshl_b32 s5, s5, 9")
        e(f"s_add_u32 s4, s4, s5")
        e(f"v_bfe_u32 v{t[4]}, v{L}, 4, 1")
        e(f"v_mul_u32_u24 v{t[4]}, {ACT_ROW}, v{t[4]}")
        e(f"v_lshl_add_u32 v{t[4]}, v{h}, 8, v{t[4]}")
        e(f"v_and_b32 v{t[5]}, 15, v{L}")
        e(f"v_lshl_add_u32 v{t[4]}, v{t[5]}, 4, v{t[4]}")
        e(f"v_add_u32 v{t[4]}, s4, v{t[4]}")
        e(f"s_mov_b32 s7, {2*ACT_ROW}")
        body = []
        for u in range(NU):
            body.append(f"v_mul_f32 v{vRS[u]}, v{vRS[u]}, v{vRS[u]}")
        for i in range(3):
            for u in range(2):
                c = acc[i][u]
                tm = csr[i]
                for r in range(16):
                    body.append(f"v_fmac_f32 v{c+r}, v{vNM[u]}, v{tm+r}")
                for r in range(8):
                    body.append(f"v_max_f32 v{c+r}, 0, v{c+r}")
                    body.append(f"v_mul_f32 v{c+8+r}, v{vRS[u]}, v{c+8+r}")
                for r in range(8):
                    body.append(f"v_mul_f32 v{c+r}, v{c+r}, v{c+8+r}")
                p_ = c + 8
                for r in range(4):
                    body.append(f"v_cvt_pk_bf16_f32 v{p_+r}, v{c+2*r}, v{c+2*r+1}")
                so = "0" if u == 0 else "s7"
                st_ = f"buffer_store_dwordx4 v[{p_}:{p_+3}], v{t[4]}, s[{SRDO}:{SRDO+3}], {so} offen offset:{512*i} {sc}"
                if "ek" in EXP:
                    lab = e.newlab("k1ds")
                    body += [f"s_cbranch_scc1 {lab}", st_, f"{lab}:"]
                    DEFER.append(st_)
                else:
                    body.append(st_)
        pend = [{vNM[0]}, {vRS[0]}, {vNM[1]}, {vRS[1]}] + [set(range(csr[i] + 4 * a, csr[i] + 4 * a + 4)) for i in range(3) for a in range(4)]
        e("s_waitcnt lgkmcnt(12)")
        pend = pend[4:]
        bl, _ = autowait(body, pend)
        if "ek" in EXP:
            e(f"s_cmp_eq_u32 s{sW}, 7")
        for x in bl: e(x)
    elif cls == "qk":
        nbuf = nfr // 16
        tm = [frag0 + 16 * k for k in range(2)]
        for i in range(2):
            for a in range(4):
                e(f"ds_read_b128 v[{tm[i]+4*a}:{tm[i]+4*a+3}], v{csa} offset:{CSL+128*i+32*a}")
        e(f"s_mov_b32 s6, {hex(QB_OFF)}")
        e(f"s_cmp_ge_u32 s{sROLE}, 2")
        e(f"s_cselect_b32 s4, {hex(KB_OFF)}, s6")
        e(f"s_cselect_b32 s5, 1.0, {hex(f2u(20**-0.5*1.4426950408889634))}")
        srd(e, SRDO, S_WS, "s4", QK_SZ)
        e(f"s_mov_b32 s31, s5")
        e(f"s_and_b32 s4, s{sROLE}, 1")
        e(f"s_lshl_b32 s4, s4, 3")
        e(f"s_lshl_b32 s5, s{sB}, 2")
        e(f"s_add_u32 s4, s4, s5")
        e(f"s_lshl_b32 s4, s4, 6")
        e(f"s_lshl_b32 s5, s{sTB}, 2")
        e(f"s_add_u32 s4, s4, s5")
        e(f"s_add_u32 s4, s4, s{sA}")
        e(f"s_mul_i32 s4, s4, 2560")
        e(f"v_lshlrev_b32 v{t[4]}, 4, v{L}")
        e(f"v_add_u32 v{t[4]}, s4, v{t[4]}")
        e(f"v_lshlrev_b32 v{t[5]}, 3, v{L}")
        e(f"v_add_u32 v{t[5]}, s4, v{t[5]}")
        e(f"v_add_u32 v{t[5]}, 2048, v{t[5]}")
        stg = R.a(40, 4)
        def dst(G):
            p, k = divmod(G, 5)
            base = stg + 10 * p
            return {0: base, 1: base + 2, 2: base + 8, 3: base + 4, 4: base + 6}[k]
        body = [f"v_mul_f32 v{vRS[0]}, s31, v{vRS[0]}"]
        for i in range(5):
            c = acc[i][0]
            tmc = tm[i & 1]
            for r in range(16):
                body.append(f"v_fmac_f32 v{c+r}, v{vNM[0]}, v{tmc+r}")
            if i + 2 < 5:
                for a in range(4):
                    body.append(f"ds_read_b128 v[{tmc+4*a}:{tmc+4*a+3}], v{csa} offset:{CSL+128*(i+2)+32*a}")
            for r in range(16):
                body.append(f"v_mul_f32 v{c+r}, v{vRS[0]}, v{c+r}")
            for a in range(4):
                G = 4 * i + a
                d = dst(G)
                body.append(f"v_cvt_pk_bf16_f32 v{d}, v{c+4*a}, v{c+4*a+1}")
                body.append(f"v_cvt_pk_bf16_f32 v{d+1}, v{c+4*a+2}, v{c+4*a+3}")
                p, k = divmod(G, 5)
                if k == 4:
                    base = stg + 10 * p
                    body.append(f"s_mov_b32 s7, {p*64*2560}")
                    body.append(f"buffer_store_dwordx4 v[{base}:{base+3}], v{t[4]}, s[{SRDO}:{SRDO+3}], s7 offen {sc}")
                    body.append(f"buffer_store_dwordx4 v[{base+4}:{base+7}], v{t[4]}, s[{SRDO}:{SRDO+3}], s7 offen offset:1024 {sc}")
                    body.append(f"buffer_store_dwordx2 v[{base+8}:{base+9}], v{t[5]}, s[{SRDO}:{SRDO+3}], s7 offen {sc}")
        pend = [{vNM[0]}, {vRS[0]}] + [set(range(tm[i] + 4 * a, tm[i] + 4 * a + 4)) for i in range(2) for a in range(4)]
        bl, _ = autowait(body, pend)
        for x in bl: e(x)
    else:
        srd(e, SRDO, S_WS, VB_OFF, VB_SZ)
        e(f"s_lshl_b32 s4, s{sA}, 7")
        e(f"v_lshlrev_b32 v{t[4]}, 4, v{h}")
        e(f"v_add_u32 v{t[4]}, s4, v{t[4]}")
        rsq = frag0
        nmq = rsq + 16
        assert nfr >= 32
        for a in range(4):
            e(f"ds_read_b128 v[{rsq+4*a}:{rsq+4*a+3}], v{t[4]} offset:{32*a+RSL}")
            e(f"ds_read_b128 v[{nmq+4*a}:{nmq+4*a+3}], v{t[4]} offset:{32*a+NML}")
        e(f"v_and_b32 v{t[1]}, 31, v{L}")
        e(f"s_mul_i32 s4, s{sB}, {NT*32}")
        e(f"v_add_u32 v{t[1]}, s4, v{t[1]}")
        e(f"v_lshlrev_b32 v{t[1]}, 2, v{t[1]}")
        csl = [R.a() for _ in range(5)]
        for i in range(5):
            e(f"ds_read_b32 v{csl[i]}, v{t[1]} offset:{CSL+128*i}")
        e(f"s_sub_u32 s4, s{sROLE}, 4")
        e(f"s_lshl_b32 s4, s4, 4")
        e(f"s_lshl_b32 s5, s{sB}, 3")
        e(f"s_add_u32 s4, s4, s5")
        e(f"s_lshl_b32 s4, s4, 6")
        e(f"s_lshl_b32 s5, s{sTB}, 2")
        e(f"s_add_u32 s4, s4, s5")
        e(f"s_add_u32 s4, s4, s{sA}")
        e(f"s_mul_i32 s4, s4, 1280")
        e(f"s_mov_b32 s5, 3277")
        e(f"s_mov_b32 s6, {64*1280}")
        va = [R.a() for _ in range(5)]
        for i in range(5):
            e(f"v_and_b32 v{t[5]}, 31, v{L}")
            e(f"v_add_u32 v{t[5]}, {32*i}, v{t[5]}")
            e(f"v_mul_lo_u32 v{t[6]}, v{t[5]}, s5")
            e(f"v_lshrrev_b32 v{t[6]}, 16, v{t[6]}")
            e(f"v_mul_u32_u24 v{t[7]}, 20, v{t[6]}")
            e(f"v_sub_u32 v{t[5]}, v{t[5]}, v{t[7]}")
            e(f"v_mul_lo_u32 v{t[6]}, v{t[6]}, s6")
            e(f"v_lshl_add_u32 v{t[6]}, v{t[5]}, 4, v{t[6]}")
            e(f"v_mul_u32_u24 v{t[7]}, 320, v{h}")
            e(f"v_add3_u32 v{va[i]}, v{t[6]}, v{t[7]}, s4")
        e("s_waitcnt lgkmcnt(0)")
        for i in range(5):
            c = acc[i][0]
            for r in range(16):
                e(f"v_fmac_f32 v{c+r}, v{nmq+r}, v{csl[i]}")
            for r in range(16):
                e(f"v_mul_f32 v{c+r}, v{rsq+r}, v{c+r}")
            for sidx in range(2):
                d = c + 8 * sidx
                for r in range(4):
                    e(f"v_cvt_pk_bf16_f32 v{d+r}, v{d+2*r}, v{d+2*r+1}")
                e(f"buffer_store_dwordx4 v[{d}:{d+3}], v{va[i]}, s[{SRDO}:{SRDO+3}], 0 offen offset:{640*sidx} {sc}")
    stamp(e, 7)
    if finish is None:
        e("s_waitcnt vmcnt(0)")
        stamp(e, 5)
        stamp(e, 6, True)
        stamp_dump(e, 8, 0, sW, S_WS)
        e("s_endpgm")
    else:
        finish(e, cls)
    return R.hi


def helper(e, store_sc="", finish=None, pfx="k1"):
    R = Regs(2, 256, "v")
    t = [R.a() for _ in range(6)]
    vSrc, vRd, vDst, vOff = R.a(), R.a(), R.a(), R.a()
    ac = R.a(8, 4)
    u_ = [R.a() for _ in range(4)]
    fr = [R.a(4, 4) for _ in range(5)]
    L = 1
    SRDA, SRDB, SRDS = 8, 12, 80
    sKS, sSO = 24, 25
    PART = 0
    BUF0 = 32768
    e.lab(f"{pfx}_helper")
    e(f"v_lshlrev_b32 v{vSrc}, 4, v{L}")
    e(f"v_lshrrev_b32 v{t[0]}, 5, v{L}")
    e(f"v_bfe_u32 v{t[1]}, v{L}, 4, 1")
    e(f"v_bfe_u32 v{t[2]}, v{L}, 2, 2")
    e(f"v_lshl_add_u32 v{t[2]}, v{t[1]}, 2, v{t[2]}")
    e(f"v_lshl_add_u32 v{t[2]}, v{t[0]}, 4, v{t[2]}")
    e(f"v_mul_u32_u24 v{t[2]}, 1280, v{t[2]}")
    e(f"v_and_b32 v{t[3]}, 3, v{L}")
    e(f"v_mul_u32_u24 v{t[3]}, 40, v{t[3]}")
    e(f"s_mul_i32 s4, s{sW}, 160")
    e(f"s_add_u32 s4, s4, {BUF0}")
    e(f"v_add3_u32 v{vRd}, v{t[2]}, v{t[3]}, s4")
    e(f"s_mul_i32 s4, s{sW}, {W3_CB}")
    e(f"v_add_u32 v{vDst}, s4, v{vSrc}")
    for r in range(8):
        e(f"v_mov_b32 v{ac+r}, 0")
    e("s_waitcnt lgkmcnt(0)")
    stamp(e, 0, True)
    stamp(e, 1)
    srd(e, SRDA, S_DOWN, 0, WD_SZ)
    srd(e, SRDB, S_WO, 0, WO_SZ)
    srd(e, SRDO, S_WS, W3_OFF, W3_SZ)
    srd(e, SRDD, S_DBG, 0, 256)
    srd(e, SRDC, S_WS, CSG_OFF, CSG_SZ)
    l0 = e.newlab("k1n")
    e(f"s_or_b32 s4, s2, s{sW}")
    e("s_cmp_lg_u32 s4, 0")
    e(f"s_cbranch_scc1 {l0}")
    e("s_memrealtime s[6:7]")
    e("s_waitcnt lgkmcnt(0)")
    e("s_or_b32 s6, s6, 1")
    e(f"v_mov_b32 v{t[0]}, s6")
    e("s_mov_b64 exec, 1")
    e(f"buffer_store_dword v{t[0]}, off, s[{SRDD}:{SRDD+3}], 0 sc1")
    e("s_mov_b64 exec, -1")
    e.lab(l0)

    def w3_dma(j):
        b = BUF0 + (j % 3) * 40960
        lab = e.newlab("w3")
        e(f"s_add_u32 s{sKS}, s{sTB}, {16*j}")
        e(f"s_mul_i32 m0, s{sW}, 5120")
        e(f"s_add_u32 m0, m0, {b}")
        def issue(sr):
            for i in range(4):
                e(f"buffer_load_dwordx4 v{vSrc}, s[{sr}:{sr+3}], s{sSO} offen offset:{1024*i} lds")
            e(f"s_add_u32 s{sSO}, s{sSO}, 4096")
            e(f"s_add_u32 m0, m0, 4096")
            e("s_nop 0")
            e(f"buffer_load_dwordx4 v{vSrc}, s[{sr}:{sr+3}], s{sSO} offen lds")
        if j >= 3:
            e(f"s_cmp_ge_u32 s{sKS}, 54")
            e(f"s_cbranch_scc1 {lab}_o")
        if j <= 3:
            e(f"s_lshl_b32 s4, s{sKS}, 5")
            e(f"s_lshl_b32 s5, s{sW}, 2")
            e(f"s_add_u32 s4, s4, s5")
            e(f"s_mul_i32 s{sSO}, s4, 1280")
            issue(SRDA)
        if j >= 3:
            e(f"s_branch {lab}_go")
            e.lab(f"{lab}_o")
            e(f"s_cmp_ge_u32 s{sKS}, 70")
            e(f"s_cbranch_scc1 {lab}_x")
            e(f"s_sub_u32 s4, s{sKS}, 54")
            e(f"s_mul_i32 s4, s4, 40")
            e(f"s_lshr_b32 s5, s{sW}, 2")
            e(f"s_mul_i32 s5, s5, 20")
            e(f"s_add_u32 s4, s4, s5")
            e(f"s_and_b32 s5, s{sW}, 3")
            e(f"s_lshl_b32 s5, s5, 2")
            e(f"s_add_u32 s4, s4, s5")
            e(f"s_branch {lab}_wo")
            e.lab(f"{lab}_x")
            e(f"s_sub_u32 s4, s{sKS}, 70")
            e(f"s_lshl_b32 s4, s4, 3")
            e(f"s_lshr_b32 s5, s{sW}, 2")
            e(f"s_lshl_b32 s5, s5, 2")
            e(f"s_add_u32 s4, s4, s5")
            e(f"s_and_b32 s5, s{sW}, 1")
            e(f"s_lshl_b32 s5, s5, 1")
            e(f"s_add_u32 s4, s4, s5")
            e(f"s_bfe_u32 s5, s{sW}, 0x10001")
            e(f"s_add_u32 s4, s4, s5")
            e(f"s_mul_i32 s4, s4, 20")
            e(f"s_add_u32 s4, s4, 16")
            e.lab(f"{lab}_wo")
            e(f"s_mul_i32 s{sSO}, s4, 1280")
            issue(SRDB)
            e.lab(f"{lab}_go")

    def repack_rd(j):
        off = (j % 3) * 40960
        e(f"s_mov_b32 s4, {off}")
        e(f"v_add_u32 v{t[0]}, s4, v{vRd}")
        for c5 in range(5):
            e(f"ds_read_b64_tr_b16 v[{fr[c5]}:{fr[c5]+1}], v{t[0]} offset:{8*c5}")
            e(f"ds_read_b64_tr_b16 v[{fr[c5]+2}:{fr[c5]+3}], v{t[0]} offset:{8*c5+8*1280}")
        e("s_waitcnt lgkmcnt(0)")
        e("s_barrier")

    def repack_st(j):
        e(f"s_add_u32 s4, s{sTB}, {16*j}")
        e(f"s_mul_i32 s7, s4, 5120")
        for c5 in range(4):
            e(f"buffer_store_dwordx4 v[{fr[c5]}:{fr[c5]+3}], v{vDst}, s[{SRDO}:{SRDO+3}], s7 offen offset:{1024*c5} {store_sc}")
        e(f"s_add_u32 s7, s7, 4096")
        e(f"buffer_store_dwordx4 v[{fr[4]}:{fr[4]+3}], v{vDst}, s[{SRDO}:{SRDO+3}], s7 offen {store_sc}")

    def repack(j):
        repack_rd(j)
        repack_st(j)

    HS = 'hs' in EXP
    for j in range(1 if HS else 3):
        w3_dma(j)
    xb = R.a(80, 4)
    srd(e, SRDS, S_XP, 0, X_SZ)
    e(f"s_lshl_b32 s4, s{sTB}, 7")
    e(f"s_lshl_b32 s5, s{sW}, 4")
    e(f"s_add_u32 s4, s4, s5")
    e(f"s_mul_i32 s4, s4, 1280")
    e(f"v_lshrrev_b32 v{t[0]}, 2, v{L}")
    e(f"v_mul_u32_u24 v{t[0]}, 1280, v{t[0]}")
    e(f"v_and_b32 v{t[1]}, 3, v{L}")
    e(f"v_lshl_add_u32 v{vOff}, v{t[1]}, 4, v{t[0]}")
    for j in range(20):
        e(f"buffer_load_dwordx4 v[{xb+4*j}:{xb+4*j+3}], v{vOff}, s[{SRDS}:{SRDS+3}], s4 offen offset:{64*j}")
    ln = e.newlab("csn")
    if HS:
        w3_dma(1)
        w3_dma(2)
        e("s_waitcnt vmcnt(30)")
        e("s_barrier")
        e(f"buffer_load_dword v{t[5]}, off, s[{SRDD}:{SRDD+3}], 0 sc1")
        repack(0)
        e("s_waitcnt vmcnt(16)")
        if "es" not in EXP: stamp(e, 2)
    else:
        e(f"s_mov_b32 s{sCNT}, 200000")
        e.lab(ln)
        e(f"buffer_load_dword v{t[5]}, off, s[{SRDD}:{SRDD+3}], 0 sc1")
        e("s_waitcnt vmcnt(0)")
        e(f"v_readfirstlane_b32 s{sNONCE}, v{t[5]}")
        e(f"s_cmp_lg_u32 s{sNONCE}, 0")
        e(f"s_cbranch_scc1 {ln}_ok")
        e("s_sleep 2")
        e(f"s_sub_u32 s{sCNT}, s{sCNT}, 1")
        e(f"s_cmp_lg_u32 s{sCNT}, 0")
        e(f"s_cbranch_scc1 {ln}")
        e.lab(f"{ln}_ok")
        if "es" not in EXP: stamp(e, 2)
    first = True
    for d in range(80):
        a_, b_ = u_[2 * (d & 1)], u_[2 * (d & 1) + 1]
        e(f"v_lshlrev_b32 v{a_}, 16, v{xb+d}")
        e(f"v_and_b32 v{b_}, s{sMASK}, v{xb+d}")
        k = 2 * (d & 1)
        e(f"v_add_f32 v{ac+k}, v{ac+k}, v{a_}")
        e(f"v_add_f32 v{ac+k+1}, v{ac+k+1}, v{b_}")
        e(f"v_fmac_f32 v{ac+4+k}, v{a_}, v{a_}")
        e(f"v_fmac_f32 v{ac+4+k+1}, v{b_}, v{b_}")
    e(f"v_add_f32 v{ac}, v{ac}, v{ac+1}")
    e(f"v_add_f32 v{ac+2}, v{ac+2}, v{ac+3}")
    e(f"v_add_f32 v{ac+4}, v{ac+4}, v{ac+5}")
    e(f"v_add_f32 v{ac+6}, v{ac+6}, v{ac+7}")
    e(f"v_add_f32 v{ac}, v{ac}, v{ac+2}")
    e(f"v_add_f32 v{ac+4}, v{ac+4}, v{ac+6}")
    e(f"s_mov_b32 s4, {hex(f2u(1.0/640))}")
    e(f"s_mov_b32 s5, {hex(f2u(1e-5))}")
    for qp in ("[1,0,3,2]", "[2,3,0,1]"):
        e("s_nop 1")
        e(f"v_add_f32_dpp v{ac}, v{ac}, v{ac} quad_perm:{qp} row_mask:0xf bank_mask:0xf")
        e(f"v_add_f32_dpp v{ac+4}, v{ac+4}, v{ac+4} quad_perm:{qp} row_mask:0xf bank_mask:0xf")
    e("s_nop 0")
    e(f"v_mul_f32 v{ac+1}, s4, v{ac}")
    e(f"v_mul_f32 v{ac+4}, s4, v{ac+4}")
    e(f"v_fma_f32 v{ac+4}, -v{ac+1}, v{ac+1}, v{ac+4}")
    e(f"v_max_f32 v{ac+4}, 0, v{ac+4}")
    e(f"v_add_f32 v{ac+4}, s5, v{ac+4}")
    e(f"v_rsq_f32 v{ac}, v{ac+4}")
    e(f"v_sub_f32 v{ac+1}, 0, v{ac+1}")
    if HS:
        e(f"s_mov_b32 s{sCNT}, 200000")
        e("s_waitcnt vmcnt(5)")
        e.lab(ln)
        e(f"v_readfirstlane_b32 s{sNONCE}, v{t[5]}")
        e(f"s_cmp_lg_u32 s{sNONCE}, 0")
        e(f"s_cbranch_scc1 {ln}_ok")
        e("s_sleep 2")
        e(f"buffer_load_dword v{t[5]}, off, s[{SRDD}:{SRDD+3}], 0 sc1")
        e("s_waitcnt vmcnt(0)")
        e(f"s_sub_u32 s{sCNT}, s{sCNT}, 1")
        e(f"s_cmp_lg_u32 s{sCNT}, 0")
        e(f"s_cbranch_scc1 {ln}")
        e.lab(f"{ln}_ok")
    e(f"v_mov_b32 v{ac+2}, s{sNONCE}")
    e(f"v_mov_b32 v{ac+3}, s{sNONCE}")
    e(f"v_lshrrev_b32 v{t[0]}, 2, v{L}")
    e(f"v_lshlrev_b32 v{t[0]}, 4, v{t[0]}")
    e(f"s_lshl_b32 s4, s{sTB}, 11")
    e(f"s_lshl_b32 s5, s{sW}, 8")
    e(f"s_add_u32 s4, s4, s5")
    e(f"s_add_u32 s4, s4, {STG_REL}")
    e("s_mov_b32 exec_lo, 0x11111111")
    e("s_mov_b32 exec_hi, 0x11111111")
    e(f"buffer_store_dwordx4 v[{ac}:{ac+3}], v{t[0]}, s[{SRDC}:{SRDC+3}], s4 offen sc1")
    e("s_mov_b64 exec, -1")
    stamp(e, 3)
    e("s_barrier")
    if not HS:
        repack(0)
        w3_dma(3)
    repack(1)
    if HS:
        w3_dma(3)
    l4 = e.newlab("w3s")
    e(f"s_cmp_ge_u32 s{sTB}, 10")
    e(f"s_cbranch_scc1 {l4}")
    w3_dma(4)
    e.lab(l4)
    if HS:
        repack_rd(2)
    else:
        repack(2)
    stamp(e, 4)
    lg = e.newlab("csg")
    lskip = f"{lg}_skip" if HS else f"{lg}_end"
    if 'dg' in EXP:
        assert HS
        e(f"s_branch {lskip}")
    e(f"s_cmp_eq_u32 s{sTB}, 15")
    e(f"s_cbranch_scc1 {lskip}")
    e(f"s_cmp_ge_u32 s{sW}, 3")
    e(f"s_cbranch_scc1 {lskip}")
    e(f"s_mov_b32 s5, 159")
    e(f"s_cmp_lt_u32 s{sTB}, 6")
    e(f"s_cselect_b32 s4, s5, 191")
    e(f"v_min_u32 v{t[0]}, s4, v0")
    e(f"v_lshlrev_b32 v{t[1]}, 4, v{t[0]}")
    e(f"s_mov_b32 s{sCNT}, 200000")
    def gather():
        e(f"s_mul_i32 s4, s{sTB}, {16*3072}")
        e(f"s_add_u32 s4, s4, {PCS_REL}")
        for u in range(16):
            e(f"buffer_load_dwordx4 v[{xb+4*u}:{xb+4*u+3}], v{t[1]}, s[{SRDC}:{SRDC+3}], s4 offen sc1")
            if u < 15:
                e(f"s_add_u32 s4, s4, 3072")
    if HS:
        gather()
        repack_st(2)
        e("s_waitcnt vmcnt(5)")
        e(f"s_branch {lg}_chk")
    e.lab(lg)
    gather()
    e("s_waitcnt vmcnt(0)")
    e.lab(f"{lg}_chk")
    e(f"v_xor_b32 v{t[2]}, s{sNONCE}, v{xb+2}")
    for u in range(1, 16):
        e(f"v_xor_b32 v{t[3]}, s{sNONCE}, v{xb+4*u+2}")
        e(f"v_or_b32 v{t[2]}, v{t[2]}, v{t[3]}")
    e(f"v_cmp_ne_u32 vcc, 0, v{t[2]}")
    e("s_nop 1")
    e(f"s_cbranch_vccz {lg}_ok")
    e("s_sleep 4")
    e(f"s_sub_u32 s{sCNT}, s{sCNT}, 1")
    e(f"s_cmp_lg_u32 s{sCNT}, 0")
    e(f"s_cbranch_scc1 {lg}")
    e.lab(f"{lg}_ok")
    for u in range(1, 16):
        e(f"v_add_f32 v{xb}, v{xb}, v{xb+4*u}")
        e(f"v_add_f32 v{xb+1}, v{xb+1}, v{xb+4*u+1}")
    e(f"v_mov_b32 v{xb+2}, v{xb+1}")
    e(f"v_mov_b32 v{xb+1}, s{sNONCE}")
    e(f"v_mov_b32 v{xb+3}, s{sNONCE}")
    e(f"v_lshrrev_b32 v{t[2]}, 4, v{t[0]}")
    e(f"v_and_b32 v{t[3]}, 15, v{t[0]}")
    e(f"v_lshlrev_b32 v{t[3]}, 3, v{t[3]}")
    e(f"v_lshl_add_u32 v{t[3]}, v{t[2]}, 8, v{t[3]}")
    e(f"s_mul_i32 s4, s{sTB}, {384*8}")
    e(f"buffer_store_dwordx2 v[{xb}:{xb+1}], v{t[3]}, s[{SRDC}:{SRDC+3}], s4 offen sc1")
    e(f"buffer_store_dwordx2 v[{xb+2}:{xb+3}], v{t[3]}, s[{SRDC}:{SRDC+3}], s4 offen offset:128 sc1")
    if HS:
        e(f"s_branch {lg}_end")
        e.lab(lskip)
        repack_st(2)
    e.lab(f"{lg}_end")
    lend = f"{pfx}_h_end"
    e("s_waitcnt vmcnt(%d)" % (5 if HS else 0))
    e("s_barrier")
    repack(3)
    e(f"s_cmp_ge_u32 s{sTB}, 10")
    e(f"s_cbranch_scc1 {lend}")
    repack(4)
    e.lab(lend)
    stamp(e, 7)
    if finish is None:
        e("s_waitcnt vmcnt(0)")
        stamp(e, 5)
        stamp(e, 6, True)
        stamp_dump(e, 8, 0, sW, S_WS)
        e("s_endpgm")
    else:
        finish(e, "helper")
    return R.hi


def gen_k1(e, name, store_sc=""):
    e.l.append(kernel_header(name))
    prologue(e)
    hi = 0
    hi = max(hi, gemm(e, "qk", store_sc))
    hi = max(hi, gemm(e, "v", store_sc))
    hi = max(hi, gemm(e, "ffn", store_sc))
    hi = max(hi, helper(e, store_sc))
    e.lab("k1_exit")
    e("s_endpgm")
    return hi
```
